```python
import torch

def _softmax(x, axis=-1):
    return torch.softmax(x, dim=axis)
def _gelu(x):
    return torch.nn.functional.gelu(x, approximate="tanh")
def _silu(x):
    return torch.nn.functional.silu(x)
def _sigmoid(x):
    return torch.sigmoid(x)
def _layernorm(x, axis=-1, eps=1e-5):
    m = x.mean(dim=axis, keepdim=True)
    v = x.var(dim=axis, keepdim=True, unbiased=False)
    return (x - m) / torch.sqrt(v + eps)
def _scatter_add(tgt, idx, src, axis=0):
    return tgt.clone().index_add_(axis, idx, src)
def _segment_sum(src, seg, n):
    out = torch.zeros((n,) + src.shape[1:], dtype=src.dtype)
    return out.index_add_(0, seg, src)
def _pad(x, pw):
    flat = tuple(v for pair in reversed(pw) for v in pair)
    return torch.nn.functional.pad(x, flat)

kernel_name = 'interleave_layers__ssm_conv_s4d__dense_activation_relu__prompt'

def setup_inputs():

    _w = (lambda a: (lambda t: t.to(torch.bfloat16) if t.is_floating_point() else t)(torch.as_tensor(a)))
    def _A_setup():
        Bsz, L, D, N = 1, 2048, 512, 128
        return {
            "u": _w((lambda *s: torch.randn(*s, dtype=torch.bfloat16) * 0.05)(Bsz, L, D)),
            "log_A_real": _w((lambda *s: torch.randn(*s, dtype=torch.bfloat16) * 3.2)(D, N) * 0.5),
            "A_imag": _w((lambda *s: torch.randn(*s, dtype=torch.bfloat16) * 0.2)(D, N) * 3.14),
            "C_real": _w((lambda *s: torch.randn(*s, dtype=torch.bfloat16) * 0.2)(D, N) / N ** 0.5),
            "C_imag": _w((lambda *s: torch.randn(*s, dtype=torch.bfloat16) * 0.2)(D, N) / N ** 0.5),
            "log_dt": _w((lambda *s: torch.randn(*s, dtype=torch.bfloat16) * 0.2)(D) * 0.5 - 4.0),
            "D_skip": _w((lambda *s: torch.randn(*s, dtype=torch.bfloat16) * 0.2)(D)),
        }
    _A_in = _A_setup()

    def _B_setup():
        B, S, D, Dff = 1, 2048, 512, 1376
        return {
            "x": _w((lambda *s: torch.randn(*s, dtype=torch.bfloat16) * 0.05)(B, S, D)),
            "w1": _w((lambda *s: torch.randn(*s, dtype=torch.bfloat16) * 0.05)(D, Dff)),
            "w2": _w((lambda *s: torch.randn(*s, dtype=torch.bfloat16) * 0.05)(Dff, D)),
        }
    _B_in = _B_setup()

    return {
        "A_u": _A_in["u"],
        "A_log_A_real": _A_in["log_A_real"],
        "A_A_imag": _A_in["A_imag"],
        "A_C_real": _A_in["C_real"],
        "A_C_imag": _A_in["C_imag"],
        "A_log_dt": _A_in["log_dt"],
        "A_D_skip": _A_in["D_skip"],
        "B_x": _B_in["x"],
        "B_w1": _B_in["w1"],
        "B_w2": _B_in["w2"],
    }

def reference(A_u, A_log_A_real, A_A_imag, A_C_real, A_C_imag, A_log_dt, A_D_skip, B_x, B_w1, B_w2):
    def _A_ref(u, log_A_real, A_imag, C_real, C_imag, log_dt, D_skip):
        L = u.shape[1]
        dt = torch.exp(log_dt)
        A = -torch.exp(log_A_real) + 1j * A_imag
        C = (C_real + 1j * C_imag) * dt[:, None]
        pos = (lambda x, dt: x.to(dt))(torch.arange(L), log_dt.dtype)
        P = torch.exp((A * dt[:, None])[:, :, None] * pos[None, None, :])
        K = 2.0 * torch.einsum("dn,dnl->dl", C, P).real
        L2 = 2 * L
        u_t = (lambda x, *d: x.permute(*d))(u, 0, 2, 1)
        Kf = (lambda x, *a, **k: torch.fft.rfft(x.float(), *a, **k))(K, L2)
        Uf = (lambda x, *a, **k: torch.fft.rfft(x.float(), *a, **k))(u_t, L2)
        y = (lambda x, *a, **k: torch.fft.irfft(x, *a, **k).to(torch.bfloat16))(Uf * Kf[None, :, :], L2)[:, :, :L]
        y = (lambda x, *d: x.permute(*d))(y, 0, 2, 1)
        return y + u * D_skip[None, None, :]

    def _B_ref(x, w1, w2):
        h = torch.einsum("bsd,df->bsf", x, w1)
        zero = torch.zeros_like(h)
        h = torch.maximum(h, zero)
        return torch.einsum("bsf,fd->bsd", h, w2)

    x = A_u
    x = x + _A_ref(_layernorm(x, axis=-1), A_log_A_real, A_A_imag, A_C_real, A_C_imag, A_log_dt, A_D_skip)
    x = x + _B_ref(_layernorm(x, axis=-1), B_w1, B_w2)
    x = x + _A_ref(_layernorm(x, axis=-1), A_log_A_real, A_A_imag, A_C_real, A_C_imag, A_log_dt, A_D_skip)
    x = x + _B_ref(_layernorm(x, axis=-1), B_w1, B_w2)
    return x
```

```python
import struct
NAME='interleave_layers__ssm_conv_s4d__dense_activation_relu__prompt'
def f2u(x): return struct.unpack('<I', struct.pack('<f', x))[0]
def fhex(x): return '0x%08x' % f2u(x)

class Asm:
    def __init__(self):
        self.lines=[]; self.n=0
    def __call__(self, s):
        for l in s.split('\n'):
            l=l.strip()
            if l: self.lines.append(('' if l.endswith(':') else '    ')+l)
    def label(self, base):
        self.n+=1
        return f'L_{base}_{self.n}'
    def text(self): return '\n'.join(self.lines)+'\n'

def kdesc(name, vgpr=256, sgpr=102, accum=None, extra=''):
    if accum is None: accum=min(256,(vgpr+3)//4*4)
    return f'''.p2align 6
.amdhsa_kernel {name}
  .amdhsa_next_free_vgpr {vgpr}
  .amdhsa_next_free_sgpr {sgpr}
  .amdhsa_accum_offset {accum}
  .amdhsa_group_segment_fixed_size 0
  .amdhsa_kernarg_size 104
  .amdhsa_user_sgpr_count 2
  .amdhsa_user_sgpr_kernarg_segment_ptr 1
  .amdhsa_system_sgpr_workgroup_id_x 1
  .amdhsa_float_denorm_mode_32 3
  .amdhsa_ieee_mode 0
{extra}.end_amdhsa_kernel
'''
def khead(name):
    return f'.globl {name}\n.p2align 8\n.type {name},@function\n{name}:\n'

def build_file(launches, kernels, header=''):
    s=header
    for (n,g,b,l) in launches:
        s+=f'; @launch kernel={n} grid=({g},1,1) block=({b},1,1) lds={l}\n'
    s+='.amdgcn_target "amdgcn-amd-amdhsa--gfx950"\n.text\n'
    for (n,t,d) in kernels:
        s+=khead(n)+t
    s+='.section .rodata,"a"\n'
    for (n,t,d) in kernels:
        s+=d
    return s
```

```python
import sys
from asmlib import *
import math
OFF_K=0; OFF_X=4<<20; OFF_U=8<<20; OFF_H=12<<20
def prolog(a, nwg):
    a(f'''s_cmp_ge_u32 s2, {nwg}
    s_cbranch_scc1 L_end_{a.kn}
    s_load_dwordx16 s[4:19], s[0:1], 0
    s_load_dwordx4 s[20:23], s[0:1], 64
    s_load_dwordx2 s[24:25], s[0:1], 80
    s_load_dwordx2 s[26:27], s[0:1], 96
    s_lshl_b32 s3, s2, 8
    v_add_u32 v1, s3, v0
    s_waitcnt lgkmcnt(0)''')
    for r,off in ((28,OFF_K),(30,OFF_X),(32,OFF_U),(34,OFF_H)):
        a(f's_add_u32 s{r}, s26, {off}\ns_addc_u32 s{r+1}, s27, 0')
def new(kn):
    a=Asm(); a.kn=kn; return a
def end(a):
    a(f's_waitcnt vmcnt(0)\nL_end_{a.kn}:\ns_endpgm')
def rbf(a, v):
    a(f'v_cvt_pk_bf16_f32 v{v}, v{v}, v{v}\nv_lshlrev_b32 v{v}, 16, v{v}')
LOG2E=fhex(math.log2(math.e))
ks=[]
a=new('kgen'); prolog(a,4096)
a(f'''v_and_b32 v2, 511, v1
v_lshrrev_b32 v3, 9, v1
v_cvt_f32_u32 v3, v3''')
rbf(a,3)
a(f'''v_lshlrev_b32 v4, 1, v2
global_load_ushort v5, v4, s[14:15]
v_lshlrev_b32 v6, 8, v2
v_mov_b32 v20, 0
s_mov_b32 s36, 0
s_waitcnt vmcnt(0)
v_lshlrev_b32 v5, 16, v5
v_mul_f32 v5, {LOG2E}, v5
v_exp_f32 v5, v5
s_nop 1''')
rbf(a,5)
a(f'''L_kg_loop:
global_load_ushort v7, v6, s[6:7]
global_load_ushort v8, v6, s[8:9]
global_load_ushort v9, v6, s[10:11]
global_load_ushort v10, v6, s[12:13]
v_add_u32 v6, 2, v6
s_waitcnt vmcnt(0)
v_lshlrev_b32 v7, 16, v7
v_lshlrev_b32 v8, 16, v8
v_lshlrev_b32 v9, 16, v9
v_lshlrev_b32 v10, 16, v10
v_mul_f32 v7, {LOG2E}, v7
v_exp_f32 v7, v7
s_nop 1''')
rbf(a,7)
a(f'''v_mul_f32 v7, v7, v5
v_mul_f32 v8, v8, v5
v_mul_f32 v9, v9, v5
v_mul_f32 v10, v10, v5
v_mul_f32 v7, v7, v3
v_mul_f32 v8, v8, v3
v_mul_f32 v7, {fhex(-math.log2(math.e))}, v7
v_exp_f32 v7, v7
v_mul_f32 v8, 0.15915494, v8
v_fract_f32 v8, v8
v_cos_f32 v11, v8
v_sin_f32 v12, v8
s_nop 1
v_mul_f32 v11, v11, v9
v_fma_f32 v11, -v12, v10, v11
v_fmac_f32 v20, v11, v7
s_add_u32 s36, s36, 1
s_cmp_lt_u32 s36, 128
s_cbranch_scc1 L_kg_loop
v_add_f32 v20, v20, v20
v_lshlrev_b32 v1, 2, v1
global_store_dword v1, v20, s[28:29]''')
end(a); ks.append(('kgen_kernel',a.text(),kdesc('kgen_kernel',32,48)))
a=new('init'); prolog(a,4096)
a('''v_lshlrev_b32 v2, 1, v1
global_load_ushort v3, v2, s[4:5]
v_lshlrev_b32 v1, 2, v1
s_waitcnt vmcnt(0)
v_lshlrev_b32 v3, 16, v3
global_store_dword v1, v3, s[30:31]''')
end(a); ks.append(('init_kernel',a.text(),kdesc('init_kernel',32,48)))
a=new('fin'); prolog(a,4096)
PERT=float(sys.argv[2]) if len(sys.argv)>2 else 0.0
a(f'''v_lshlrev_b32 v2, 2, v1
global_load_dword v3, v2, s[30:31]
v_lshlrev_b32 v1, 1, v1
s_waitcnt vmcnt(0)
v_mul_f32 v3, {fhex(1.0+PERT)}, v3
v_cvt_pk_bf16_f32 v3, v3, v3
global_store_short v1, v3, s[24:25]''')
end(a); ks.append(('fin_kernel',a.text(),kdesc('fin_kernel',32,48)))
a=new('ln'); prolog(a,512)
a('''v_lshlrev_b32 v2, 5, v1
global_load_dwordx4 v[4:7], v2, s[30:31]
global_load_dwordx4 v[8:11], v2, s[30:31] offset:16
s_waitcnt vmcnt(0)
v_add_f32 v12, v4, v5''')
for i in range(6,12): a(f'v_add_f32 v12, v12, v{i}')
def wred(a, v):
    a('v_and_b32 v14, 63, v0')
    for sh in (1,2,4,8,16,32):
        a(f'''v_xor_b32 v15, {sh}, v14
        v_lshlrev_b32 v15, 2, v15
        ds_bpermute_b32 v16, v15, v{v}
        s_waitcnt lgkmcnt(0)
        v_add_f32 v{v}, v{v}, v16''')
wred(a,12)
a(f'v_mul_f32 v12, {fhex(1/512)}, v12')
for i in range(4,12): a(f'v_sub_f32 v{i}, v{i}, v12')
a('v_mul_f32 v13, v4, v4')
for i in range(5,12): a(f'v_fmac_f32 v13, v{i}, v{i}')
wred(a,13)
a(f'''v_mul_f32 v13, {fhex(1/512)}, v13
v_add_f32 v13, {fhex(1e-5)}, v13
v_rsq_f32 v13, v13
s_nop 1''')
for i in range(4,12): a(f'v_mul_f32 v{i}, v{i}, v13')
a('''global_store_dwordx4 v2, v[4:7], s[32:33]
global_store_dwordx4 v2, v[8:11], s[32:33] offset:16''')
end(a); ks.append(('ln_kernel',a.text(),kdesc('ln_kernel',32,48)))
a=new('conv'); prolog(a,4096)
a('''v_and_b32 v2, 511, v1
v_lshlrev_b32 v3, 1, v2
global_load_ushort v4, v3, s[16:17]
v_lshlrev_b32 v1, 2, v1
global_load_dword v5, v1, s[30:31]
global_load_dword v6, v1, s[32:33]
v_lshlrev_b32 v2, 2, v2
v_mov_b32 v7, v1
s_lshr_b32 s36, s2, 1
s_add_u32 s36, s36, 1
s_waitcnt vmcnt(0)
v_lshlrev_b32 v4, 16, v4
v_fmac_f32 v5, v4, v6
L_cv_loop:
global_load_dword v8, v2, s[28:29]
global_load_dword v9, v7, s[32:33]
v_add_u32 v2, 2048, v2
v_subrev_u32 v7, 2048, v7
s_waitcnt vmcnt(0)
v_fmac_f32 v5, v8, v9
s_sub_u32 s36, s36, 1
s_cmp_lg_u32 s36, 0
s_cbranch_scc1 L_cv_loop
global_store_dword v1, v5, s[30:31]''')
end(a); ks.append(('conv_kernel',a.text(),kdesc('conv_kernel',32,48)))
a=new('g1'); prolog(a,2048*8)
a('''s_lshr_b32 s36, s2, 3
s_and_b32 s37, s2, 7
s_lshl_b32 s37, s37, 8
v_add_u32 v2, s37, v0
s_movk_i32 s38, 1376
v_cmp_gt_u32 vcc, s38, v2
s_and_saveexec_b64 s[40:41], vcc
s_cbranch_execz L_end_g1
v_lshlrev_b32 v3, 1, v2
s_lshl_b32 s39, s36, 11
v_mov_b32 v4, s39
v_mov_b32 v5, 0
s_movk_i32 s42, 512
L_g1_loop:
global_load_ushort v6, v3, s[20:21]
global_load_dword v7, v4, s[32:33]
v_add_u32 v3, 2752, v3
v_add_u32 v4, 4, v4
s_waitcnt vmcnt(0)
v_lshlrev_b32 v6, 16, v6
v_fmac_f32 v5, v6, v7
s_sub_u32 s42, s42, 1
s_cmp_lg_u32 s42, 0
s_cbranch_scc1 L_g1_loop
v_max_f32 v5, 0, v5
s_mul_i32 s39, s36, 1376
v_add_u32 v2, s39, v2
v_lshlrev_b32 v2, 2, v2
global_store_dword v2, v5, s[34:35]''')
end(a); ks.append(('g1_kernel',a.text(),kdesc('g1_kernel',32,48)))
a=new('g2'); prolog(a,4096)
a('''v_and_b32 v2, 511, v1
v_lshlrev_b32 v3, 1, v2
s_lshr_b32 s36, s2, 1
s_mul_i32 s39, s36, 5504
v_mov_b32 v4, s39
v_lshlrev_b32 v1, 2, v1
global_load_dword v5, v1, s[30:31]
s_movk_i32 s42, 1376
L_g2_loop:
global_load_ushort v6, v3, s[22:23]
global_load_dword v7, v4, s[34:35]
v_add_u32 v3, 1024, v3
v_add_u32 v4, 4, v4
s_waitcnt vmcnt(0)
v_lshlrev_b32 v6, 16, v6
v_fmac_f32 v5, v6, v7
s_sub_u32 s42, s42, 1
s_cmp_lg_u32 s42, 0
s_cbranch_scc1 L_g2_loop
global_store_dword v1, v5, s[30:31]''')
end(a); ks.append(('g2_kernel',a.text(),kdesc('g2_kernel',32,48)))
a=new('nop'); a('s_endpgm'); ks.append(('nop_kernel',a.text(),kdesc('nop_kernel',8,16)))
NE=int(sys.argv[1]) if len(sys.argv)>1 else 0
L=[('nop_kernel',256,256,0)]*NE
L+=[('kgen_kernel',4096,256,0),('init_kernel',4096,256,0)]
for i in range(2):
    L+=[('ln_kernel',512,256,0),('conv_kernel',4096,256,0),('ln_kernel',512,256,0),('g1_kernel',2048*8,256,0),('g2_kernel',4096,256,0)]
L+=[('fin_kernel',4096,256,0)]
if NE==0: ks=ks[:-1]
sys.stdout.write(build_file(L,ks))
```

```python
import struct
NAME='interleave_layers__ssm_conv_s4d__dense_activation_relu__prompt'
def f2u(x): return struct.unpack('<I', struct.pack('<f', x))[0]
def fhex(x): return '0x%08x' % f2u(x)

class Asm:
    def __init__(self):
        self.lines=[]; self.n=0
    def __call__(self, s):
        for l in s.split('\n'):
            l=l.strip()
            if l: self.lines.append(('' if l.endswith(':') else '    ')+l)
    def label(self, base):
        self.n+=1
        return f'L_{base}_{self.n}'
    def text(self): return '\n'.join(self.lines)+'\n'

def kdesc(name, vgpr=256, sgpr=102, accum=None, extra=''):
    if accum is None: accum=min(256,(vgpr+3)//4*4)
    return f'''.p2align 6
.amdhsa_kernel {name}
  .amdhsa_next_free_vgpr {vgpr}
  .amdhsa_next_free_sgpr {sgpr}
  .amdhsa_accum_offset {accum}
  .amdhsa_group_segment_fixed_size 0
  .amdhsa_kernarg_size 104
  .amdhsa_user_sgpr_count 2
  .amdhsa_user_sgpr_kernarg_segment_ptr 1
  .amdhsa_system_sgpr_workgroup_id_x 1
  .amdhsa_float_denorm_mode_32 3
  .amdhsa_ieee_mode 0
{extra}.end_amdhsa_kernel
'''
def khead(name):
    return f'.globl {name}\n.p2align 8\n.type {name},@function\n{name}:\n'

def build_file(launches, kernels, header=''):
    s=header
    for (n,g,b,l) in launches:
        s+=f'; @launch kernel={n} grid=({g},1,1) block=({b},1,1) lds={l}\n'
    s+='.amdgcn_target "amdgcn-amd-amdhsa--gfx950"\n.text\n'
    for (n,t,d) in kernels:
        s+=khead(n)+t
    s+='.section .rodata,"a"\n'
    for (n,t,d) in kernels:
        s+=d
    return s

import re
_RX=re.compile(r'\b([vas])\[(\d+):(\d+)\]|\b([vas])(\d+)\b|\b(vcc|exec|m0)\b')
def _regs(op):
    out=set()
    for m in _RX.finditer(op):
        if m.group(1):
            for k in range(int(m.group(2)),int(m.group(3))+1): out.add((m.group(1),k))
        elif m.group(4): out.add((m.group(4),int(m.group(5))))
        else: out.add((m.group(6),0))
    return out
_TRANS=('v_exp_f32','v_log_f32','v_rcp_f32','v_rsq_f32','v_sqrt_f32','v_sin_f32','v_cos_f32')
def _split(rest):
    ops=[];d=0;cur=''
    for ch in rest:
        if ch=='[': d+=1
        if ch==']': d-=1
        if ch==',' and d==0: ops.append(cur.strip()); cur=''
        else: cur+=ch
    if cur.strip(): ops.append(cur.strip())
    return ops
def parse(line):
    l=line.split(';')[0].strip()
    if not l or l.endswith(':') or l.startswith('.'): return None
    p=l.split(None,1); mn=p[0]; ops=_split(p[1]) if len(p)>1 else []
    I=dict(mn=mn,dst=set(),src=set(),kind='other',srcC=set(),ab=set(),sdata=set(),states=1,dpp=False)
    R=[_regs(o.split(' ')[0]) if o else set() for o in ops]
    if mn=='s_nop': I['states']=int(ops[0])+1; return I
    if mn.startswith('v_mfma'):
        I['kind']='mfma'; I['dst']=R[0]; I['ab']=R[1]|R[2]; I['srcC']=R[3]; I['src']=R[1]|R[2]|R[3]
        I['passes']=8 if '32x32' in mn else 4
    elif mn.startswith('v_'):
        I['kind']='valu'; I['dst']=set(R[0]); I['src']=set().union(*R[1:]) if len(R)>1 else set()
        if mn.startswith('v_permlane') or mn.startswith('v_swap'): I['dst']=R[0]|R[1]; I['src']=R[0]|R[1]
        if 'fmac' in mn or 'dot2c' in mn or '_dpp' in mn: I['src']|=R[0]
        if '_dpp' in mn: I['dpp']=True
        if mn.startswith('v_cndmask') and len(ops)==3: I['src'].add(('vcc',0))
        if mn.startswith(('v_add_co','v_sub_co','v_addc_co')): I['dst']|=R[1]
    elif mn.startswith('ds_'):
        I['kind']='ds'
        if mn.startswith(('ds_read','ds_bpermute','ds_swizzle')): I['dst']=R[0]; I['src']=set().union(*R[1:])
        else: I['src']=set().union(*R)
    elif mn.startswith(('buffer_','global_')):
        I['kind']='vmem'
        lds=' lds' in l
        I['lds']=lds
        if not R: pass
        elif 'load' in mn and not lds: I['dst']=R[0]; I['src']=set().union(*R[1:])
        else:
            I['src']=set().union(*R)
            if 'store' in mn and ('x4' in mn or 'x3' in mn): I['sdata']=R[0] if mn.startswith('buffer_') else R[1]
            if 'atomic' in mn and ' sc0' in l: I['dst']=R[0]
    elif mn.startswith('s_'):
        I['kind']='salu'
        if mn.startswith(('s_cmp','s_cbranch','s_branch','s_waitcnt','s_barrier','s_sleep','s_endpgm','s_setprio')): I['src']=set().union(*R) if R else set()
        else:
            I['dst']=R[0] if R else set(); I['src']=set().union(*R[1:]) if len(R)>1 else set()
    return I
def _isv(s): return {r for r in s if r[0] in 'va'}
def _iss(s): return {r for r in s if r[0] in ('s','vcc')}
def need(P,C):
    n=0
    pk,ck=P['kind'],C['kind']
    if pk=='valu':
        vd=_isv(P['dst']); sd=_iss(P['dst'])
        isdot='dot2' in P['mn']
        if ck=='mfma' and vd&C['src']: n=max(n,3 if isdot else 2)
        if ck=='valu':
            if vd&C['src']:
                if C['dpp'] or C['mn'].startswith('v_permlane'): n=max(n,2)
                if C['mn'].startswith(('v_readlane','v_readfirstlane')): n=max(n,1)
                if P['mn'].startswith(_TRANS) and not C['mn'].startswith(_TRANS): n=max(n,1)
                if '_sdwa' in P['mn']: n=max(n,1)
            if isdot and vd&(C['src']|C['dst']) and (C['mn']!=P['mn']): n=max(n,3)
            if sd&C['src']: n=max(n,4 if C['mn'].startswith(('v_readlane','v_writelane')) else 2)
        if ck in('ds','vmem') and isdot and vd&C['src']: n=max(n,3)
        if ck in('ds','vmem') and P['mn'].startswith(_TRANS) and vd&C['src']: n=max(n,1)
        if ck=='vmem' and sd&C['src']: n=max(n,5)
        if ck=='salu' and sd&C['src']: n=max(n,1)
    if pk=='mfma':
        ps=P['passes']; d=P['dst']
        if ck=='mfma':
            if d&C['ab']: n=max(n,ps+4)
            if d&C['srcC'] and not(d==C['srcC'] and ps==C['passes']): n=max(n,ps+2)
            if d&C['dst'] and not d&C['srcC']: n=max(n,ps+2)
        elif ck in('valu','ds','vmem'):
            if d&(C['src']|C['dst']): n=max(n,ps+4)
            if ck=='valu' and P['srcC']&C['dst']: n=max(n,ps-1)
    if pk=='salu' and ('m0',0) in P['dst'] and ck=='vmem' and C.get('lds'): n=max(n,1)
    if pk=='vmem' and P['sdata'] and P['sdata']&C['dst']: n=max(n,2)
    return n
def fix_hazards(lines, verbose=False):
    out=[];win=[];added=0
    for ln in lines:
        I=parse(ln)
        if I is None: out.append(ln); continue
        dist=0;pad=0
        for P in reversed(win):
            pad=max(pad,need(P,I)-dist)
            dist+=P['states']
            if dist>=20: break
        if pad>0:
            out.append(f'    s_nop {pad-1}'); win.append(dict(mn='s_nop',dst=set(),src=set(),kind='other',srcC=set(),ab=set(),sdata=set(),states=pad,dpp=False)); added+=1
        out.append(ln); win.append(I)
        if len(win)>24: win=win[-24:]
    if verbose: print('hazard nops added',added)
    return out

class Ctr:
    def __init__(self,a,name,mx):
        self.a=a; self.name=name; self.mx=mx; self.ops=[]; self.dc=0; self.du=0; self.tags={}; self.cond=False; self.condreg=None
    def issue(self,text,tag=None):
        self.a(text); self.ops.append(self.cond)
        if tag is not None: self.tags[tag]=len(self.ops)
    def pending(self):
        return len(self.ops)-self.dc
    def wait(self,tag):
        k=self.tags[tag]
        if k<=(self.dc if self.cond else self.du): return
        young=self.ops[k:]
        N=len(young) if self.cond else sum(1 for c in young if not c)
        N=min(N,self.mx)
        Nc=min(len(young),self.mx)
        if Nc!=N and self.condreg is not None:
            l=self.a.label('w2')
            if k>self.dc: self.a(f's_waitcnt {self.name}({Nc})')
            self.a(f's_cmp_eq_u32 s{self.condreg}, 0\ns_cbranch_scc1 {l}\ns_waitcnt {self.name}({N})\n{l}:')
            self.dc=max(self.dc,k)
        else:
            self.a(f's_waitcnt {self.name}({N})')
            self.dc=max(self.dc,k,len(self.ops)-N)
        if not self.cond: self.du=max(self.du,k)
    def drain(self):
        self.a(f's_waitcnt {self.name}(0)'); self.reset()
    def reset(self):
        self.dc=len(self.ops)
        if not self.cond: self.du=len(self.ops)
```

```python
import sys, math
from asmlib import *
opt=dict(ts=0, stop='', warm=1, forceglobal=0)
for s in sys.argv[1:]:
    k,v=s.split('='); opt[k]=int(v) if v.lstrip('-').isdigit() else v
TS=opt['ts']; STOP=opt['stop']
MB=1<<20
A2=0; X1=4*MB; HB=8*MB; ST=13*MB+MB//2; PS=ST+32768; HF=PS+131072; XID=HF+4096; WSZ=14*MB; DUMP=16*MB
KC=0; KCH=8320; KCP=4160
U=16640; UCH=4608
STAT=25856
XT=27648; RED=XT+65536; LDS_END=163840
TAB=XT; TROW=528; TCH=53*TROW; KT=XT+2*TCH; KTCH=1408
BASE=XT; EXCH=XT+16384
RG12=(XT+58880,19328); RG3=(XT+32768,25856); RG45=(RED,17664)
sX=4;sLA=6;sAI=8;sCR=10;sCI=12;sLD=14;sDS=16;sW1=20;sW2=22;sOUT=24;sDBG=26;sWS=28
rWS=32;rW1=36;rW2=40;rOUT=44
sW=48;sCP=49;sRB=50;sJ=51;sLAY=52;sLOC=53;sOB=54;sXCC=55;sSPIN=56;sKH=57;sD0=58;sD1=60
sA2L=62;sX1L=63;sSTL=64;sW1B=65;sW2B=66;sCH=67
rX=68
sT=72
def S(n,k=1): return f's{n}' if k==1 else f's[{n}:{n+k-1}]'
def V(n,k=1): return f'v{n}' if k==1 else f'v[{n}:{n+k-1}]'
vTID=0;vLANE=1;vCS=2;vXT=14;vTS=18;vW=20
def W1R(t,ks,k=4,o=0):
    i=(t*16+ks)*4+o
    return (f'a[{176+i}:{176+i+k-1}]' if k>1 else f'a{176+i}') if i<80 else V(144+i-80,k)
def W2R(ks,dt,k=4,o=0):
    i=(ks*4+dt)*4+o
    return f'a[{i}:{i+k-1}]'
MF='v_mfma_f32_16x16x32_bf16'
a=Asm(); vm=Ctr(a,'vmcnt',63); lg=Ctr(a,'lgkmcnt',15); vm.condreg=sLAY
def ts(i):
    if TS: a(f's_memrealtime s[96:97]\ns_waitcnt lgkmcnt(0)\nv_writelane_b32 v{vTS}, s96, {i}'); lg.reset()
def ts_dump(slot):
    if TS:
        a(f'''s_lshl_b32 s96, s2, 2
        s_add_u32 s96, s96, s{sW}
        s_mul_i32 s96, s96, 768
        s_add_u32 s96, s96, {slot}
        s_add_u32 s98, s{sWS}, {DUMP}
        s_addc_u32 s99, s{sWS+1}, 0
        v_lshl_add_u32 v19, v{vLANE}, 2, s96''')
        vm.issue(f'global_store_dword v19, v{vTS}, s[98:99]')
def exec_set(lo,hi): a(f's_mov_b32 exec_lo, {lo}\ns_mov_b32 exec_hi, {hi}')
def exec_all(): a('s_mov_b64 exec, -1')
def spin_check(lbl):
    a(f's_sub_u32 s{sSPIN}, s{sSPIN}, 1\ns_cbranch_scc1 L_bail\ns_branch {lbl}')
def barrier(): a('s_barrier')
def stop(name):
    if STOP==name:
        ts_dump(0); a('s_waitcnt vmcnt(0) lgkmcnt(0)\ns_endpgm')

vS=vW+112
def w1_addr():
    for k in range(3):
        a(f'''v_add_u32 v{vS+3}, {64*k}, v{vLANE}
        v_mul_u32_u24 v{vS+4}, 0xaaab, v{vS+3}
        v_lshrrev_b32 v{vS+4}, 18, v{vS+4}
        v_mul_u32_u24 v{vS+5}, 6, v{vS+4}
        v_sub_u32 v{vS+3}, v{vS+3}, v{vS+5}
        v_mul_u32_u24 v{vS+4}, 2752, v{vS+4}
        v_lshl_add_u32 v{vS+k}, v{vS+3}, 4, v{vS+4}''')
def swz_addr(vd,rowshift,tmp):
    a(f'''v_lshrrev_b32 v{tmp}, 3, v{vLANE}
    v_and_b32 v{vd}, 6, v{tmp}
    v_xor_b32 v{vd}, v{vd}, v{vLANE}
    v_and_b32 v{vd}, 7, v{vd}
    v_lshlrev_b32 v{vd}, 4, v{vd}
    v_lshl_add_u32 v{vd}, v{tmp}, {rowshift}, v{vd}''')
def w2_tiles(ks):
    if ks==10: return (16*8, 172+16*8)
    jj,k=divmod(ks,5); ta,tb=[(0,1),(3,4),(6,7),(9,10),(2,5)][k]
    return (172*jj+16*ta,172*jj+16*tb)
def stage_issue(items,region,tag):
    base,stride=region
    if any(k=='w1' for k,_ in items): w1_addr()
    if any(k=='w2' for k,_ in items): swz_addr(vS+3,10,vS+4)
    a(f's_mul_i32 s{sT}, s{sW}, {stride}\ns_add_u32 m0, s{sT}, {base}')
    first=True
    for kind,ks in items:
        if kind=='w1':
            a(f's_add_u32 s{sT+1}, s{sW1B}, {ks*88064}')
            for k in range(3):
                if not first: a('s_addk_i32 m0, 1024')
                first=False
                vm.issue(f'buffer_load_dwordx4 v{vS+k}, {S(rW1,4)}, s{sT+1} offen lds',tag)
        else:
            fa,fb=w2_tiles(ks)
            for k in range(4):
                f0=(fa if k<2 else fb)+8*(k&1)
                if not first: a('s_addk_i32 m0, 1024')
                first=False
                a(f's_add_u32 s{sT+1}, s{sW2B}, {f0*1024}')
                vm.issue(f'buffer_load_dwordx4 v{vS+3}, {S(rW2,4)}, s{sT+1} offen lds',tag)
def stage_consume(items,region,tag):
    base,stride=region
    a(f's_mul_i32 s{sT}, s{sW}, {stride}\ns_add_u32 s{sT}, s{sT}, {base}')
    if any(k=='w1' for k,_ in items):
        a(f'''v_lshrrev_b32 v{vS}, 2, v{vLANE}
        v_mul_u32_u24 v{vS}, 96, v{vS}
        v_and_b32 v{vS+1}, 3, v{vLANE}
        v_lshl_add_u32 v{vS}, v{vS+1}, 3, v{vS}
        v_add_u32 v{vS}, s{sT}, v{vS}''')
    if any(k=='w2' for k,_ in items):
        a(f's_sub_u32 s{sT}, s{sT}, {XT}')
        for dt in range(4): a(f'v_add_u32 v{vS+1+dt}, s{sT}, v{vXT+dt}')
    vm.wait(tag)
    off=0
    for kind,ks in items:
        if kind=='w1':
            for t in range(3):
                for hh in range(2): lg.issue(f'ds_read_b64_tr_b16 {W1R(t,ks,2,2*hh)}, v{vS} offset:{off+hh*1536+t*32}')
            off+=3072
        else:
            for dt in range(4):
                for hh in range(2): lg.issue(f'ds_read_b64_tr_b16 {W2R(ks,dt,2,2*hh)}, v{vS+1+dt} offset:{off+hh*2048}')
            off+=4096
    lg.drain()
R1=[('w1',k) for k in range(0,6)]; R2=[('w1',k) for k in range(6,12)]
R3=[('w1',k) for k in range(12,16)]+[('w2',k) for k in range(0,3)]
R4=[('w2',k) for k in range(3,7)]; R5=[('w2',k) for k in range(7,11)]
def w1_finish():
    l=a.label('w3skip')
    a(f's_cmp_lg_u32 s{sW}, 3\ns_cbranch_scc1 {l}')
    exec_set('0xf000f000','0xf000f000'); a(f'v_mov_b32 v{vW}, 0x3f803f80')
    for ks in range(16):
        for o in range(4):
            r=W1R(1,ks,1,o); a((f'v_accvgpr_write_b32 {r}, v{vW}') if r[0]=='a' else f'v_mov_b32 {r}, v{vW}')
    exec_all(); a(f'{l}:')
    for k in range(4): a(f'v_mov_b32 v{vW+k}, 0x3b003b00')
    for ks in range(16):
        for t in range(3): a(f'{MF} {V(vCS+4*t,4)}, {W1R(t,ks)}, {V(vW,4)}, '+('0' if ks==0 else V(vCS+4*t,4)))

def pipeline(mfs, loadfn, ctr, slots, maxout, ahead, per=2, hooks=None, gates=None, release=None):
    hooks=hooks or {}; gates=gates or {}
    first={};last={}
    for i,(f,us) in enumerate(mfs):
        for u in us: first.setdefault(u,i); last[u]=i
    order=sorted(first,key=lambda u:first[u]); nxt=0; free=list(slots); reg={}
    def try_issue(i,budget):
        nonlocal nxt
        while nxt<len(order) and budget>0:
            u=order[nxt]
            must=first[u]<=i
            if not must:
                if first[u]-i>ahead or not free or gates.get(u,-1)>i: break
                if ctr.pending()+len(loadfn(u,0))>maxout: break
            assert free, ('no slot',i,u)
            reg[u]=free.pop(0)
            for t in loadfn(u,reg[u]): ctr.issue(t,('f',u)); budget-=1
            nxt+=1
    for i,(f,us) in enumerate(mfs):
        if i in hooks: hooks[i]()
        try_issue(i, 99 if i==0 else per)
        while nxt<len(order) and first[order[nxt]]<=i: try_issue(i,1)
        for u in us: ctr.wait(('f',u))
        a(f(reg))
        for u in set(us):
            if last[u]==i:
                if release and nxt>=len(order): release(reg[u])
                free.append(reg[u])
    if len(mfs) in hooks: hooks[len(mfs)]()

def cmul(d,x,y):
    a(f'v_pk_mul_f32 {V(d,2)}, {V(x,2)}, {V(y,2)} op_sel:[0,0] op_sel_hi:[0,1]')
    return f'v_pk_fma_f32 {V(d,2)}, {V(x,2)}, {V(y,2)}, {V(d,2)} op_sel:[1,1,0] op_sel_hi:[1,0,1] neg_lo:[0,1,0]'
def cmuls(L):
    for t in [cmul(*x) for x in L]: a(t)
def p0():
    a(f'''s_cmp_ge_u32 s2, 256
    s_cbranch_scc1 L_end
    s_load_dwordx16 s[4:19], s[0:1], 0
    s_load_dwordx8 s[20:27], s[0:1], 64
    s_load_dwordx2 s[28:29], s[0:1], 96
    v_lshrrev_b32 v{vW}, 6, v0
    v_and_b32 v{vLANE}, 63, v0
    v_readfirstlane_b32 s{sW}, v{vW}
    s_getreg_b32 s{sXCC}, hwreg(HW_REG_XCC_ID, 0, 4)
    s_and_b32 s{sT}, s2, 7
    s_lshr_b32 s{sT+1}, s2, 3
    s_lshl_b32 s{sCP}, s{sT}, 5
    s_add_u32 s{sCP}, s{sCP}, s{sT+1}
    s_lshr_b32 s{sRB}, s{sCP}, 3
    s_and_b32 s{sJ}, s{sCP}, 7
    s_lshl_b32 s{sOB}, s{sT}, 5
    s_and_b32 s{sT+2}, s{sRB}, 1
    s_lshl_b32 s{sT+2}, s{sT+2}, 4
    s_add_u32 s{sOB}, s{sOB}, s{sT+2}
    s_bfe_u32 s{sT+2}, s{sRB}, 0x10001
    s_add_u32 s{sOB}, s{sOB}, s{sT+2}
    s_and_b32 s{sKH}, s{sW}, 1
    s_lshr_b32 s{sCH}, s{sW}, 1
    s_mov_b32 s{sLAY}, 0
    s_mov_b32 s{sSPIN}, 0x40000
    s_mov_b32 s{sA2L}, {A2}
    s_mov_b32 s{sX1L}, {X1}
    s_mov_b32 s{sSTL}, {ST}
    s_mul_i32 s{sW1B}, s{sJ}, 344
    s_mul_i32 s{sT+2}, s{sW}, 96
    s_add_u32 s{sW1B}, s{sW1B}, s{sT+2}
    s_mul_i32 s{sW2B}, s{sW}, {344*1024}
    s_lshl_b32 s{sT+2}, s{sJ}, 7
    s_add_u32 s{sW2B}, s{sW2B}, s{sT+2}''')
    if TS: a(f'v_mov_b32 v{vTS}, 0')
    vM=vW
    vL16=vW+4; vST=vW+5; vP=vW+6; vXB=vW+7; vXD=vW+8; vT0=vW+9
    for k in range(4): a(f'v_mov_b32 v{vM+k}, -1')
    a(f'''v_lshlrev_b32 v{vL16}, 4, v{vLANE}
    v_and_b32 v{vST}, 1, v{vLANE}
    v_lshlrev_b32 v{vST}, 5, v{vST}
    v_lshrrev_b32 v{vT0}, 5, v0
    v_lshl_add_u32 v{vST}, v{vT0}, 2, v{vST}
    v_lshlrev_b32 v{vP}, 1, v0
    v_lshlrev_b32 v{vXB}, 5, v0
    v_lshrrev_b32 v{vT0}, 4, v{vLANE}
    v_and_b32 v{vXD}, 15, v{vLANE}
    v_lshlrev_b32 v{vXD}, 4, v{vXD}
    v_lshl_add_u32 v{vXD}, v{vT0}, 10, v{vXD}
    s_lshl_b32 s{sT+3}, s2, 13
    s_lshl_b32 s{sT+4}, s{sW}, 11
    s_add_u32 s{sT+4}, s{sT+4}, s{sT+3}
    s_lshl_b32 s{sT+5}, s2, 6
    s_add_u32 s{sT+5}, s{sT+5}, {ST}
    s_lshl_b32 s{sT+6}, s{sCP}, 9
    v_add_u32 v{vP}, s{sT+6}, v{vP}
    s_lshl_b32 s{sT+6}, s{sCP}, 1
    s_add_u32 s{sT+6}, s{sT+6}, s{sCH}
    s_lshl_b32 s{sT+6}, s{sT+6}, 1
    v_mov_b32 v{vT0+1}, s{sT+6}
    s_lshl_b32 s{sT+7}, s{sCP}, 2
    s_waitcnt lgkmcnt(0)''')
    ts(0)
    for r,p,n in ((rWS,sWS,WSZ),(rX,sX,2*MB),(rW1,sW1,512*2752),(rW2,sW2,1376*1024),(rOUT,sOUT,2*MB)):
        a(f's_mov_b32 s{r}, s{p}\ns_mov_b32 s{r+1}, s{p+1}\ns_mov_b32 s{r+2}, {n}\ns_mov_b32 s{r+3}, 0x20000')
    vm.issue(f'buffer_store_dwordx4 {V(vM,4)}, v{vL16}, {S(rWS,4)}, s{sT+4} offen sc1')
    vm.issue(f'buffer_store_dwordx4 {V(vM,4)}, v{vL16}, {S(rWS,4)}, s{sT+4} offen offset:1024 sc1')
    exec_set('0xc0000000','0xc0000000')
    vm.issue(f'buffer_store_dword v{vM}, v{vST}, {S(rWS,4)}, s{sT+5} offen sc1')
    exec_set(1,0)
    a(f'''s_lshl_b32 s{sT+8}, s{sRB}, 7
    s_lshl_b32 s{sT+9}, s{sJ}, 4
    s_add_u32 s{sT+8}, s{sT+8}, s{sT+9}
    s_lshl_b32 s{sT+9}, s{sW}, 2
    s_add_u32 s{sT+8}, s{sT+8}, s{sT+9}
    s_add_u32 s{sT+9}, s{sT+8}, {XID}
    s_add_u32 s{sT+8}, s{sT+8}, {HF}
    v_mov_b32 v{vT0+2}, s{sXCC}''')
    vm.issue(f'buffer_store_dword v{vT0+2}, v{vL16}, {S(rWS,4)}, s{sT+9} offen sc1')
    vm.issue(f'buffer_store_dword v{vL16}, v{vL16}, {S(rWS,4)}, s{sT+8} offen sc1','fill0')
    exec_all()
    vPar=vW+12
    vXR=vW+20
    a(f's_load_dword s{sD0}, {S(sDS,2)}, s{sT+7}')
    a(f's_lshl_b32 s{sT+10}, s{sW}, 8\ns_add_u32 s{sT+10}, s{sT+10}, s{sT+3}\ns_add_u32 s{sT+11}, s{sT+10}, 4096')
    a(f's_lshl_b32 m0, s{sW}, 11')
    vm.issue(f'buffer_load_dwordx4 v{vXD}, {S(rX,4)}, s{sT+10} offen lds')
    a('s_addk_i32 m0, 1024')
    vm.issue(f'buffer_load_dwordx4 v{vXD}, {S(rX,4)}, s{sT+11} offen lds','xs')
    vm.issue(f'buffer_load_dwordx4 {V(vXR,4)}, v{vXB}, {S(rX,4)}, s{sT+3} offen')
    vm.issue(f'buffer_load_dwordx4 {V(vXR+4,4)}, v{vXB}, {S(rX,4)}, s{sT+3} offen offset:16','xr')
    vm.issue(f'global_load_ushort v{vPar}, v{vT0+1}, {S(sLD,2)}')
    for k,p in enumerate((sLA,sAI,sCR,sCI)): vm.issue(f'global_load_ushort v{vPar+1+k}, v{vP}, {S(p,2)}','par')
    a(f'''s_lshl_b32 s{sT+12}, s{sCP}, 13
    s_lshl_b32 s{sT+13}, s{sW}, 11
    s_add_u32 s{sT+12}, s{sT+12}, s{sT+13}
    s_add_u32 s{sT+12}, s{sT+12}, {X1}''')
    vm.issue(f'buffer_store_dwordx4 {V(vM,4)}, v{vL16}, {S(rWS,4)}, s{sT+12} offen sc1')
    vm.issue(f'buffer_store_dwordx4 {V(vM,4)}, v{vL16}, {S(rWS,4)}, s{sT+12} offen offset:1024 sc1','fill1')
    a(f'''v_lshrrev_b32 v{vT0+2}, 2, v{vLANE}
    v_lshlrev_b32 v{vT0+2}, 7, v{vT0+2}
    v_and_b32 v{vXT}, 3, v{vLANE}
    v_lshl_add_u32 v{vT0+2}, v{vXT}, 3, v{vT0+2}
    v_add_u32 v{vT0+2}, {XT}, v{vT0+2}
    v_bfe_u32 v{vT0}, v{vLANE}, 3, 2''')
    for lt in range(4): a(f'v_xor_b32 v{vXT+lt}, {lt}, v{vT0}\nv_lshl_add_u32 v{vXT+lt}, v{vXT+lt}, 5, v{vT0+2}')
    stage_issue(R1,RG12,'r1')
    if opt['warm']: a('@WARM@')
    vm.wait('fill0'); barrier()
    l=a.label('noarr')
    a(f's_cmp_lg_u32 s{sW}, 3\ns_cbranch_scc1 {l}')
    a(f'''s_and_b32 s{sT+14}, s2, 3
    s_lshl_b32 s{sT+14}, s{sT+14}, 6
    v_mov_b32 v{vT0}, s{sT+14}
    v_mov_b32 v{vT0+2}, 1''')
    exec_set(1,0)
    a(f'global_atomic_add v{vT0}, v{vT0+2}, {S(sDBG,2)} sc1')
    exec_all(); a(f'{l}:')
    return dict(vM=vM,vL16=vL16,vST=vST,vPar=vPar,vXR=vXR,vT0=vT0)

LOG2E=math.log2(math.e)
def rbf(v): a(f'v_cvt_pk_bf16_f32 v{v}, v{v}, v{v}\nv_lshlrev_b32 v{v}, 16, v{v}')
def p0b(c):
    vM,vL16,vST,vPar,vXR,vT0=c['vM'],c['vL16'],c['vST'],c['vPar'],c['vXR'],c['vT0']
    vIX=vW+80
    t0=vW+30
    a(f'''v_and_b32 v{t0}, 127, v0
    v_lshlrev_b32 v{t0}, 4, v{t0}
    v_sub_u32 v{t0}, 2047, v{t0}
    v_cvt_f32_i32 v{t0+1}, v{t0}
    s_mul_i32 s{sT+14}, s{sCH}, {KTCH}
    s_add_u32 s{sT+14}, s{sT+14}, {KT}
    s_mov_b32 s{sT+15}, 0x42804280''')
    for k in range(0,18,2):
        a(f'''v_subrev_f32 v{t0+2}, {fhex(k)}, v{t0+1}
        v_subrev_f32 v{t0+3}, {fhex(k+1)}, v{t0+1}
        v_cvt_pk_bf16_f32 v{t0+2}, v{t0+2}, v{t0+3}
        v_pk_sub_i16 v{t0+2}, v{t0+2}, s{sT+15}''')
        for h in range(2):
            if k+h>16: break
            a(f'''v_subrev_u32 v{t0+4}, {k+h}, v{t0}
            v_min_i32 v{t0+4}, 127, v{t0+4}
            v_bfe_i32 v{t0+5}, v{t0+2}, {16*h}, 16
            v_max_i32 v{t0+4}, v{t0+4}, v{t0+5}
            v_lshl_add_u32 v{vIX+k+h}, v{t0+4}, 1, s{sT+14}''')
    a(f'''s_add_u32 s{sT+15}, s{sT+14}, 1400
    v_mov_b32 v{t0+4}, s{sT+15}
    v_cmp_eq_u32 vcc, 15, v{t0}
    v_cndmask_b32 v{vIX+16}, v{vIX+16}, v{t0+4}, vcc
    v_mov_b32 v{t0+5}, 0''')
    lg.issue(f'ds_write_b32 v{t0+4}, v{t0+5}')
    a(f'''v_lshlrev_b32 v{t0+4}, 2, v0
    v_and_b32 v{t0+4}, 511, v{t0+4}
    s_mul_i32 s{sT+15}, s{sCH}, {UCH}
    v_add_u32 v{t0+4}, s{sT+15}, v{t0+4}''')
    lg.issue(f'ds_write_b32 v{t0+4}, v{t0+5} offset:{U}')
    a(f'''v_bfe_u32 v{t0}, v{vLANE}, 2, 2
    v_lshlrev_b32 v{t0}, 8, v{t0}
    v_lshrrev_b32 v{t0+1}, 4, v{vLANE}
    v_lshl_add_u32 v{t0}, v{t0+1}, 5, v{t0}
    v_and_b32 v{t0+1}, 3, v{vLANE}
    v_lshl_add_u32 v{t0}, v{t0+1}, 3, v{t0}
    s_lshl_b32 s{sT+15}, s{sW}, 11
    v_add_u32 v{t0}, s{sT+15}, v{t0}
    v_mov_b32 v{t0+1}, 0x3f803f80''')
    vm.wait('xs'); ts(1)
    xt=vW+36
    for cb in range(2):
        for hh in range(2): lg.issue(f'ds_read_b64_tr_b16 {V(xt+4*cb+2*hh,2)}, v{t0} offset:{cb*128+hh*1024}','xt')
    vm.wait('xr')
    sS,sQ=t0+2,t0+3
    for k in range(8):
        a(f'v_dot2_f32_bf16 v{sS}, v{vXR+k}, v{t0+1}, '+('0' if k==0 else f'v{sS}'))
        a(f'v_dot2_f32_bf16 v{sQ}, v{vXR+k}, v{vXR+k}, '+('0' if k==0 else f'v{sQ}'))
    lg.wait('xt')
    for k in range(8): a(f'v_min_u32 v{xt+k}, -2, v{xt+k}')
    vm.wait('fill1')
    vm.issue(f'buffer_store_dwordx4 {V(xt,4)}, v{vL16}, {S(rWS,4)}, s{sT+4} offen sc1')
    vm.issue(f'buffer_store_dwordx4 {V(xt+4,4)}, v{vL16}, {S(rWS,4)}, s{sT+4} offen offset:1024 sc1')
    for sh in (8,4,2,1):
        for r in (sS,sQ): a(f'v_add_f32_dpp v{r}, v{r}, v{r} row_ror:{sh} row_mask:0xf bank_mask:0xf')
    for r in (sS,sQ): a(f'v_add_f32_dpp v{r}, v{r}, v{r} row_bcast:15 row_mask:0xa bank_mask:0xf')
    ln_final(sS,sQ,t0+4)
    a(f'''v_and_b32 v{t0+4}, 1, v{vLANE}
    v_cmp_eq_u32 vcc, 1, v{t0+4}
    v_cndmask_b32 v{sS}, v{sQ}, v{sS}, vcc
    v_min_u32 v{sS}, -2, v{sS}''')
    exec_set('0xc0000000','0xc0000000')
    vm.issue(f'buffer_store_dword v{sS}, v{vST}, {S(rWS,4)}, s{sT+5} offen sc1')
    exec_all()
    ts(2)
    a(f's_add_u32 s{sT+12}, s{sT+12}, {2*MB}')
    vm.issue(f'buffer_store_dwordx4 {V(vM,4)}, v{vL16}, {S(rWS,4)}, s{sT+12} offen sc1')
    vm.issue(f'buffer_store_dwordx4 {V(vM,4)}, v{vL16}, {S(rWS,4)}, s{sT+12} offen offset:1024 sc1')
    a2_store_addr(t0,sT+12,t0+1)
    vm.issue(f'buffer_store_dwordx4 {V(vM,4)}, v{t0}, {S(rWS,4)}, s{sT+12} offen sc1')
    vm.issue(f'buffer_store_dwordx4 {V(vM,4)}, v{t0}, {S(rWS,4)}, s{sT+12} offen offset:512 sc1')
    ps_addr(sT+12); st1_addr(sT+13)
    exec_set(0xff,0)
    vm.issue(f'buffer_store_dwordx4 {V(vM,4)}, v{vL16}, {S(rWS,4)}, s{sT+12} offen sc1')
    exec_set(0xf,0)
    vm.issue(f'buffer_store_dwordx4 {V(vM,4)}, v{vL16}, {S(rWS,4)}, s{sT+13} offen sc1')
    exec_all()
    dt,la,ai,cr,ci=[vPar+k for k in range(5)]
    for k in range(5): a(f'v_lshlrev_b32 v{vPar+k}, 16, v{vPar+k}')
    a(f'''v_mul_f32 v{dt}, {fhex(LOG2E)}, v{dt}
    v_mul_f32 v{la}, {fhex(LOG2E)}, v{la}
    v_exp_f32 v{dt}, v{dt}
    v_exp_f32 v{la}, v{la}''')
    rbf(dt); rbf(la)
    E=vW+20
    e1,e8,e256,c2=E,E+2,E+4,E+6
    a(f'''v_mul_f32 v{la}, v{la}, v{dt}
    v_mul_f32 v{ai}, v{ai}, v{dt}
    v_mul_f32 v{cr}, v{cr}, v{dt}
    v_mul_f32 v{ci}, v{ci}, v{dt}
    v_mul_f32 v{la}, {fhex(-LOG2E)}, v{la}
    v_mul_f32 v{ai}, 0.15915494, v{ai}
    v_add_f32 v{c2}, v{cr}, v{cr}
    v_mul_f32 v{c2+1}, -2.0, v{ci}''')
    tm=E+8
    for k,(d,p) in enumerate(((e1,1.0),(e8,8.0),(e256,256.0))):
        a(f'v_mul_f32 v{tm+2*k}, {fhex(p)}, v{la}\nv_mul_f32 v{tm+2*k+1}, {fhex(p)}, v{ai}')
    for k in range(3): a(f'v_exp_f32 v{tm+2*k}, v{tm+2*k}\nv_fract_f32 v{tm+2*k+1}, v{tm+2*k+1}')
    for k,d in enumerate((e1,e8,e256)): a(f'v_cos_f32 v{d}, v{tm+2*k+1}\nv_sin_f32 v{d+1}, v{tm+2*k+1}')
    for k,d in enumerate((e1,e8,e256)): a(f'v_pk_mul_f32 {V(d,2)}, {V(d,2)}, {V(tm+2*k,2)} op_sel_hi:[1,0]')
    vTA=vPar
    a(f'''v_and_b32 v{vTA}, 127, v0
    v_lshlrev_b32 v{vTA}, 2, v{vTA}
    s_mul_i32 s{sT+15}, s{sCH}, {TCH}
    s_add_u32 s{sT+15}, s{sT+15}, {TAB}
    v_add_u32 v{vTA}, s{sT+15}, v{vTA}
    v_xor_b32 v{e8+1}, 0x80000000, v{e8+1}''')
    pk=[vPar+1,vPar+2,vPar+3,vPar+4]; pi=[0]
    def put(row,r):
        p=pk[pi[0]%4]; pi[0]+=1
        a(f'v_cvt_pk_bf16_f32 v{p}, v{r}, v{r+1}')
        lg.issue(f'ds_write_b32 v{vTA}, v{p} offset:{row*TROW}')
    e2,e3,e4,e5,e6,e7=[E+8+2*k for k in range(6)]
    e16,e32,b1,b2,b3=[E+20+2*k for k in range(5)]
    e512,e768,e1024,ta,tb,tc,td=[E+30+2*k for k in range(7)]
    a(f'v_mov_b32 v{pk[3]}, 0x3f80'); lg.issue(f'ds_write_b32 v{vTA}, v{pk[3]}')
    cmuls([(e2,e1,e1),(e16,e8,e8),(b1,c2,e8),(e512,e256,e256)])
    put(1,e1); put(8,e256); put(21,c2)
    cmuls([(e3,e2,e1),(e4,e2,e2),(e32,e16,e16),(b2,c2,e16),(b3,b1,e16),(e768,e512,e256),(e1024,e512,e512),(ta,e256,e2)])
    put(2,e2); put(22,b1); put(12,e512); put(9,ta)
    cmuls([(e5,e4,e1),(e6,e4,e2),(e7,e4,e3),(ta,e256,e4),(tb,e512,e4),(tc,e768,e4),(td,e1024,e256)])
    put(3,e3); put(4,e4); put(23,b2); put(24,b3); put(14,e768); put(16,e1024)
    put(10,ta); put(13,tb); put(15,tc); put(17,td)
    cmuls([(ta,e256,e6),(tb,e1024,e512),(tc,e1024,e768),(td,e1024,e1024)])
    put(5,e5); put(6,e6); put(7,e7)
    put(11,ta); put(18,tb); put(19,tc); put(20,td)
    cur=[c2,b1,b2,b3]; alt=[e2,e3,e4,e5]
    for m in range(1,8):
        cmuls([(alt[k],cur[k],e32) for k in range(4)])
        cur,alt=alt,cur
        for k in range(4): put(21+4*m+k,cur[k])
    vA=E; vB=E+1
    a(f'''v_and_b32 v{vA}, 15, v{vLANE}
    v_mul_u32_u24 v{vA}, {TROW}, v{vA}
    v_and_b32 v{vB}, 48, v{vLANE}
    v_add3_u32 v{vA}, v{vA}, v{vB}, s{sT+15}
    s_mul_i32 s{sT+15}, s{sKH}, {16*TROW}
    s_add_u32 s{sT+15}, s{sT+15}, {21*TROW}
    v_add_u32 v{vB}, s{sT+15}, v{vA}''')
    lg.drain(); ts(3); barrier()
    acc=E+4
    mfs=[]
    for ks in range(8):
        for t in range(2):
            mfs.append((lambda r,ks=ks,t=t: f'{MF} {V(acc+4*t,4)}, {V(r[("A",t,ks)],4)}, {V(r[("B",0,ks)],4)}, '+('0' if ks==0 else V(acc+4*t,4)), [('A',t,ks),('B',0,ks)]))
    def ld(u,r):
        k,t,ks=u
        return [f'ds_read_b128 {V(r,4)}, v{vA if k=="A" else vB} offset:{ks*64+(t*16*TROW if k=="A" else 0)}']
    pipeline(mfs,ld,lg,[E+12+4*k for k in range(11)],15,8)
    t1=E+12
    a(f'''v_and_b32 v{t1}, 15, v{vLANE}
    s_lshl_b32 s{sT+15}, s{sKH}, 4
    v_add_u32 v{t1}, s{sT+15}, v{t1}
    v_lshrrev_b32 v{t1+1}, 4, v{vLANE}
    v_lshlrev_b32 v{t1+2}, 4, v{t1}
    v_lshl_add_u32 v{t1+2}, v{t1+1}, 3, v{t1+2}
    v_lshlrev_b32 v{t1+3}, 3, v{t1}
    v_add_u32 v{t1+3}, 512, v{t1+3}
    v_cmp_eq_u32 vcc, 2, v{t1+1}
    v_cndmask_b32 v{t1+2}, v{t1+2}, v{t1+3}, vcc
    v_add_u32 v{t1+4}, 4, v{t1+2}
    v_lshlrev_b32 v{t1+3}, 2, v{t1}
    v_add_u32 v{t1+5}, 768, v{t1+3}
    v_add_u32 v{t1+3}, 896, v{t1+3}
    v_cmp_eq_u32 vcc, 3, v{t1+1}
    v_cndmask_b32 v{t1+2}, v{t1+2}, v{t1+5}, vcc
    v_cndmask_b32 v{t1+4}, v{t1+4}, v{t1+3}, vcc
    v_add_u32 v{t1+2}, s{sT+14}, v{t1+2}
    v_add_u32 v{t1+4}, s{sT+14}, v{t1+4}
    v_lshlrev_b32 v{t1+3}, 1, v{t1}
    v_lshl_add_u32 v{t1+3}, v{t1+1}, 8, v{t1+3}
    v_add_u32 v{t1+3}, s{sT+14}, v{t1+3}
    v_cvt_pk_bf16_f32 v{acc}, v{acc}, v{acc+1}
    v_cvt_pk_bf16_f32 v{acc+2}, v{acc+2}, v{acc+3}
    v_cvt_pk_bf16_f32 v{acc+4}, v{acc+4}, v{acc+5}
    v_cvt_pk_bf16_f32 v{acc+6}, v{acc+6}, v{acc+7}''')
    lg.issue(f'ds_write_b32 v{t1+2}, v{acc}')
    lg.issue(f'ds_write_b32 v{t1+4}, v{acc+2}')
    exec_set(-1,0)
    lg.issue(f'ds_write_b16 v{t1+3}, v{acc+4} offset:1024')
    exec_set(0xffff,0)
    lg.issue(f'ds_write_b16_d16_hi v{t1+3}, v{acc+4} offset:1088')
    lg.issue(f'ds_write_b16 v{t1+3}, v{acc+6} offset:1152')
    lg.issue(f'ds_write_b16_d16_hi v{t1+3}, v{acc+6} offset:1216')
    exec_all()
    lg.drain(); barrier()
    g=E
    for k in range(17): lg.issue(f'ds_read_u16 v{g+k}, v{vIX+k}',('g',k))
    o=E+20
    a(f'''v_and_b32 v{o+16}, 127, v0
    v_lshlrev_b32 v{o+16}, 5, v{o+16}
    s_mul_i32 s{sT+15}, s{sCH}, {KCH}
    v_add_u32 v{o+16}, s{sT+15}, v{o+16}
    v_mov_b32 v{o+18}, 0
    v_mov_b32 v{o+19}, 0
    v_and_b32 v{o+17}, 7, v{vLANE}
    v_lshlrev_b32 v{o+17}, 3, v{o+17}
    s_mul_i32 s{sT+15}, s{sW}, {KCP}
    v_add_u32 v{o+17}, s{sT+15}, v{o+17}''')
    for k in range(16):
        lg.wait(('g',k+1))
        a(f'v_lshl_or_b32 v{o+(k>>1)+8*(k&1)}, v{g+k+1}, 16, v{g+k}')
    for cpy in range(2):
        for h in range(2): lg.issue(f'ds_write_b128 v{o+16}, {V(o+8*cpy+4*h,4)} offset:{KC+cpy*KCP+16*h}')
    lg.issue(f'ds_write_b64 v{o+17}, {V(o+18,2)} offset:{KC+4096}')
    a(f'''s_and_b32 s{sD1}, s{sD0}, 0xffff0000
    s_lshl_b32 s{sD0}, s{sD0}, 16
    s_mov_b32 s{sD0+1}, s{sD0}
    s_mov_b32 s{sD1+1}, s{sD1}''')
    ts(4)
def ln_final(s,q,t):
    a(f'''v_mul_f32 v{s}, {fhex(-1/512)}, v{s}
    v_mul_f32 v{q}, {fhex(1/512)}, v{q}
    v_fma_f32 v{q}, -v{s}, v{s}, v{q}
    v_max_f32 v{q}, 0, v{q}
    v_add_f32 v{q}, {fhex(1e-5)}, v{q}
    v_rsq_f32 v{q}, v{q}
    v_mul_f32 v{s}, v{s}, v{q}''')
def a2_store_addr(vd,sd,tmp):
    a(f'''v_lshrrev_b32 v{tmp}, 5, v{vLANE}
    v_and_b32 v{vd}, 31, v{vLANE}
    v_lshlrev_b32 v{vd}, 4, v{vd}
    v_lshl_add_u32 v{vd}, v{tmp}, 14, v{vd}
    s_lshl_b32 s{sd}, s{sW}, 2
    s_add_u32 s{sd}, s{sd}, s{sOB}
    s_lshl_b32 s{sd}, s{sd}, 3
    s_add_u32 s{sd}, s{sd}, s{sJ}
    s_lshl_b32 s{sd}, s{sd}, 10
    s_add_u32 s{sd}, s{sd}, {A2+2*MB}''')
def ps_addr(sd):
    a(f'''s_lshl_b32 s{sd}, s{sRB}, 2
    s_add_u32 s{sd}, s{sd}, s{sW}
    s_lshl_b32 s{sd}, s{sd}, 3
    s_add_u32 s{sd}, s{sd}, s{sJ}
    s_lshl_b32 s{sd}, s{sd}, 7
    s_add_u32 s{sd}, s{sd}, {PS}''')
def st1_addr(sd):
    a(f'''s_lshl_b32 s{sd}, s{sJ}, 1
    s_add_u32 s{sd}, s{sd}, s{sOB}
    s_lshl_b32 s{sd}, s{sd}, 6
    s_add_u32 s{sd}, s{sd}, {ST+16384}''')
def barrier0_wait():
    t=vW
    l=a.label('b0'); d=a.label('b0done')
    a(f's_cmp_lg_u32 s{sW}, 3\ns_cbranch_scc1 {d}')
    a(f'v_and_b32 v{t}, 3, v{vLANE}\nv_lshlrev_b32 v{t}, 6, v{t}\n{l}:')
    a(f'global_load_dword v{t+1}, v{t}, {S(sDBG,2)} sc1\ns_waitcnt vmcnt(0)\nv_cmp_ne_u32 vcc, 64, v{t+1}\ns_cbranch_vccz {d}')
    spin_check(l)
    a(f'{d}:'); lg.drain(); barrier()
def xid_check():
    t=vW
    a(f'''v_and_b32 v{t}, 31, v{vLANE}
    v_lshlrev_b32 v{t}, 2, v{t}
    s_lshl_b32 s{sT}, s{sRB}, 7
    s_add_u32 s{sT}, s{sT}, {XID}''')
    vm.issue(f'buffer_load_dword v{t+1}, v{t}, {S(rWS,4)}, s{sT} offen sc1','xid')
    vm.wait('xid')
    a(f'''v_cmp_ne_u32 vcc, s{sXCC}, v{t+1}
    s_nop 1
    s_cmp_eq_u64 vcc, 0
    s_cselect_b32 s{sLOC}, {0 if opt['forceglobal'] else 1}, 0''')

class L0:
    def __enter__(self):
        self.l=a.label('l0'); a(f's_cmp_lg_u32 s{sLAY}, 0\ns_cbranch_scc1 {self.l}'); vm.cond=lg.cond=True
    def __exit__(self,*x):
        a(f'{self.l}:'); vm.cond=lg.cond=False
def maxchain(dst,regs):
    regs=list(regs)
    a(f'v_max3_u32 v{dst}, v{regs[0]}, v{regs[1]}, v{regs[2]}'); regs=regs[3:]
    while len(regs)>=2: a(f'v_max3_u32 v{dst}, v{dst}, v{regs[0]}, v{regs[1]}'); regs=regs[2:]
    if regs: a(f'v_max_u32 v{dst}, v{dst}, v{regs[0]}')

def conv():
    acc=vW; vKA=vW+32; vUB=vW+36; vEX=vW+37; vXS=vW+38; vBR=vW+39; F=vW+40
    xx=F; st=F+8; xf=F+24; uf=F+40; pk=F+56; vGA=F+64; vGS=F+65; t=F+66
    a(f'''v_lshlrev_b32 v{vGA}, 13, v0
    v_lshlrev_b32 v{vGS}, 6, v0
    s_lshl_b32 s{sT+2}, s{sCP}, 5
    s_add_u32 s{sT+2}, s{sT+2}, s{sA2L}''')
    def gather(iss):
        for k in range(2): iss(f'buffer_load_dwordx4 {V(xx+4*k,4)}, v{vGA}, {S(rWS,4)}, s{sT+2} offen offset:{16*k} sc1')
        for k in range(4): iss(f'buffer_load_dwordx4 {V(st+4*k,4)}, v{vGS}, {S(rWS,4)}, s{sSTL} offen offset:{16*k} sc1')
    gather(lambda s: vm.issue(s,'ga'))
    with L0():
        stage_consume(R2,RG12,'r2'); barrier(); stage_issue(R3,RG3,'r3')
    a(f'''v_and_b32 v{t}, 15, v{vLANE}
    v_lshrrev_b32 v{t+1}, 4, v{vLANE}
    v_and_b32 v{t+2}, 1, v{vLANE}
    v_xor_b32 v{t+2}, 1, v{t+2}
    v_mul_u32_u24 v{t+3}, {KCP-2}, v{t+2}
    v_lshl_add_u32 v{t+4}, v{t+1}, 3, v{t}
    v_lshlrev_b32 v{t+4}, 1, v{t+4}
    v_sub_u32 v{t+3}, v{t+3}, v{t+4}
    s_mul_i32 s{sT+3}, s{sCH}, {KCH}
    s_lshl_b32 s{sT+4}, s{sKH}, 8
    s_sub_u32 s{sT+3}, s{sT+3}, s{sT+4}
    s_add_u32 s{sT+3}, s{sT+3}, {KC+4110-192-512}
    v_add_u32 v{vKA}, s{sT+3}, v{t+3}''')
    for m in range(1,4): a(f'v_subrev_u32 v{vKA+m}, {1024*m}, v{vKA}')
    a(f'''v_lshlrev_b32 v{vUB}, 5, v{t}
    v_lshlrev_b32 v{t+3}, 4, v{t+1}
    v_sub_u32 v{vUB}, v{vUB}, v{t+3}
    s_mul_i32 s{sT+3}, s{sCH}, {UCH}
    s_sub_u32 s{sT+3}, s{sT+3}, s{sT+4}
    s_add_u32 s{sT+3}, s{sT+3}, {U+528-192}
    v_add_u32 v{vUB}, s{sT+3}, v{vUB}
    v_lshl_add_u32 v{vBR}, v{t}, 6, v{t+3}
    s_lshl_b32 s{sT+3}, s{sCH}, 13
    s_add_u32 s{sT+3}, s{sT+3}, {BASE}
    v_add_u32 v{vBR}, s{sT+3}, v{vBR}
    s_lshl_b32 s{sT+3}, s{sCH}, 13
    s_add_u32 s{sT+3}, s{sT+3}, {EXCH}
    v_lshl_add_u32 v{vEX}, v{vLANE}, 4, s{sT+3}
    v_and_b32 v{t+2}, 1, v{t+1}
    v_mul_u32_u24 v{t+2}, 3, v{t+2}
    v_xor_b32 v{t+2}, s{sKH}, v{t+2}
    v_lshlrev_b32 v{t+2}, 9, v{t+2}
    v_lshrrev_b32 v{t+3}, 1, v{t+1}
    v_lshl_add_u32 v{t+2}, v{t+3}, 8, v{t+2}
    v_lshl_add_u32 v{vXS}, v{t}, 4, v{t+2}
    v_lshlrev_b32 v{t}, 4, v0
    v_lshlrev_b32 v{t+1}, 5, v0
    s_lshl_b32 s{sT+5}, s{sCP}, 1
    s_add_u32 s{sT+5}, s{sT+5}, s{sCH}
    s_lshl_b32 s{sT+5}, s{sT+5}, 12
    s_add_u32 s{sT+5}, s{sT+5}, s{sX1L}''')
    vm.wait('ga')
    lc=a.label('gchk'); lo=a.label('gok')
    a(f'{lc}:'); maxchain(t+2,range(xx,xx+24))
    a(f'v_cmp_eq_u32 vcc, -1, v{t+2}\ns_cbranch_vccz {lo}')
    gather(a); a('s_waitcnt vmcnt(0)'); spin_check(lc)
    a(f'{lo}:'); ts(6)
    for ch in range(2):
        for k in range(4):
            a(f'v_lshlrev_b32 v{xf+8*ch+2*k}, 16, v{xx+4*ch+k}\nv_and_b32 v{xf+8*ch+2*k+1}, 0xffff0000, v{xx+4*ch+k}')
        for k in range(4): a(f'v_pk_fma_f32 {V(uf+8*ch+2*k,2)}, {V(xf+8*ch+2*k,2)}, {V(st+2*k,2)}, {V(st+8+2*k,2)}')
        for k in range(4): a(f'v_cvt_pk_bf16_f32 v{pk+4*ch+k}, v{uf+8*ch+2*k}, v{uf+8*ch+2*k+1}')
        lg.issue(f'ds_write_b128 v{t}, {V(pk+4*ch,4)} offset:{U+512+ch*UCH}')
    for ch in range(2):
        for k in range(4): a(f'v_pk_fma_f32 {V(xf+8*ch+2*k,2)}, {V(uf+8*ch+2*k,2)}, {S((sD0,sD1)[ch],2)}, {V(xf+8*ch+2*k,2)}')
        for h in range(2): lg.issue(f'ds_write_b128 v{t+1}, {V(xf+8*ch+4*h,4)} offset:{BASE+8192*ch+16*h}')
    KEEP=[(0,3,4,7),(1,2,5,6)]
    for G in range(8):
        a(f'v_mov_b64 {V(acc+4*G,2)}, 0\nv_mov_b64 {V(acc+4*G+2,2)}, 0')
    lg.drain(); barrier(); ts(7)
    l1=a.label('kh1'); l2=a.label('khj')
    a(f's_cmp_lg_u32 s{sKH}, 0\ns_cbranch_scc1 {l1}')
    for G in KEEP[0]: a(f'ds_read_b128 {V(acc+4*G,4)}, v{vBR} offset:{G*1024}')
    a(f's_branch {l2}\n{l1}:')
    for G in KEEP[1]: lg.issue(f'ds_read_b128 {V(acc+4*G,4)}, v{vBR} offset:{G*1024}')
    a(f'{l2}:')
    def ld(u,r):
        k,s,x=u
        if k=='B': return [f'ds_read_b128 {V(r,4)}, v{vUB} offset:{192-64*s+512*x}']
        o=(192-64*s+512*(1-(x&1)))//4
        return [f'ds_read2_b32 {V(r,2)}, v{vKA+(x>>1)} offset0:{o} offset1:{o+1}', f'ds_read2_b32 {V(r+2,2)}, v{vKA+(x>>1)} offset0:{o+2} offset1:{o+3}']
    def mf(s,q,b): return (lambda r: f'{MF} {V(acc+4*(q+b),4)}, {V(r[("A",s,q)],4)}, {V(r[("B",s,b)],4)}, {V(acc+4*(q+b),4)}', [('A',s,q),('B',s,b)])
    mfs=[]
    for s in range(3):
        for q in range(7,-1,-1):
            for b in range(8-q): mfs.append(mf(s,q,b))
    fin={}
    mfs.append((lambda r: fin.update(r) or 's_nop 0', [('A',3,q) for q in range(8)]+[('B',3,q) for q in range(8)]))
    pipeline(mfs,ld,lg,[F+4*k for k in range(21)],15,24)
    used={fin[(k,3,q)] for k in 'AB' for q in range(8)}
    fr=[F+4*k for k in range(21) if F+4*k not in used]
    l1=a.label('tkh1'); l2=a.label('tkhj')
    a(f's_cmp_lg_u32 s{sKH}, 0\ns_cbranch_scc1 {l1}')
    for kh in range(2):
        keep=KEEP[kh]; send=KEEP[1-kh]
        def seq(gs): return [(q,G-q) for q in range(8) for G in gs if q<=G]
        for q,b in seq(send): a(mf(3,q,b)[0](fin))
        ks=seq(keep)
        for n,(q,b) in enumerate(ks):
            a(mf(3,q,b)[0](fin))
            if 3<=n<7: a(f'ds_write_b128 v{vEX}, {V(acc+4*send[n-3],4)} offset:{kh*4096+(n-3)*1024}')
            if n==11: a('s_waitcnt lgkmcnt(0)\ns_barrier')
            if 12<=n<16: a(f'ds_read_b128 {V(fr[n-12],4)}, v{vEX} offset:{(1-kh)*4096+(n-12)*1024}')
        o=acc+4*send[0]; o2=acc+4*send[2]
        for p in range(2):
            a(f's_waitcnt lgkmcnt({2-2*p})')
            d=(o,o2)[p]
            for e in range(2):
                G=keep[2*p+e]; r=fr[2*p+e]
                a(f'v_pk_add_f32 {V(r,2)}, {V(r,2)}, {V(acc+4*G,2)}\nv_pk_add_f32 {V(r+2,2)}, {V(r+2,2)}, {V(acc+4*G+2,2)}')
                a(f'v_cvt_pk_bf16_f32 v{d+2*e}, v{r}, v{r+1}\nv_cvt_pk_bf16_f32 v{d+2*e+1}, v{r+2}, v{r+3}')
            for k in range(4): a(f'v_min_u32 v{d+k}, -2, v{d+k}')
            a(f'v_permlane16_swap_b32 v{d}, v{d+2}\nv_permlane16_swap_b32 v{d+1}, v{d+3}')
            txt=f'buffer_store_dwordx4 {V(d,4)}, v{vXS}, {S(rWS,4)}, s{sT+5} offen offset:{2048*p} sc1'
            if kh==0: a(txt)
            else: vm.issue(txt,'x1st')
        if kh==0: a(f's_branch {l2}\n{l1}:')
    a(f'{l2}:'); lg.reset(); ts(8)

def g1():
    acc=vW; F=vW+48; vXD=vW+80; vCK=vW+81; tv=vW+84; mx=vW+82
    with L0():
        stage_consume(R3,RG3,'r3'); barrier(); stage_issue(R4,RG45,'r4')
    swz_addr(vXD,12,mx)
    a(f'''s_lshl_b32 s{sT+2}, s{sW}, 15
    s_lshl_b32 s{sT+3}, s{sRB}, 7
    s_add_u32 s{sT+2}, s{sT+2}, s{sT+3}
    s_add_u32 s{sT+2}, s{sT+2}, s{sX1L}
    s_lshl_b32 s{sT+3}, s{sW}, 10
    s_add_u32 s{sT+3}, s{sT+3}, {XT}
    v_lshl_add_u32 v{vCK}, v{vLANE}, 4, s{sT+3}''')
    vm.wait('x1st'); barrier(); ts(9)
    def dma(ks,iss):
        a(f's_add_u32 m0, s{sT+3}, {ks*4096}\ns_add_u32 s{sT+4}, s{sT+2}, {ks*131072}')
        iss(f'buffer_load_dwordx4 v{vXD}, {S(rWS,4)}, s{sT+4} offen sc1 lds')
    for ks in range(16): dma(ks,lambda s: vm.issue(s,('x',ks>>2)))
    with L0():
        w1_finish()
        stage_consume(R4,RG45,'r4'); stage_issue(R5,RG45,'r5')
    a(f'''s_mul_i32 s{sT+5}, s{sRB}, {176*1024}
    s_lshr_b32 s{sT+6}, s{sJ}, 1
    s_mul_i32 s{sT+6}, s{sT+6}, {11*1024}
    s_add_u32 s{sT+5}, s{sT+5}, s{sT+6}
    s_add_u32 s{sT+5}, s{sT+5}, {HB}
    s_and_b32 s{sT+7}, s{sJ}, 1
    s_mul_i32 s{sT+6}, s{sT+7}, 5
    s_add_u32 s{sT+8}, s{sT+6}, 4
    s_add_u32 s{sT+6}, s{sT+6}, s{sW}
    s_lshl_b32 s{sT+6}, s{sT+6}, 10
    s_add_u32 s{sT+6}, s{sT+6}, s{sT+5}
    s_cmp_eq_u32 s{sW}, 2
    s_cselect_b32 s{sT+8}, 10, s{sT+8}
    s_cselect_b32 s{sT+7}, s{sT+7}, s{sW}
    s_lshl_b32 s{sT+8}, s{sT+8}, 10
    s_lshl_b32 s{sT+7}, s{sT+7}, 3
    s_add_u32 s{sT+7}, s{sT+7}, s{sT+8}
    s_add_u32 s{sT+7}, s{sT+7}, s{sT+5}''')
    retry=[]
    def chk_read(c):
        vm.wait(('x',c))
        for k in range(4): lg.issue(f'ds_read_b128 {V(tv+4*k,4)}, v{vCK} offset:{(4*c+k)*4096}',('ck',c))
    def chk_test(c):
        lg.wait(('ck',c))
        lr=a.label('xre'); lb=a.label('xbk')
        a(f'{lb}:'); maxchain(mx,range(tv,tv+16))
        a(f'v_cmp_eq_u32 vcc, -1, v{mx}\ns_cbranch_vccnz {lr}')
        barrier(); retry.append((lr,lb,c))
    chk_read(0); chk_test(0); ts(10)
    def ld(u,r):
        ks,lt=u
        return [f'ds_read_b64_tr_b16 {V(r+2*hh,2)}, v{vXT+lt} offset:{ks*4096+hh*2048}' for hh in range(2)]
    l3=a.label('g1w3'); lj=a.label('g1j')
    a(f's_cmp_eq_u32 s{sW}, 3\ns_cbranch_scc1 {l3}')
    import copy
    st=copy.deepcopy((vm.ops,vm.dc,vm.du,vm.tags,lg.ops,lg.dc,lg.du,lg.tags))
    for var in range(2):
        vm.ops,vm.dc,vm.du,vm.tags,lg.ops,lg.dc,lg.du,lg.tags=copy.deepcopy(st)
        mfs=[]
        for ks in range(16):
            for lt in range(4):
                for t in range(3):
                    def f(r,ks=ks,lt=lt,t=t):
                        x=V(r[(ks,lt)],4); A=x if (var==1 and t==2) else W1R(t,ks); d=V(acc+16*t+4*lt,4)
                        return f'{MF} {d}, {A}, {x}, '+('0' if ks==0 else d)
                    mfs.append((f,[(ks,lt)]))
        hooks={};gates={}
        for c in range(1,4):
            hooks[48*c-30]=lambda c=c: chk_read(c)
            hooks[48*c-18]=lambda c=c: chk_test(c)
            for ks in range(4*c,4*c+4):
                for lt in range(4): gates[(ks,lt)]=48*c-18
        pipeline(mfs,ld,lg,[F+4*k for k in range(8)],12,15,hooks=hooks,gates=gates)
        t=F
        if var==1:
            a(f'''v_lshlrev_b32 v{t}, 2, v{vLANE}
            v_and_b32 v{t+1}, 3, v{vLANE}
            v_cmp_eq_u32 s[{sT+10}:{sT+11}], 1, v{t+1}
            v_cmp_eq_u32 s[{sT+12}:{sT+13}], 2, v{t+1}
            v_cmp_eq_u32 vcc, 3, v{t+1}''')
            exec_set(0,'0xffff0000')
            for lt in range(4): a(f'ds_write_b32 v{t}, v{acc+16+4*lt} offset:{STAT-192+64*lt}')
            exec_all()
            a('s_waitcnt lgkmcnt(0)\ns_barrier')
            for lt in range(4):
                q=acc+32+4*lt
                a(f'''v_cndmask_b32 v{q}, v{q}, v{q+1}, s[{sT+10}:{sT+11}]
                v_cndmask_b32 v{q}, v{q}, v{q+2}, s[{sT+12}:{sT+13}]
                v_cndmask_b32 v{q}, v{q}, v{q+3}, vcc''')
            a(f'v_and_b32 v{t}, 60, v{t}')
            exec_set('0x00f0000f','0xf0000f00')
            for lt in range(4): a(f'ds_write_b32 v{t}, v{acc+32+4*lt} offset:{STAT+256+64*lt}')
            exec_set(0,'0xffff0000')
            for k in range(16): a(f'v_mov_b32 v{acc+16+k}, -1.0')
            for k in range(4): a(f'v_mov_b32 v{vCS+4+k}, 0')
            exec_all()
        else:
            a(f'v_lshlrev_b32 v{t}, 2, v{vLANE}\nv_and_b32 v{t}, 60, v{t}\ns_barrier\ns_branch {lj}\n{l3}:')
    a(f'{lj}:'); lg.reset(); ts(11)
    t=F; m=F+2; pk=F+8; vL=F+6
    a(f'v_add_u32 v{t}, {STAT}, v{t}')
    lg.issue(f'ds_read2_b32 {V(m,2)}, v{t} offset0:0 offset1:16'); lg.issue(f'ds_read2_b32 {V(m+2,2)}, v{t} offset0:32 offset1:48')
    a(f'v_lshlrev_b32 v{vL}, 4, v{vLANE}')
    lg.drain()
    for lt in range(4):
        for tt in range(3):
            r=acc+16*tt+4*lt
            for i in range(4): a(f'v_fma_f32 v{r+i}, -v{m+lt}, v{vCS+4*tt+i}, v{r+i}')
            for h in range(2):
                p=pk+6*lt+2*tt+h
                a(f'v_cvt_pk_bf16_f32 v{p}, v{r+2*h}, v{r+2*h+1}\nv_pk_max_i16 v{p}, v{p}, 0')
    lG=a.label('hglob'); lD=a.label('hdone')
    a(f's_cmp_eq_u32 s{sLOC}, 0\ns_cbranch_scc1 {lG}')
    for glob in range(2):
        sc=' sc1' if glob else ''
        for lt in range(4):
            a(f's_add_u32 s{sT+8}, s{sT+6}, {lt*45056}')
            a(f'buffer_store_dwordx4 {V(pk+6*lt,4)}, v{vL}, {S(rWS,4)}, s{sT+8} offen{sc}')
        l=a.label('h3'); a(f's_cmp_eq_u32 s{sW}, 3\ns_cbranch_scc1 {l}')
        for lt in range(4):
            a(f's_add_u32 s{sT+8}, s{sT+7}, {lt*45056}')
            a(f'buffer_store_dwordx2 {V(pk+6*lt+4,2)}, v{vL}, {S(rWS,4)}, s{sT+8} offen{sc}')
        a(f'''{l}:
        s_lshl_b32 s{sT+8}, s{sRB}, 7
        s_lshl_b32 s{sT+9}, s{sJ}, 4
        s_add_u32 s{sT+8}, s{sT+8}, s{sT+9}
        s_lshl_b32 s{sT+9}, s{sW}, 2
        s_add_u32 s{sT+8}, s{sT+8}, s{sT+9}
        s_add_u32 s{sT+8}, s{sT+8}, {HF}
        s_add_u32 s{sT+9}, s{sLAY}, 1
        v_mov_b32 v{t}, s{sT+9}
        s_waitcnt vmcnt(0)''')
        exec_set(1,0)
        a(f'buffer_store_dword v{t}, v{vL}, {S(rWS,4)}, s{sT+8} offen{sc}')
        exec_all()
        if not glob: a(f's_branch {lD}\n{lG}:')
    a(f'{lD}:'); vm.reset(); ts(12)
    def emit_retry():
        for lr,lb,c in retry:
            a(f'{lr}:')
            for ks in range(4*c,4*c+4): dma(ks,a)
            a('s_waitcnt vmcnt(0)')
            for k in range(4): a(f'ds_read_b128 {V(tv+4*k,4)}, v{vCK} offset:{(4*c+k)*4096}')
            a('s_waitcnt lgkmcnt(0)'); spin_check(lb)
    return emit_retry

def g2_head():
    t=vW+36
    vL=vW+32
    a(f'''v_lshlrev_b32 v{vL}, 4, v{vLANE}
    v_and_b32 v{t}, 7, v{vLANE}
    v_lshlrev_b32 v{t}, 2, v{t}
    s_lshl_b32 s{sT+2}, s{sRB}, 7
    s_lshl_b32 s{sT+3}, s{sW}, 5
    s_add_u32 s{sT+2}, s{sT+2}, s{sT+3}
    s_add_u32 s{sT+2}, s{sT+2}, {HF}
    s_mul_i32 s{sT+3}, s{sRB}, {176*1024}
    s_mul_i32 s{sT+4}, s{sW}, {11*1024}
    s_add_u32 s{sT+3}, s{sT+3}, s{sT+4}
    s_add_u32 s{sT+3}, s{sT+3}, {HB}''')
    for r in range(4):
        a(f'''s_add_u32 s{sT+4}, s{sW}, {r+1}
        s_and_b32 s{sT+4}, s{sT+4}, 3
        s_mul_i32 s{sT+8+3*r}, s{sT+4}, 45056
        s_add_u32 s{sT+8+3*r}, s{sT+8+3*r}, s{sT+3}
        s_add_u32 s{sT+9+3*r}, s{sT+8+3*r}, 4096
        s_add_u32 s{sT+10+3*r}, s{sT+8+3*r}, 8192''')
        if r<3: a(f's_mul_i32 s{sT+4}, s{sT+4}, 12288\ns_add_u32 s{sT+5+r}, s{sT+4}, {RED+4096*r}')
    with L0():
        stage_consume(R5,RG45,'r5'); barrier()
    l=a.label('hp'); d=a.label('hpd')
    a(f'''{l}:
    buffer_load_dword v{t+1}, v{t}, {S(rWS,4)}, s{sT+2} offen sc1
    s_waitcnt vmcnt(0)
    v_cmp_ge_u32 vcc, s{sLAY}, v{t+1}
    s_cbranch_vccz {d}''')
    spin_check(l); a(f'{d}:'); vm.reset(); ts(13)
def g2(layer):
    acc=vW; vL=vW+32; vR=vW+33; vA=vW+34; vB=vW+35; F=vW+36
    slots=[F+4*k for k in range(22)]
    res=slots[-11:]; slots=slots[:11]
    P=res[0]; T=res[4]; XR=res[8]; RS=res[10]
    mfs=[]
    for r in range(4):
        for ks in range(11):
            for dt in range(4):
                def f(rg,r=r,ks=ks,dt=dt):
                    h=V(rg[(r,ks)],4); w=W2R(ks,dt); d=V(acc+16*(r&1)+4*dt,4)
                    A,B=(h,w) if layer==0 else (w,h)
                    return f'{MF} {d}, {A}, {B}, '+('0' if ks==0 else d)
                mfs.append((f,[(r,ks)]))
    def ld(u,rg):
        r,ks=u
        return [f'buffer_load_dwordx4 {V(rg,4)}, v{vL}, {S(rWS,4)}, s{sT+8+3*r+(ks>>2)} offen offset:{(ks&3)*1024} sc1']
    hooks={}
    def add(i,fn):
        if i in hooks:
            g=hooks[i]; hooks[i]=lambda: (g(),fn())
        else: hooks[i]=fn
    for r in range(3):
        add(44*(r+1)+2,lambda r=r: a(f'v_add_u32 v{vR}, s{sT+5+r}, v{vL}'))
        for dt in range(4):
            add(44*(r+1)+4+2*dt,lambda r=r,dt=dt: lg.issue(f'ds_write_b128 v{vR}, {V(acc+16*(r&1)+4*dt,4)} offset:{dt*1024}'))
    b=132+14
    def mid():
        a(f's_mul_i32 s{sT+4}, s{sW}, 12288\ns_add_u32 s{sT+4}, s{sT+4}, {RED}\nv_add_u32 v{vR}, s{sT+4}, v{vL}')
        lg.drain(); barrier()
        for dt in range(4): lg.issue(f'ds_read_b128 {V(P+4*dt,4)}, v{vR} offset:{dt*1024}')
        for dt in range(4): lg.issue(f'ds_read_b128 {V(T+4*dt,4)}, v{vR} offset:{4096+dt*1024}','p1')
        for dt in range(4): lg.issue(f'ds_read_b128 {V(acc+4*dt,4)}, v{vR} offset:{8192+dt*1024}','p2')
    add(b,mid)
    def addr():
        if layer==0:
            a(f'''v_and_b32 v{vA}, 15, v{vLANE}
            v_bfe_u32 v{vB}, v{vLANE}, 1, 2
            v_xor_b32 v{vB}, s{sW}, v{vB}
            v_lshlrev_b32 v{vB}, 5, v{vB}
            v_lshl_add_u32 v{vA}, v{vA}, 7, v{vB}
            v_lshrrev_b32 v{vB}, 4, v{vLANE}
            v_lshl_add_u32 v{vA}, v{vB}, 3, v{vA}
            v_lshlrev_b32 v{vB}, 4, v{vB}''')
        else:
            a(f'''v_bfe_u32 v{vB}, v{vLANE}, 3, 2
            v_xor_b32 v{vB}, s{sW}, v{vB}
            v_lshlrev_b32 v{vB}, 5, v{vB}
            v_lshrrev_b32 v{vA}, 2, v{vLANE}
            v_lshl_add_u32 v{vA}, v{vA}, 7, v{vB}
            v_and_b32 v{vB}, 3, v{vLANE}
            v_lshl_add_u32 v{vA}, v{vB}, 3, v{vA}
            v_and_b32 v{vB}, 15, v{vLANE}
            v_lshlrev_b32 v{vB}, 2, v{vB}''')
        a(f'''s_lshl_b32 s{sT+4}, s{sJ}, 13
        s_add_u32 s{sT+4}, s{sT+4}, {XT}
        v_add_u32 v{vA}, s{sT+4}, v{vA}
        s_lshl_b32 s{sT+4}, s{sW}, 6
        v_add_u32 v{vB}, s{sT+4}, v{vB}''')
        for dt in range(4):
            lg.issue(f'ds_read_b64{"_tr_b16" if layer else ""} {V(XR+2*dt,2)}, v{vA} offset:{dt*2048}')
    add(100,addr)
    def sum1(k):
        lg.wait('p1'); a(f'v_add_f32 v{P+k}, v{P+k}, v{T+k}\nv_add_f32 v{P+k+1}, v{P+k+1}, v{T+k+1}')
    def sum2(k):
        lg.wait('p2'); a(f'v_add_f32 v{P+k}, v{P+k}, v{acc+k}\nv_add_f32 v{P+k+1}, v{P+k+1}, v{acc+k+1}')
    for k in range(8): add(b+5+k,lambda k=k: sum1(2*k))
    for k in range(8): add(b+13+k,lambda k=k: sum2(2*k))
    nr=4 if layer==0 else 1
    def rd_stat():
        w='b128' if layer==0 else 'b32'
        lg.issue(f'ds_read_{w} {V(T,nr)}, v{vB} offset:{STAT}'); lg.issue(f'ds_read_{w} {V(RS,nr)}, v{vB} offset:{STAT+256}','st')
    add(b+14,rd_stat)
    def fin_stat(i):
        lg.wait('st'); ln_final(T+i,RS+i,0)
    for i in range(nr): add(b+21+2*i,lambda i=i: fin_stat(i))
    pipeline(mfs,ld,vm,slots,63,80,per=1,hooks=hooks)
    ts(14)
    x=acc
    for dt in range(4):
        for h in range(2):
            a(f'v_lshlrev_b32 v{x+4*dt+2*h}, 16, v{XR+2*dt+h}\nv_and_b32 v{x+4*dt+2*h+1}, 0xffff0000, v{XR+2*dt+h}')
    if layer==0: a2_store_addr(vA,sT+4,vB)
    else:
        a(f'''v_bfe_u32 v{vA}, v{vLANE}, 3, 1
        v_lshlrev_b32 v{vA}, 14, v{vA}
        v_and_b32 v{vB}, 7, v{vLANE}
        v_lshl_add_u32 v{vA}, v{vB}, 10, v{vA}
        v_bfe_u32 v{vB}, v{vLANE}, 4, 1
        v_lshl_add_u32 v{vA}, v{vB}, 5, v{vA}
        v_lshrrev_b32 v{vB}, 5, v{vLANE}
        v_lshl_add_u32 v{vA}, v{vB}, 4, v{vA}
        s_lshl_b32 s{sT+4}, s{sW}, 2
        s_add_u32 s{sT+4}, s{sT+4}, s{sOB}
        s_lshl_b32 s{sT+4}, s{sT+4}, 13
        s_lshl_b32 s{sT+5}, s{sJ}, 7
        s_add_u32 s{sT+4}, s{sT+4}, s{sT+5}''')
    for p in range(2):
        for dt in (2*p,2*p+1):
            for h in range(2):
                k=4*dt+2*h
                a(f'v_pk_add_f32 {V(P+k,2)}, {V(P+k,2)}, {V(acc+16+k,2)}')
                if layer==0: a(f'v_pk_fma_f32 {V(x+k,2)}, {V(P+k,2)}, {V(RS+2*h,2)}, {V(x+k,2)}')
                else: a(f'v_pk_fma_f32 {V(x+k,2)}, {V(P+k,2)}, {V(RS,2)}, {V(x+k,2)} op_sel_hi:[1,0,1]')
                a(f'v_cvt_pk_bf16_f32 v{T+k//2}, v{x+k}, v{x+k+1}')
        d=T+4*p
        if layer==0:
            for k in range(4): a(f'v_min_u32 v{d+k}, -2, v{d+k}')
        a(f'v_permlane16_swap_b32 v{d}, v{d+2}\nv_permlane16_swap_b32 v{d+1}, v{d+3}')
        if layer==0: vm.issue(f'buffer_store_dwordx4 {V(d,4)}, v{vA}, {S(rWS,4)}, s{sT+4} offen offset:{512*p} sc1')
        else: vm.issue(f'buffer_store_dwordx4 {V(d,4)}, v{vA}, {S(rOUT,4)}, s{sT+4} offen offset:{64*p}')
    if layer==1:
        ts(15); return
    q=P
    for i in range(4):
        a(f'v_add_f32 v{q+2*i}, v{x+i}, v{x+4+i}\nv_mul_f32 v{q+2*i+1}, v{x+i}, v{x+i}')
    for dt in range(1,4):
        for i in range(4):
            if dt>1: a(f'v_add_f32 v{q+2*i}, v{q+2*i}, v{x+4*dt+i}')
            a(f'v_fmac_f32 v{q+2*i+1}, v{x+4*dt+i}, v{x+4*dt+i}')
    for sh in (8,4,2,1):
        for k in range(8): a(f'v_add_f32_dpp v{q+k}, v{q+k}, v{q+k} row_ror:{sh} row_mask:0xf bank_mask:0xf')
    for k in range(8): a(f'v_min_u32 v{q+k}, -2, v{q+k}')
    ps_addr(sT+5)
    a(f'v_lshlrev_b32 v{vB}, 1, v{vLANE}')
    exec_set('0x00010001','0x00010001')
    vm.issue(f'buffer_store_dwordx4 {V(q,4)}, v{vB}, {S(rWS,4)}, s{sT+5} offen sc1')
    vm.issue(f'buffer_store_dwordx4 {V(q+4,4)}, v{vB}, {S(rWS,4)}, s{sT+5} offen offset:16 sc1')
    exec_all(); ts(15)
    d=a.label('fsd'); l=a.label('fsl'); ok=a.label('fsok')
    a(f'''s_lshr_b32 s{sT+6}, s{sJ}, 1
    s_cmp_lg_u32 s{sW}, s{sT+6}
    s_cbranch_scc1 {d}
    s_andn2_b32 s{sT+5}, s{sT+5}, 0x3ff
    s_and_b32 s{sT+6}, s{sJ}, 1
    s_lshl_b32 s{sT+6}, s{sT+6}, 6
    s_add_u32 s{sT+5}, s{sT+5}, s{sT+6}
    v_lshrrev_b32 v{vA}, 3, v{vLANE}
    v_and_b32 v{vB}, 7, v{vLANE}
    v_lshlrev_b32 v{vB}, 3, v{vB}
    v_lshl_add_u32 v{vA}, v{vA}, 7, v{vB}
    v_lshlrev_b32 v{vB}, 2, v{vLANE}''')
    st1_addr(sT+6)
    a(f'''s_waitcnt vmcnt(0)
    {l}:
    buffer_load_dwordx2 {V(x,2)}, v{vA}, {S(rWS,4)}, s{sT+5} offen sc1
    s_waitcnt vmcnt(0)
    v_max_u32 v{x+2}, v{x}, v{x+1}
    v_cmp_eq_u32 vcc, -1, v{x+2}
    s_cbranch_vccz {ok}''')
    spin_check(l); a(f'{ok}:')
    for k in range(2): a(f'v_add_f32_dpp v{x+k}, v{x+k}, v{x+k} row_ror:8 row_mask:0xf bank_mask:0xf')
    for op in ('v_permlane16_swap_b32','v_permlane32_swap_b32'):
        for k in range(2): a(f'v_mov_b32 v{x+2+k}, v{x+k}')
        for k in range(2): a(f'{op} v{x+k}, v{x+2+k}')
        for k in range(2): a(f'v_add_f32 v{x+k}, v{x+k}, v{x+2+k}')
    ln_final(x,x+1,0)
    a(f'''v_cmp_gt_u32 vcc, 8, v{vLANE}
    v_cndmask_b32 v{x}, v{x}, v{x+1}, vcc
    v_min_u32 v{x}, -2, v{x}''')
    exec_set(0xffff,0)
    a(f'buffer_store_dword v{x}, v{vB}, {S(rWS,4)}, s{sT+6} offen sc1')
    exec_all()
    a(f'{d}:')
    vm.drain(); ts(16)

c=p0(); p0b(c)
stage_consume(R1,RG12,'r1');
vm.cond=True; stage_issue(R2,RG12,'r2'); vm.cond=False
barrier0_wait(); xid_check(); ts(5)
a('L_layer:')
conv(); stop('conv')
emit_retry=g1(); stop('g1')
g2_head()
a(f's_cmp_lg_u32 s{sLAY}, 0\ns_cbranch_scc1 L_last')
import copy
st=copy.deepcopy((vm.ops,vm.dc,vm.du,vm.tags,lg.ops,lg.dc,lg.du,lg.tags))
g2(0); stop('g2')
ts_dump(0)
a(f'''s_mov_b32 s{sLAY}, 1
s_mov_b32 s{sA2L}, {A2+2*MB}
s_mov_b32 s{sX1L}, {X1+2*MB}
s_mov_b32 s{sSTL}, {ST+16384}''')
barrier(); ts(5)
a('s_branch L_layer\nL_last:')
vm.ops,vm.dc,vm.du,vm.tags,lg.ops,lg.dc,lg.du,lg.tags=st
g2(1)
ts_dump(256)
a('L_end:\ns_endpgm')
emit_retry()
a(f'''L_bail:
s_mov_b64 exec, -1
v_mov_b32 v{vW}, 32
v_mov_b32 v{vW+1}, 1
global_atomic_add v{vW}, v{vW+1}, {S(sDBG,2)} sc1
s_endpgm''')
lines=fix_hazards([l for l in a.lines if '@WARM@' not in l])
n=NAME+'_kernel'
hdr=open('cdna_kernels/'+NAME+'.s.ref').read().split('; Override')[0]
s=hdr+f'; @launch grid=(256,1,1) block=(256,1,1) lds={LDS_END}\n.amdgcn_target "amdgcn-amd-amdhsa--gfx950"\n.text\n'+khead(n)+'\n'.join(lines)+'\n.section .rodata,"a"\n'+kdesc(n,512,102,256)
sys.stdout.write(s)
```

```python
import sys, math
from asmlib import *
opt=dict(ts=0, stop='', warm=1, forceglobal=0, probe=-1, play=0)
for s in sys.argv[1:]:
    k,v=s.split('='); opt[k]=int(v) if v.lstrip('-').isdigit() else v
TS=opt['ts']; STOP=opt['stop']
MB=1<<20
A2=0; X1=4*MB; HB=8*MB; ST=13*MB+MB//2; PS=ST+32768; HF=PS+131072; XID=HF+4096; WSZ=14*MB; DUMP=16*MB
KC=0; KCH=8320; KCP=4160
U=16640; UCH=4608
STAT=25856
XT=27648; RED=XT+65536; LDS_END=163840
TAB=XT; TROW=528; TCH=53*TROW; KT=XT+2*TCH; KTCH=1408
BASE=XT; EXCH=XT+16384
RG12=(XT+58880,19328); RG3=(XT+32768,25856); RG45=(RED,17664)
sX=4;sLA=6;sAI=8;sCR=10;sCI=12;sLD=14;sDS=16;sW1=20;sW2=22;sOUT=24;sDBG=26;sWS=28
rWS=32;rW1=36;rW2=40;rOUT=44
sW=48;sCP=49;sRB=50;sJ=51;sLAY=52;sLOC=53;sOB=54;sXCC=55;sSPIN=56;sKH=57;sD0=58;sD1=60
sA2L=62;sX1L=63;sSTL=64;sW1B=65;sW2B=66;sCH=67
rX=68
sT=72
def S(n,k=1): return f's{n}' if k==1 else f's[{n}:{n+k-1}]'
def V(n,k=1): return f'v{n}' if k==1 else f'v[{n}:{n+k-1}]'
vTID=0;vLANE=1;vCS=2;vXT=14;vTS=18;vW=20
def W1R(t,ks,k=4,o=0):
    i=(t*16+ks)*4+o
    return (f'a[{176+i}:{176+i+k-1}]' if k>1 else f'a{176+i}') if i<80 else V(144+i-80,k)
def W2R(ks,dt,k=4,o=0):
    i=(ks*4+dt)*4+o
    return f'a[{i}:{i+k-1}]'
MF='v_mfma_f32_16x16x32_bf16'
a=Asm(); vm=Ctr(a,'vmcnt',63); lg=Ctr(a,'lgkmcnt',15); vm.condreg=sLAY
def ts(i):
    if opt['probe']>=0:
        if i==0: a('s_memrealtime s[96:97]\ns_waitcnt lgkmcnt(0)\ns_mov_b32 s100, s96\ns_mov_b32 s101, s96'); lg.reset()
        elif i==opt['probe']:
            l=a.label('pr')
            a(f's_cmp_lg_u32 s{sLAY}, {opt["play"]}\ns_cbranch_scc1 {l}\ns_memrealtime s[96:97]\ns_waitcnt lgkmcnt(0)\ns_mov_b32 s101, s96\n{l}:')
    if TS: a(f's_memrealtime s[96:97]\ns_waitcnt lgkmcnt(0)\nv_writelane_b32 v{vTS}, s96, {i}'); lg.reset()
def ts_dump(slot):
    if TS:
        a(f'''s_lshl_b32 s96, s2, 2
        s_add_u32 s96, s96, s{sW}
        s_mul_i32 s96, s96, 768
        s_add_u32 s96, s96, {slot}
        s_add_u32 s98, s{sWS}, {DUMP}
        s_addc_u32 s99, s{sWS+1}, 0
        v_lshl_add_u32 v19, v{vLANE}, 2, s96''')
        vm.issue(f'global_store_dword v19, v{vTS}, s[98:99]')
def exec_set(lo,hi): a(f's_mov_b32 exec_lo, {lo}\ns_mov_b32 exec_hi, {hi}')
def exec_all(): a('s_mov_b64 exec, -1')
def spin_check(lbl):
    a(f's_sub_u32 s{sSPIN}, s{sSPIN}, 1\ns_cbranch_scc1 L_bail\ns_branch {lbl}')
def barrier(): a('s_barrier')
def stop(name):
    if STOP==name:
        ts_dump(0); a('s_waitcnt vmcnt(0) lgkmcnt(0)\ns_endpgm')

vS=vW+112
def w1_addr():
    for k in range(3):
        a(f'''v_add_u32 v{vS+3}, {64*k}, v{vLANE}
        v_mul_u32_u24 v{vS+4}, 0xaaab, v{vS+3}
        v_lshrrev_b32 v{vS+4}, 18, v{vS+4}
        v_mul_u32_u24 v{vS+5}, 6, v{vS+4}
        v_sub_u32 v{vS+3}, v{vS+3}, v{vS+5}
        v_mul_u32_u24 v{vS+4}, 2752, v{vS+4}
        v_lshl_add_u32 v{vS+k}, v{vS+3}, 4, v{vS+4}''')
def swz_addr(vd,rowshift,tmp):
    a(f'''v_lshrrev_b32 v{tmp}, 3, v{vLANE}
    v_and_b32 v{vd}, 6, v{tmp}
    v_xor_b32 v{vd}, v{vd}, v{vLANE}
    v_and_b32 v{vd}, 7, v{vd}
    v_lshlrev_b32 v{vd}, 4, v{vd}
    v_lshl_add_u32 v{vd}, v{tmp}, {rowshift}, v{vd}''')
def w2_tiles(ks):
    if ks==10: return (16*8, 172+16*8)
    jj,k=divmod(ks,5); ta,tb=[(0,1),(3,4),(6,7),(9,10),(2,5)][k]
    return (172*jj+16*ta,172*jj+16*tb)
def stage_issue(items,region,tag):
    base,stride=region
    if any(k=='w1' for k,_ in items): w1_addr()
    if any(k=='w2' for k,_ in items): swz_addr(vS+3,10,vS+4)
    a(f's_mul_i32 s{sT}, s{sW}, {stride}\ns_add_u32 m0, s{sT}, {base}')
    first=True
    for kind,ks in items:
        if kind=='w1':
            a(f's_add_u32 s{sT+1}, s{sW1B}, {ks*88064}')
            for k in range(3):
                if not first: a('s_addk_i32 m0, 1024')
                first=False
                vm.issue(f'buffer_load_dwordx4 v{vS+k}, {S(rW1,4)}, s{sT+1} offen lds',tag)
        else:
            fa,fb=w2_tiles(ks)
            for k in range(4):
                f0=(fa if k<2 else fb)+8*(k&1)
                if not first: a('s_addk_i32 m0, 1024')
                first=False
                a(f's_add_u32 s{sT+1}, s{sW2B}, {f0*1024}')
                vm.issue(f'buffer_load_dwordx4 v{vS+3}, {S(rW2,4)}, s{sT+1} offen lds',tag)
def stage_consume(items,region,tag):
    base,stride=region
    a(f's_mul_i32 s{sT}, s{sW}, {stride}\ns_add_u32 s{sT}, s{sT}, {base}')
    if any(k=='w1' for k,_ in items):
        a(f'''v_lshrrev_b32 v{vS}, 2, v{vLANE}
        v_mul_u32_u24 v{vS}, 96, v{vS}
        v_and_b32 v{vS+1}, 3, v{vLANE}
        v_lshl_add_u32 v{vS}, v{vS+1}, 3, v{vS}
        v_add_u32 v{vS}, s{sT}, v{vS}''')
    if any(k=='w2' for k,_ in items):
        a(f's_sub_u32 s{sT}, s{sT}, {XT}')
        for dt in range(4): a(f'v_add_u32 v{vS+1+dt}, s{sT}, v{vXT+dt}')
    vm.wait(tag)
    off=0
    for kind,ks in items:
        if kind=='w1':
            for t in range(3):
                for hh in range(2): lg.issue(f'ds_read_b64_tr_b16 {W1R(t,ks,2,2*hh)}, v{vS} offset:{off+hh*1536+t*32}')
            off+=3072
        else:
            for dt in range(4):
                for hh in range(2): lg.issue(f'ds_read_b64_tr_b16 {W2R(ks,dt,2,2*hh)}, v{vS+1+dt} offset:{off+hh*2048}')
            off+=4096
    lg.drain()
R1=[('w1',k) for k in range(0,6)]; R2=[('w1',k) for k in range(6,12)]
R3=[('w1',k) for k in range(12,16)]+[('w2',k) for k in range(0,3)]
R4=[('w2',k) for k in range(3,7)]; R5=[('w2',k) for k in range(7,11)]
def w1_finish():
    l=a.label('w3skip')
    a(f's_cmp_lg_u32 s{sW}, 3\ns_cbranch_scc1 {l}')
    exec_set('0xf000f000','0xf000f000'); a(f'v_mov_b32 v{vW}, 0x3f803f80')
    for ks in range(16):
        for o in range(4):
            r=W1R(1,ks,1,o); a((f'v_accvgpr_write_b32 {r}, v{vW}') if r[0]=='a' else f'v_mov_b32 {r}, v{vW}')
    exec_all(); a(f'{l}:')
    for k in range(4): a(f'v_mov_b32 v{vW+k}, 0x3b003b00')
    for ks in range(16):
        for t in range(3): a(f'{MF} {V(vCS+4*t,4)}, {W1R(t,ks)}, {V(vW,4)}, '+('0' if ks==0 else V(vCS+4*t,4)))

def pipeline(mfs, loadfn, ctr, slots, maxout, ahead, per=2, hooks=None, gates=None, release=None):
    hooks=hooks or {}; gates=gates or {}
    first={};last={}
    for i,(f,us) in enumerate(mfs):
        for u in us: first.setdefault(u,i); last[u]=i
    order=sorted(first,key=lambda u:first[u]); nxt=0; free=list(slots); reg={}
    def try_issue(i,budget):
        nonlocal nxt
        while nxt<len(order) and budget>0:
            u=order[nxt]
            must=first[u]<=i
            if not must:
                if first[u]-i>ahead or not free or gates.get(u,-1)>i: break
                if ctr.pending()+len(loadfn(u,0))>maxout: break
            assert free, ('no slot',i,u)
            reg[u]=free.pop(0)
            for t in loadfn(u,reg[u]): ctr.issue(t,('f',u)); budget-=1
            nxt+=1
    for i,(f,us) in enumerate(mfs):
        if i in hooks: hooks[i]()
        try_issue(i, 99 if i==0 else per)
        while nxt<len(order) and first[order[nxt]]<=i: try_issue(i,1)
        for u in us: ctr.wait(('f',u))
        a(f(reg))
        for u in set(us):
            if last[u]==i:
                if release and nxt>=len(order): release(reg[u])
                free.append(reg[u])
    if len(mfs) in hooks: hooks[len(mfs)]()

def cmul(d,x,y):
    a(f'v_pk_mul_f32 {V(d,2)}, {V(x,2)}, {V(y,2)} op_sel:[0,0] op_sel_hi:[0,1]')
    return f'v_pk_fma_f32 {V(d,2)}, {V(x,2)}, {V(y,2)}, {V(d,2)} op_sel:[1,1,0] op_sel_hi:[1,0,1] neg_lo:[0,1,0]'
def cmuls(L):
    for t in [cmul(*x) for x in L]: a(t)
def p0():
    a(f'''s_cmp_ge_u32 s2, 256
    s_cbranch_scc1 L_end
    s_load_dwordx16 s[4:19], s[0:1], 0
    s_load_dwordx8 s[20:27], s[0:1], 64
    s_load_dwordx2 s[28:29], s[0:1], 96
    v_lshrrev_b32 v{vW}, 6, v0
    v_and_b32 v{vLANE}, 63, v0
    v_readfirstlane_b32 s{sW}, v{vW}
    s_getreg_b32 s{sXCC}, hwreg(HW_REG_XCC_ID, 0, 4)
    s_and_b32 s{sT}, s2, 7
    s_lshr_b32 s{sT+1}, s2, 3
    s_lshl_b32 s{sCP}, s{sT}, 5
    s_add_u32 s{sCP}, s{sCP}, s{sT+1}
    s_lshr_b32 s{sRB}, s{sCP}, 3
    s_and_b32 s{sJ}, s{sCP}, 7
    s_lshl_b32 s{sOB}, s{sT}, 5
    s_and_b32 s{sT+2}, s{sRB}, 1
    s_lshl_b32 s{sT+2}, s{sT+2}, 4
    s_add_u32 s{sOB}, s{sOB}, s{sT+2}
    s_bfe_u32 s{sT+2}, s{sRB}, 0x10001
    s_add_u32 s{sOB}, s{sOB}, s{sT+2}
    s_and_b32 s{sKH}, s{sW}, 1
    s_lshr_b32 s{sCH}, s{sW}, 1
    s_mov_b32 s{sLAY}, 0
    s_mov_b32 s{sSPIN}, 0x40000
    s_mov_b32 s{sA2L}, {A2}
    s_mov_b32 s{sX1L}, {X1}
    s_mov_b32 s{sSTL}, {ST}
    s_mul_i32 s{sW1B}, s{sJ}, 344
    s_mul_i32 s{sT+2}, s{sW}, 96
    s_add_u32 s{sW1B}, s{sW1B}, s{sT+2}
    s_mul_i32 s{sW2B}, s{sW}, {344*1024}
    s_lshl_b32 s{sT+2}, s{sJ}, 7
    s_add_u32 s{sW2B}, s{sW2B}, s{sT+2}''')
    if TS: a(f'v_mov_b32 v{vTS}, 0')
    vM=vW
    vL16=vW+4; vST=vW+5; vP=vW+6; vXB=vW+7; vXD=vW+8; vT0=vW+9
    for k in range(4): a(f'v_mov_b32 v{vM+k}, -1')
    a(f'''v_lshlrev_b32 v{vL16}, 4, v{vLANE}
    v_and_b32 v{vST}, 1, v{vLANE}
    v_lshlrev_b32 v{vST}, 5, v{vST}
    v_lshrrev_b32 v{vT0}, 5, v0
    v_lshl_add_u32 v{vST}, v{vT0}, 2, v{vST}
    v_lshlrev_b32 v{vP}, 1, v0
    v_lshlrev_b32 v{vXB}, 5, v0
    v_lshrrev_b32 v{vT0}, 4, v{vLANE}
    v_and_b32 v{vXD}, 15, v{vLANE}
    v_lshlrev_b32 v{vXD}, 4, v{vXD}
    v_lshl_add_u32 v{vXD}, v{vT0}, 10, v{vXD}
    s_lshl_b32 s{sT+3}, s2, 13
    s_lshl_b32 s{sT+4}, s{sW}, 11
    s_add_u32 s{sT+4}, s{sT+4}, s{sT+3}
    s_lshl_b32 s{sT+5}, s2, 6
    s_add_u32 s{sT+5}, s{sT+5}, {ST}
    s_lshl_b32 s{sT+6}, s{sCP}, 9
    v_add_u32 v{vP}, s{sT+6}, v{vP}
    s_lshl_b32 s{sT+6}, s{sCP}, 1
    s_add_u32 s{sT+6}, s{sT+6}, s{sCH}
    s_lshl_b32 s{sT+6}, s{sT+6}, 1
    v_mov_b32 v{vT0+1}, s{sT+6}
    s_lshl_b32 s{sT+7}, s{sCP}, 2
    s_waitcnt lgkmcnt(0)''')
    ts(0)
    for r,p,n in ((rWS,sWS,WSZ),(rX,sX,2*MB),(rW1,sW1,512*2752),(rW2,sW2,1376*1024),(rOUT,sOUT,2*MB)):
        a(f's_mov_b32 s{r}, s{p}\ns_mov_b32 s{r+1}, s{p+1}\ns_mov_b32 s{r+2}, {n}\ns_mov_b32 s{r+3}, 0x20000')
    vm.issue(f'buffer_store_dwordx4 {V(vM,4)}, v{vL16}, {S(rWS,4)}, s{sT+4} offen sc1')
    vm.issue(f'buffer_store_dwordx4 {V(vM,4)}, v{vL16}, {S(rWS,4)}, s{sT+4} offen offset:1024 sc1')
    exec_set('0xc0000000','0xc0000000')
    vm.issue(f'buffer_store_dword v{vM}, v{vST}, {S(rWS,4)}, s{sT+5} offen sc1')
    exec_set(1,0)
    a(f'''s_lshl_b32 s{sT+8}, s{sRB}, 7
    s_lshl_b32 s{sT+9}, s{sJ}, 4
    s_add_u32 s{sT+8}, s{sT+8}, s{sT+9}
    s_lshl_b32 s{sT+9}, s{sW}, 2
    s_add_u32 s{sT+8}, s{sT+8}, s{sT+9}
    s_add_u32 s{sT+9}, s{sT+8}, {XID}
    s_add_u32 s{sT+8}, s{sT+8}, {HF}
    v_mov_b32 v{vT0+2}, s{sXCC}''')
    vm.issue(f'buffer_store_dword v{vT0+2}, v{vL16}, {S(rWS,4)}, s{sT+9} offen sc1')
    vm.issue(f'buffer_store_dword v{vL16}, v{vL16}, {S(rWS,4)}, s{sT+8} offen sc1','fill0')
    exec_all()
    vPar=vW+12
    vXR=vW+20
    a(f's_load_dword s{sD0}, {S(sDS,2)}, s{sT+7}')
    a(f's_lshl_b32 s{sT+10}, s{sW}, 8\ns_add_u32 s{sT+10}, s{sT+10}, s{sT+3}\ns_add_u32 s{sT+11}, s{sT+10}, 4096')
    a(f's_lshl_b32 m0, s{sW}, 11')
    vm.issue(f'buffer_load_dwordx4 v{vXD}, {S(rX,4)}, s{sT+10} offen lds')
    a('s_addk_i32 m0, 1024')
    vm.issue(f'buffer_load_dwordx4 v{vXD}, {S(rX,4)}, s{sT+11} offen lds','xs')
    vm.issue(f'buffer_load_dwordx4 {V(vXR,4)}, v{vXB}, {S(rX,4)}, s{sT+3} offen')
    vm.issue(f'buffer_load_dwordx4 {V(vXR+4,4)}, v{vXB}, {S(rX,4)}, s{sT+3} offen offset:16','xr')
    vm.issue(f'global_load_ushort v{vPar}, v{vT0+1}, {S(sLD,2)}')
    for k,p in enumerate((sLA,sAI,sCR,sCI)): vm.issue(f'global_load_ushort v{vPar+1+k}, v{vP}, {S(p,2)}','par')
    a(f'''s_lshl_b32 s{sT+12}, s{sCP}, 13
    s_lshl_b32 s{sT+13}, s{sW}, 11
    s_add_u32 s{sT+12}, s{sT+12}, s{sT+13}
    s_add_u32 s{sT+12}, s{sT+12}, {X1}''')
    vm.issue(f'buffer_store_dwordx4 {V(vM,4)}, v{vL16}, {S(rWS,4)}, s{sT+12} offen sc1')
    vm.issue(f'buffer_store_dwordx4 {V(vM,4)}, v{vL16}, {S(rWS,4)}, s{sT+12} offen offset:1024 sc1','fill1')
    a(f'''v_lshrrev_b32 v{vT0+2}, 2, v{vLANE}
    v_lshlrev_b32 v{vT0+2}, 7, v{vT0+2}
    v_and_b32 v{vXT}, 3, v{vLANE}
    v_lshl_add_u32 v{vT0+2}, v{vXT}, 3, v{vT0+2}
    v_add_u32 v{vT0+2}, {XT}, v{vT0+2}
    v_bfe_u32 v{vT0}, v{vLANE}, 3, 2''')
    for lt in range(4): a(f'v_xor_b32 v{vXT+lt}, {lt}, v{vT0}\nv_lshl_add_u32 v{vXT+lt}, v{vXT+lt}, 5, v{vT0+2}')
    stage_issue(R1,RG12,'r1')
    if opt['warm']: a('@WARM@')
    vm.wait('fill0'); barrier()
    l=a.label('noarr')
    a(f's_cmp_lg_u32 s{sW}, 3\ns_cbranch_scc1 {l}')
    a(f'''s_and_b32 s{sT+14}, s2, 3
    s_lshl_b32 s{sT+14}, s{sT+14}, 6
    v_mov_b32 v{vT0}, s{sT+14}
    v_mov_b32 v{vT0+2}, 1''')
    exec_set(1,0)
    a(f'global_atomic_add v{vT0}, v{vT0+2}, {S(sDBG,2)} sc1')
    exec_all(); a(f'{l}:')
    return dict(vM=vM,vL16=vL16,vST=vST,vPar=vPar,vXR=vXR,vT0=vT0)

LOG2E=math.log2(math.e)
def rbf(v): a(f'v_cvt_pk_bf16_f32 v{v}, v{v}, v{v}\nv_lshlrev_b32 v{v}, 16, v{v}')
def p0b(c):
    vM,vL16,vST,vPar,vXR,vT0=c['vM'],c['vL16'],c['vST'],c['vPar'],c['vXR'],c['vT0']
    vIX=vW+80
    t0=vW+30
    a(f'''v_and_b32 v{t0}, 127, v0
    v_lshlrev_b32 v{t0}, 4, v{t0}
    v_sub_u32 v{t0}, 2047, v{t0}
    v_cvt_f32_i32 v{t0+1}, v{t0}
    s_mul_i32 s{sT+14}, s{sCH}, {KTCH}
    s_add_u32 s{sT+14}, s{sT+14}, {KT}
    s_mov_b32 s{sT+15}, 0x42804280''')
    for k in range(0,18,2):
        a(f'''v_subrev_f32 v{t0+2}, {fhex(k)}, v{t0+1}
        v_subrev_f32 v{t0+3}, {fhex(k+1)}, v{t0+1}
        v_cvt_pk_bf16_f32 v{t0+2}, v{t0+2}, v{t0+3}
        v_pk_sub_i16 v{t0+2}, v{t0+2}, s{sT+15}''')
        for h in range(2):
            if k+h>16: break
            a(f'''v_subrev_u32 v{t0+4}, {k+h}, v{t0}
            v_min_i32 v{t0+4}, 127, v{t0+4}
            v_bfe_i32 v{t0+5}, v{t0+2}, {16*h}, 16
            v_max_i32 v{t0+4}, v{t0+4}, v{t0+5}
            v_lshl_add_u32 v{vIX+k+h}, v{t0+4}, 1, s{sT+14}''')
    a(f'''s_add_u32 s{sT+15}, s{sT+14}, 1400
    v_mov_b32 v{t0+4}, s{sT+15}
    v_cmp_eq_u32 vcc, 15, v{t0}
    v_cndmask_b32 v{vIX+16}, v{vIX+16}, v{t0+4}, vcc
    v_mov_b32 v{t0+5}, 0''')
    lg.issue(f'ds_write_b32 v{t0+4}, v{t0+5}')
    a(f'''v_lshlrev_b32 v{t0+4}, 2, v0
    v_and_b32 v{t0+4}, 511, v{t0+4}
    s_mul_i32 s{sT+15}, s{sCH}, {UCH}
    v_add_u32 v{t0+4}, s{sT+15}, v{t0+4}''')
    lg.issue(f'ds_write_b32 v{t0+4}, v{t0+5} offset:{U}')
    a(f'''v_bfe_u32 v{t0}, v{vLANE}, 2, 2
    v_lshlrev_b32 v{t0}, 8, v{t0}
    v_lshrrev_b32 v{t0+1}, 4, v{vLANE}
    v_lshl_add_u32 v{t0}, v{t0+1}, 5, v{t0}
    v_and_b32 v{t0+1}, 3, v{vLANE}
    v_lshl_add_u32 v{t0}, v{t0+1}, 3, v{t0}
    s_lshl_b32 s{sT+15}, s{sW}, 11
    v_add_u32 v{t0}, s{sT+15}, v{t0}
    v_mov_b32 v{t0+1}, 0x3f803f80''')
    vm.wait('xs'); ts(1)
    xt=vW+36
    for cb in range(2):
        for hh in range(2): lg.issue(f'ds_read_b64_tr_b16 {V(xt+4*cb+2*hh,2)}, v{t0} offset:{cb*128+hh*1024}','xt')
    vm.wait('xr')
    sS,sQ=t0+2,t0+3
    for k in range(8):
        a(f'v_dot2_f32_bf16 v{sS}, v{vXR+k}, v{t0+1}, '+('0' if k==0 else f'v{sS}'))
        a(f'v_dot2_f32_bf16 v{sQ}, v{vXR+k}, v{vXR+k}, '+('0' if k==0 else f'v{sQ}'))
    lg.wait('xt')
    for k in range(8): a(f'v_min_u32 v{xt+k}, -2, v{xt+k}')
    vm.wait('fill1')
    vm.issue(f'buffer_store_dwordx4 {V(xt,4)}, v{vL16}, {S(rWS,4)}, s{sT+4} offen sc1')
    vm.issue(f'buffer_store_dwordx4 {V(xt+4,4)}, v{vL16}, {S(rWS,4)}, s{sT+4} offen offset:1024 sc1')
    for sh in (8,4,2,1):
        for r in (sS,sQ): a(f'v_add_f32_dpp v{r}, v{r}, v{r} row_ror:{sh} row_mask:0xf bank_mask:0xf')
    for r in (sS,sQ): a(f'v_add_f32_dpp v{r}, v{r}, v{r} row_bcast:15 row_mask:0xa bank_mask:0xf')
    ln_final(sS,sQ,t0+4)
    a(f'''v_and_b32 v{t0+4}, 1, v{vLANE}
    v_cmp_eq_u32 vcc, 1, v{t0+4}
    v_cndmask_b32 v{sS}, v{sQ}, v{sS}, vcc
    v_min_u32 v{sS}, -2, v{sS}''')
    exec_set('0xc0000000','0xc0000000')
    vm.issue(f'buffer_store_dword v{sS}, v{vST}, {S(rWS,4)}, s{sT+5} offen sc1')
    exec_all()
    ts(2)
    a(f's_add_u32 s{sT+12}, s{sT+12}, {2*MB}')
    vm.issue(f'buffer_store_dwordx4 {V(vM,4)}, v{vL16}, {S(rWS,4)}, s{sT+12} offen sc1')
    vm.issue(f'buffer_store_dwordx4 {V(vM,4)}, v{vL16}, {S(rWS,4)}, s{sT+12} offen offset:1024 sc1')
    a2_store_addr(t0,sT+12,t0+1)
    vm.issue(f'buffer_store_dwordx4 {V(vM,4)}, v{t0}, {S(rWS,4)}, s{sT+12} offen sc1')
    vm.issue(f'buffer_store_dwordx4 {V(vM,4)}, v{t0}, {S(rWS,4)}, s{sT+12} offen offset:512 sc1')
    ps_addr(sT+12); st1_addr(sT+13)
    exec_set(0xff,0)
    vm.issue(f'buffer_store_dwordx4 {V(vM,4)}, v{vL16}, {S(rWS,4)}, s{sT+12} offen sc1')
    exec_set(0xf,0)
    vm.issue(f'buffer_store_dwordx4 {V(vM,4)}, v{vL16}, {S(rWS,4)}, s{sT+13} offen sc1')
    exec_all()
    dt,la,ai,cr,ci=[vPar+k for k in range(5)]
    for k in range(5): a(f'v_lshlrev_b32 v{vPar+k}, 16, v{vPar+k}')
    a(f'''v_mul_f32 v{dt}, {fhex(LOG2E)}, v{dt}
    v_mul_f32 v{la}, {fhex(LOG2E)}, v{la}
    v_exp_f32 v{dt}, v{dt}
    v_exp_f32 v{la}, v{la}''')
    rbf(dt); rbf(la)
    E=vW+20
    e1,e8,e256,c2=E,E+2,E+4,E+6
    a(f'''v_mul_f32 v{la}, v{la}, v{dt}
    v_mul_f32 v{ai}, v{ai}, v{dt}
    v_mul_f32 v{cr}, v{cr}, v{dt}
    v_mul_f32 v{ci}, v{ci}, v{dt}
    v_mul_f32 v{la}, {fhex(-LOG2E)}, v{la}
    v_mul_f32 v{ai}, 0.15915494, v{ai}
    v_add_f32 v{c2}, v{cr}, v{cr}
    v_mul_f32 v{c2+1}, -2.0, v{ci}''')
    tm=E+8
    for k,(d,p) in enumerate(((e1,1.0),(e8,8.0),(e256,256.0))):
        a(f'v_mul_f32 v{tm+2*k}, {fhex(p)}, v{la}\nv_mul_f32 v{tm+2*k+1}, {fhex(p)}, v{ai}')
    for k in range(3): a(f'v_exp_f32 v{tm+2*k}, v{tm+2*k}\nv_fract_f32 v{tm+2*k+1}, v{tm+2*k+1}')
    for k,d in enumerate((e1,e8,e256)): a(f'v_cos_f32 v{d}, v{tm+2*k+1}\nv_sin_f32 v{d+1}, v{tm+2*k+1}')
    for k,d in enumerate((e1,e8,e256)): a(f'v_pk_mul_f32 {V(d,2)}, {V(d,2)}, {V(tm+2*k,2)} op_sel_hi:[1,0]')
    vTA=vPar
    a(f'''v_and_b32 v{vTA}, 127, v0
    v_lshlrev_b32 v{vTA}, 2, v{vTA}
    s_mul_i32 s{sT+15}, s{sCH}, {TCH}
    s_add_u32 s{sT+15}, s{sT+15}, {TAB}
    v_add_u32 v{vTA}, s{sT+15}, v{vTA}
    v_xor_b32 v{e8+1}, 0x80000000, v{e8+1}''')
    pk=[vPar+1,vPar+2,vPar+3,vPar+4]; pi=[0]
    def put(row,r):
        p=pk[pi[0]%4]; pi[0]+=1
        a(f'v_cvt_pk_bf16_f32 v{p}, v{r}, v{r+1}')
        lg.issue(f'ds_write_b32 v{vTA}, v{p} offset:{row*TROW}')
    e2,e3,e4,e5,e6,e7=[E+8+2*k for k in range(6)]
    e16,e32,b1,b2,b3=[E+20+2*k for k in range(5)]
    e512,e768,e1024,ta,tb,tc,td=[E+30+2*k for k in range(7)]
    a(f'v_mov_b32 v{pk[3]}, 0x3f80'); lg.issue(f'ds_write_b32 v{vTA}, v{pk[3]}')
    cmuls([(e2,e1,e1),(e16,e8,e8),(b1,c2,e8),(e512,e256,e256)])
    put(1,e1); put(8,e256); put(21,c2)
    cmuls([(e3,e2,e1),(e4,e2,e2),(e32,e16,e16),(b2,c2,e16),(b3,b1,e16),(e768,e512,e256),(e1024,e512,e512),(ta,e256,e2)])
    put(2,e2); put(22,b1); put(12,e512); put(9,ta)
    cmuls([(e5,e4,e1),(e6,e4,e2),(e7,e4,e3),(ta,e256,e4),(tb,e512,e4),(tc,e768,e4),(td,e1024,e256)])
    put(3,e3); put(4,e4); put(23,b2); put(24,b3); put(14,e768); put(16,e1024)
    put(10,ta); put(13,tb); put(15,tc); put(17,td)
    cmuls([(ta,e256,e6),(tb,e1024,e512),(tc,e1024,e768),(td,e1024,e1024)])
    put(5,e5); put(6,e6); put(7,e7)
    put(11,ta); put(18,tb); put(19,tc); put(20,td)
    cur=[c2,b1,b2,b3]; alt=[e2,e3,e4,e5]
    for m in range(1,8):
        cmuls([(alt[k],cur[k],e32) for k in range(4)])
        cur,alt=alt,cur
        for k in range(4): put(21+4*m+k,cur[k])
    vA=E; vB=E+1
    a(f'''v_and_b32 v{vA}, 15, v{vLANE}
    v_mul_u32_u24 v{vA}, {TROW}, v{vA}
    v_and_b32 v{vB}, 48, v{vLANE}
    v_add3_u32 v{vA}, v{vA}, v{vB}, s{sT+15}
    s_mul_i32 s{sT+15}, s{sKH}, {16*TROW}
    s_add_u32 s{sT+15}, s{sT+15}, {21*TROW}
    v_add_u32 v{vB}, s{sT+15}, v{vA}''')
    lg.drain(); ts(3); barrier()
    acc=E+4
    mfs=[]
    for ks in range(8):
        for t in range(2):
            mfs.append((lambda r,ks=ks,t=t: f'{MF} {V(acc+4*t,4)}, {V(r[("A",t,ks)],4)}, {V(r[("B",0,ks)],4)}, '+('0' if ks==0 else V(acc+4*t,4)), [('A',t,ks),('B',0,ks)]))
    def ld(u,r):
        k,t,ks=u
        return [f'ds_read_b128 {V(r,4)}, v{vA if k=="A" else vB} offset:{ks*64+(t*16*TROW if k=="A" else 0)}']
    pipeline(mfs,ld,lg,[E+12+4*k for k in range(11)],15,8)
    t1=E+12
    a(f'''v_and_b32 v{t1}, 15, v{vLANE}
    s_lshl_b32 s{sT+15}, s{sKH}, 4
    v_add_u32 v{t1}, s{sT+15}, v{t1}
    v_lshrrev_b32 v{t1+1}, 4, v{vLANE}
    v_lshlrev_b32 v{t1+2}, 4, v{t1}
    v_lshl_add_u32 v{t1+2}, v{t1+1}, 3, v{t1+2}
    v_lshlrev_b32 v{t1+3}, 3, v{t1}
    v_add_u32 v{t1+3}, 512, v{t1+3}
    v_cmp_eq_u32 vcc, 2, v{t1+1}
    v_cndmask_b32 v{t1+2}, v{t1+2}, v{t1+3}, vcc
    v_add_u32 v{t1+4}, 4, v{t1+2}
    v_lshlrev_b32 v{t1+3}, 2, v{t1}
    v_add_u32 v{t1+5}, 768, v{t1+3}
    v_add_u32 v{t1+3}, 896, v{t1+3}
    v_cmp_eq_u32 vcc, 3, v{t1+1}
    v_cndmask_b32 v{t1+2}, v{t1+2}, v{t1+5}, vcc
    v_cndmask_b32 v{t1+4}, v{t1+4}, v{t1+3}, vcc
    v_add_u32 v{t1+2}, s{sT+14}, v{t1+2}
    v_add_u32 v{t1+4}, s{sT+14}, v{t1+4}
    v_lshlrev_b32 v{t1+3}, 1, v{t1}
    v_lshl_add_u32 v{t1+3}, v{t1+1}, 8, v{t1+3}
    v_add_u32 v{t1+3}, s{sT+14}, v{t1+3}
    v_cvt_pk_bf16_f32 v{acc}, v{acc}, v{acc+1}
    v_cvt_pk_bf16_f32 v{acc+2}, v{acc+2}, v{acc+3}
    v_cvt_pk_bf16_f32 v{acc+4}, v{acc+4}, v{acc+5}
    v_cvt_pk_bf16_f32 v{acc+6}, v{acc+6}, v{acc+7}''')
    lg.issue(f'ds_write_b32 v{t1+2}, v{acc}')
    lg.issue(f'ds_write_b32 v{t1+4}, v{acc+2}')
    exec_set(-1,0)
    lg.issue(f'ds_write_b16 v{t1+3}, v{acc+4} offset:1024')
    exec_set(0xffff,0)
    lg.issue(f'ds_write_b16_d16_hi v{t1+3}, v{acc+4} offset:1088')
    lg.issue(f'ds_write_b16 v{t1+3}, v{acc+6} offset:1152')
    lg.issue(f'ds_write_b16_d16_hi v{t1+3}, v{acc+6} offset:1216')
    exec_all()
    lg.drain(); barrier()
    g=E
    for k in range(17): lg.issue(f'ds_read_u16 v{g+k}, v{vIX+k}',('g',k))
    o=E+20
    a(f'''v_and_b32 v{o+16}, 127, v0
    v_lshlrev_b32 v{o+16}, 5, v{o+16}
    s_mul_i32 s{sT+15}, s{sCH}, {KCH}
    v_add_u32 v{o+16}, s{sT+15}, v{o+16}
    v_mov_b32 v{o+18}, 0
    v_mov_b32 v{o+19}, 0
    v_and_b32 v{o+17}, 7, v{vLANE}
    v_lshlrev_b32 v{o+17}, 3, v{o+17}
    s_mul_i32 s{sT+15}, s{sW}, {KCP}
    v_add_u32 v{o+17}, s{sT+15}, v{o+17}''')
    for k in range(16):
        lg.wait(('g',k+1))
        a(f'v_lshl_or_b32 v{o+(k>>1)+8*(k&1)}, v{g+k+1}, 16, v{g+k}')
    for cpy in range(2):
        for h in range(2): lg.issue(f'ds_write_b128 v{o+16}, {V(o+8*cpy+4*h,4)} offset:{KC+cpy*KCP+16*h}')
    lg.issue(f'ds_write_b64 v{o+17}, {V(o+18,2)} offset:{KC+4096}')
    a(f'''s_and_b32 s{sD1}, s{sD0}, 0xffff0000
    s_lshl_b32 s{sD0}, s{sD0}, 16
    s_mov_b32 s{sD0+1}, s{sD0}
    s_mov_b32 s{sD1+1}, s{sD1}''')
    ts(4)
def ln_final(s,q,t):
    a(f'''v_mul_f32 v{s}, {fhex(-1/512)}, v{s}
    v_mul_f32 v{q}, {fhex(1/512)}, v{q}
    v_fma_f32 v{q}, -v{s}, v{s}, v{q}
    v_max_f32 v{q}, 0, v{q}
    v_add_f32 v{q}, {fhex(1e-5)}, v{q}
    v_rsq_f32 v{q}, v{q}
    v_mul_f32 v{s}, v{s}, v{q}''')
def a2_store_addr(vd,sd,tmp):
    a(f'''v_lshrrev_b32 v{tmp}, 5, v{vLANE}
    v_and_b32 v{vd}, 31, v{vLANE}
    v_lshlrev_b32 v{vd}, 4, v{vd}
    v_lshl_add_u32 v{vd}, v{tmp}, 14, v{vd}
    s_lshl_b32 s{sd}, s{sW}, 2
    s_add_u32 s{sd}, s{sd}, s{sOB}
    s_lshl_b32 s{sd}, s{sd}, 3
    s_add_u32 s{sd}, s{sd}, s{sJ}
    s_lshl_b32 s{sd}, s{sd}, 10
    s_add_u32 s{sd}, s{sd}, {A2+2*MB}''')
def ps_addr(sd):
    a(f'''s_lshl_b32 s{sd}, s{sRB}, 2
    s_add_u32 s{sd}, s{sd}, s{sW}
    s_lshl_b32 s{sd}, s{sd}, 3
    s_add_u32 s{sd}, s{sd}, s{sJ}
    s_lshl_b32 s{sd}, s{sd}, 7
    s_add_u32 s{sd}, s{sd}, {PS}''')
def st1_addr(sd):
    a(f'''s_lshl_b32 s{sd}, s{sJ}, 1
    s_add_u32 s{sd}, s{sd}, s{sOB}
    s_lshl_b32 s{sd}, s{sd}, 6
    s_add_u32 s{sd}, s{sd}, {ST+16384}''')
def barrier0_wait():
    t=vW
    l=a.label('b0'); d=a.label('b0done')
    a(f's_cmp_lg_u32 s{sW}, 3\ns_cbranch_scc1 {d}')
    a(f'v_and_b32 v{t}, 3, v{vLANE}\nv_lshlrev_b32 v{t}, 6, v{t}\n{l}:')
    a(f'global_load_dword v{t+1}, v{t}, {S(sDBG,2)} sc1\ns_waitcnt vmcnt(0)\nv_cmp_gt_u32 vcc, 64, v{t+1}\ns_cbranch_vccz {d}')
    spin_check(l)
    a(f'{d}:'); lg.drain(); barrier()
def xid_check():
    t=vW
    a(f'''v_and_b32 v{t}, 31, v{vLANE}
    v_lshlrev_b32 v{t}, 2, v{t}
    s_lshl_b32 s{sT}, s{sRB}, 7
    s_add_u32 s{sT}, s{sT}, {XID}''')
    vm.issue(f'buffer_load_dword v{t+1}, v{t}, {S(rWS,4)}, s{sT} offen sc1','xid')
    vm.wait('xid')
    a(f'''v_cmp_ne_u32 vcc, s{sXCC}, v{t+1}
    s_nop 1
    s_cmp_eq_u64 vcc, 0
    s_cselect_b32 s{sLOC}, {0 if opt['forceglobal'] else 1}, 0''')

class L0:
    def __enter__(self):
        self.l=a.label('l0'); a(f's_cmp_lg_u32 s{sLAY}, 0\ns_cbranch_scc1 {self.l}'); vm.cond=lg.cond=True
    def __exit__(self,*x):
        a(f'{self.l}:'); vm.cond=lg.cond=False
def maxchain(dst,regs):
    regs=list(regs)
    a(f'v_max3_u32 v{dst}, v{regs[0]}, v{regs[1]}, v{regs[2]}'); regs=regs[3:]
    while len(regs)>=2: a(f'v_max3_u32 v{dst}, v{dst}, v{regs[0]}, v{regs[1]}'); regs=regs[2:]
    if regs: a(f'v_max_u32 v{dst}, v{dst}, v{regs[0]}')

def conv():
    acc=vW; vKA=vW+32; vUB=vW+36; vEX=vW+37; vXS=vW+38; vBR=vW+39; F=vW+40
    xx=F; st=F+8; xf=F+24; uf=F+40; pk=F+56; vGA=F+64; vGS=F+65; t=F+66
    a(f'''v_lshlrev_b32 v{vGA}, 13, v0
    v_lshlrev_b32 v{vGS}, 6, v0
    s_lshl_b32 s{sT+2}, s{sCP}, 5
    s_add_u32 s{sT+2}, s{sT+2}, s{sA2L}''')
    def gather(iss):
        for k in range(2): iss(f'buffer_load_dwordx4 {V(xx+4*k,4)}, v{vGA}, {S(rWS,4)}, s{sT+2} offen offset:{16*k} sc1')
        for k in range(4): iss(f'buffer_load_dwordx4 {V(st+4*k,4)}, v{vGS}, {S(rWS,4)}, s{sSTL} offen offset:{16*k} sc1')
    gather(lambda s: vm.issue(s,'ga'))
    with L0():
        stage_consume(R2,RG12,'r2'); barrier(); stage_issue(R3,RG3,'r3')
    a(f'''v_and_b32 v{t}, 15, v{vLANE}
    v_lshrrev_b32 v{t+1}, 4, v{vLANE}
    v_and_b32 v{t+2}, 1, v{vLANE}
    v_xor_b32 v{t+2}, 1, v{t+2}
    v_mul_u32_u24 v{t+3}, {KCP-2}, v{t+2}
    v_lshl_add_u32 v{t+4}, v{t+1}, 3, v{t}
    v_lshlrev_b32 v{t+4}, 1, v{t+4}
    v_sub_u32 v{t+3}, v{t+3}, v{t+4}
    s_mul_i32 s{sT+3}, s{sCH}, {KCH}
    s_lshl_b32 s{sT+4}, s{sKH}, 8
    s_sub_u32 s{sT+3}, s{sT+3}, s{sT+4}
    s_add_u32 s{sT+3}, s{sT+3}, {KC+4110-192-512}
    v_add_u32 v{vKA}, s{sT+3}, v{t+3}''')
    for m in range(1,4): a(f'v_subrev_u32 v{vKA+m}, {1024*m}, v{vKA}')
    a(f'''v_lshlrev_b32 v{vUB}, 5, v{t}
    v_lshlrev_b32 v{t+3}, 4, v{t+1}
    v_sub_u32 v{vUB}, v{vUB}, v{t+3}
    s_mul_i32 s{sT+3}, s{sCH}, {UCH}
    s_sub_u32 s{sT+3}, s{sT+3}, s{sT+4}
    s_add_u32 s{sT+3}, s{sT+3}, {U+528-192}
    v_add_u32 v{vUB}, s{sT+3}, v{vUB}
    v_lshl_add_u32 v{vBR}, v{t}, 6, v{t+3}
    s_lshl_b32 s{sT+3}, s{sCH}, 13
    s_add_u32 s{sT+3}, s{sT+3}, {BASE}
    v_add_u32 v{vBR}, s{sT+3}, v{vBR}
    s_lshl_b32 s{sT+3}, s{sCH}, 13
    s_add_u32 s{sT+3}, s{sT+3}, {EXCH}
    v_lshl_add_u32 v{vEX}, v{vLANE}, 4, s{sT+3}
    v_and_b32 v{t+2}, 1, v{t+1}
    v_mul_u32_u24 v{t+2}, 3, v{t+2}
    v_xor_b32 v{t+2}, s{sKH}, v{t+2}
    v_lshlrev_b32 v{t+2}, 9, v{t+2}
    v_lshrrev_b32 v{t+3}, 1, v{t+1}
    v_lshl_add_u32 v{t+2}, v{t+3}, 8, v{t+2}
    v_lshl_add_u32 v{vXS}, v{t}, 4, v{t+2}
    v_lshlrev_b32 v{t}, 4, v0
    v_lshlrev_b32 v{t+1}, 5, v0
    s_lshl_b32 s{sT+5}, s{sCP}, 1
    s_add_u32 s{sT+5}, s{sT+5}, s{sCH}
    s_lshl_b32 s{sT+5}, s{sT+5}, 12
    s_add_u32 s{sT+5}, s{sT+5}, s{sX1L}''')
    vm.wait('ga')
    lc=a.label('gchk'); lo=a.label('gok')
    a(f'{lc}:'); maxchain(t+2,range(xx,xx+24))
    a(f'v_cmp_eq_u32 vcc, -1, v{t+2}\ns_cbranch_vccz {lo}')
    gather(a); a('s_waitcnt vmcnt(0)'); spin_check(lc)
    a(f'{lo}:'); ts(6)
    for ch in range(2):
        for k in range(4):
            a(f'v_lshlrev_b32 v{xf+8*ch+2*k}, 16, v{xx+4*ch+k}\nv_and_b32 v{xf+8*ch+2*k+1}, 0xffff0000, v{xx+4*ch+k}')
        for k in range(4): a(f'v_pk_fma_f32 {V(uf+8*ch+2*k,2)}, {V(xf+8*ch+2*k,2)}, {V(st+2*k,2)}, {V(st+8+2*k,2)}')
        for k in range(4): a(f'v_cvt_pk_bf16_f32 v{pk+4*ch+k}, v{uf+8*ch+2*k}, v{uf+8*ch+2*k+1}')
        lg.issue(f'ds_write_b128 v{t}, {V(pk+4*ch,4)} offset:{U+512+ch*UCH}')
    for ch in range(2):
        for k in range(4): a(f'v_pk_fma_f32 {V(xf+8*ch+2*k,2)}, {V(uf+8*ch+2*k,2)}, {S((sD0,sD1)[ch],2)}, {V(xf+8*ch+2*k,2)}')
        for h in range(2): lg.issue(f'ds_write_b128 v{t+1}, {V(xf+8*ch+4*h,4)} offset:{BASE+8192*ch+16*h}')
    KEEP=[(0,3,4,7),(1,2,5,6)]
    for G in range(8):
        a(f'v_mov_b64 {V(acc+4*G,2)}, 0\nv_mov_b64 {V(acc+4*G+2,2)}, 0')
    lg.drain(); barrier(); ts(7)
    l1=a.label('kh1'); l2=a.label('khj')
    a(f's_cmp_lg_u32 s{sKH}, 0\ns_cbranch_scc1 {l1}')
    for G in KEEP[0]: a(f'ds_read_b128 {V(acc+4*G,4)}, v{vBR} offset:{G*1024}')
    a(f's_branch {l2}\n{l1}:')
    for G in KEEP[1]: lg.issue(f'ds_read_b128 {V(acc+4*G,4)}, v{vBR} offset:{G*1024}')
    a(f'{l2}:')
    def ld(u,r):
        k,s,x=u
        if k=='B': return [f'ds_read_b128 {V(r,4)}, v{vUB} offset:{192-64*s+512*x}']
        o=(192-64*s+512*(1-(x&1)))//4
        return [f'ds_read2_b32 {V(r,2)}, v{vKA+(x>>1)} offset0:{o} offset1:{o+1}', f'ds_read2_b32 {V(r+2,2)}, v{vKA+(x>>1)} offset0:{o+2} offset1:{o+3}']
    def mf(s,q,b): return (lambda r: f'{MF} {V(acc+4*(q+b),4)}, {V(r[("A",s,q)],4)}, {V(r[("B",s,b)],4)}, {V(acc+4*(q+b),4)}', [('A',s,q),('B',s,b)])
    mfs=[]
    for s in range(3):
        for q in range(7,-1,-1):
            for b in range(8-q): mfs.append(mf(s,q,b))
    fin={}
    mfs.append((lambda r: fin.update(r) or 's_nop 0', [('A',3,q) for q in range(8)]+[('B',3,q) for q in range(8)]))
    pipeline(mfs,ld,lg,[F+4*k for k in range(21)],15,24)
    used={fin[(k,3,q)] for k in 'AB' for q in range(8)}
    fr=[F+4*k for k in range(21) if F+4*k not in used]
    l1=a.label('tkh1'); l2=a.label('tkhj')
    a(f's_cmp_lg_u32 s{sKH}, 0\ns_cbranch_scc1 {l1}')
    for kh in range(2):
        keep=KEEP[kh]; send=KEEP[1-kh]
        def seq(gs): return [(q,G-q) for q in range(8) for G in gs if q<=G]
        for q,b in seq(send): a(mf(3,q,b)[0](fin))
        ks=seq(keep)
        for n,(q,b) in enumerate(ks):
            a(mf(3,q,b)[0](fin))
            if 3<=n<7: a(f'ds_write_b128 v{vEX}, {V(acc+4*send[n-3],4)} offset:{kh*4096+(n-3)*1024}')
            if n==11: a('s_waitcnt lgkmcnt(0)\ns_barrier')
            if 12<=n<16: a(f'ds_read_b128 {V(fr[n-12],4)}, v{vEX} offset:{(1-kh)*4096+(n-12)*1024}')
        o=acc+4*send[0]; o2=acc+4*send[2]
        for p in range(2):
            a(f's_waitcnt lgkmcnt({2-2*p})')
            d=(o,o2)[p]
            for e in range(2):
                G=keep[2*p+e]; r=fr[2*p+e]
                a(f'v_pk_add_f32 {V(r,2)}, {V(r,2)}, {V(acc+4*G,2)}\nv_pk_add_f32 {V(r+2,2)}, {V(r+2,2)}, {V(acc+4*G+2,2)}')
                a(f'v_cvt_pk_bf16_f32 v{d+2*e}, v{r}, v{r+1}\nv_cvt_pk_bf16_f32 v{d+2*e+1}, v{r+2}, v{r+3}')
            for k in range(4): a(f'v_min_u32 v{d+k}, -2, v{d+k}')
            a(f'v_permlane16_swap_b32 v{d}, v{d+2}\nv_permlane16_swap_b32 v{d+1}, v{d+3}')
            txt=f'buffer_store_dwordx4 {V(d,4)}, v{vXS}, {S(rWS,4)}, s{sT+5} offen offset:{2048*p} sc1'
            if kh==0: a(txt)
            else: vm.issue(txt,'x1st')
        if kh==0: a(f's_branch {l2}\n{l1}:')
    a(f'{l2}:'); lg.reset(); ts(8)

def g1():
    acc=vW; F=vW+48; vXD=vW+80; vCK=vW+81; tv=vW+84; mx=vW+82
    with L0():
        stage_consume(R3,RG3,'r3'); barrier(); stage_issue(R4,RG45,'r4')
    swz_addr(vXD,12,mx)
    a(f'''s_lshl_b32 s{sT+2}, s{sW}, 15
    s_lshl_b32 s{sT+3}, s{sRB}, 7
    s_add_u32 s{sT+2}, s{sT+2}, s{sT+3}
    s_add_u32 s{sT+2}, s{sT+2}, s{sX1L}
    s_lshl_b32 s{sT+3}, s{sW}, 10
    s_add_u32 s{sT+3}, s{sT+3}, {XT}
    v_lshl_add_u32 v{vCK}, v{vLANE}, 4, s{sT+3}''')
    vm.wait('x1st'); barrier(); ts(9)
    def dma(ks,iss):
        a(f's_add_u32 m0, s{sT+3}, {ks*4096}\ns_add_u32 s{sT+4}, s{sT+2}, {ks*131072}')
        iss(f'buffer_load_dwordx4 v{vXD}, {S(rWS,4)}, s{sT+4} offen sc1 lds')
    for ks in range(16): dma(ks,lambda s: vm.issue(s,('x',ks>>2)))
    with L0():
        w1_finish()
        stage_consume(R4,RG45,'r4'); stage_issue(R5,RG45,'r5')
    a(f'''s_mul_i32 s{sT+5}, s{sRB}, {176*1024}
    s_lshr_b32 s{sT+6}, s{sJ}, 1
    s_mul_i32 s{sT+6}, s{sT+6}, {11*1024}
    s_add_u32 s{sT+5}, s{sT+5}, s{sT+6}
    s_add_u32 s{sT+5}, s{sT+5}, {HB}
    s_and_b32 s{sT+7}, s{sJ}, 1
    s_mul_i32 s{sT+6}, s{sT+7}, 5
    s_add_u32 s{sT+8}, s{sT+6}, 4
    s_add_u32 s{sT+6}, s{sT+6}, s{sW}
    s_lshl_b32 s{sT+6}, s{sT+6}, 10
    s_add_u32 s{sT+6}, s{sT+6}, s{sT+5}
    s_cmp_eq_u32 s{sW}, 2
    s_cselect_b32 s{sT+8}, 10, s{sT+8}
    s_cselect_b32 s{sT+7}, s{sT+7}, s{sW}
    s_lshl_b32 s{sT+8}, s{sT+8}, 10
    s_lshl_b32 s{sT+7}, s{sT+7}, 3
    s_add_u32 s{sT+7}, s{sT+7}, s{sT+8}
    s_add_u32 s{sT+7}, s{sT+7}, s{sT+5}''')
    retry=[]
    def chk_read(c):
        vm.wait(('x',c))
        for k in range(4): lg.issue(f'ds_read_b128 {V(tv+4*k,4)}, v{vCK} offset:{(4*c+k)*4096}',('ck',c))
    def chk_test(c):
        lg.wait(('ck',c))
        lr=a.label('xre'); lb=a.label('xbk')
        a(f'{lb}:'); maxchain(mx,range(tv,tv+16))
        a(f'v_cmp_eq_u32 vcc, -1, v{mx}\ns_cbranch_vccnz {lr}')
        barrier(); retry.append((lr,lb,c))
    chk_read(0); chk_test(0); ts(10)
    def ld(u,r):
        ks,lt=u
        return [f'ds_read_b64_tr_b16 {V(r+2*hh,2)}, v{vXT+lt} offset:{ks*4096+hh*2048}' for hh in range(2)]
    l3=a.label('g1w3'); lj=a.label('g1j')
    a(f's_cmp_eq_u32 s{sW}, 3\ns_cbranch_scc1 {l3}')
    import copy
    st=copy.deepcopy((vm.ops,vm.dc,vm.du,vm.tags,lg.ops,lg.dc,lg.du,lg.tags))
    for var in range(2):
        vm.ops,vm.dc,vm.du,vm.tags,lg.ops,lg.dc,lg.du,lg.tags=copy.deepcopy(st)
        mfs=[]
        for ks in range(16):
            for lt in range(4):
                for t in range(3):
                    def f(r,ks=ks,lt=lt,t=t):
                        x=V(r[(ks,lt)],4); A=x if (var==1 and t==2) else W1R(t,ks); d=V(acc+16*t+4*lt,4)
                        return f'{MF} {d}, {A}, {x}, '+('0' if ks==0 else d)
                    mfs.append((f,[(ks,lt)]))
        hooks={};gates={}
        for c in range(1,4):
            hooks[48*c-30]=lambda c=c: chk_read(c)
            hooks[48*c-18]=lambda c=c: chk_test(c)
            for ks in range(4*c,4*c+4):
                for lt in range(4): gates[(ks,lt)]=48*c-18
        pipeline(mfs,ld,lg,[F+4*k for k in range(8)],12,15,hooks=hooks,gates=gates)
        t=F
        if var==1:
            a(f'''v_lshlrev_b32 v{t}, 2, v{vLANE}
            v_and_b32 v{t+1}, 3, v{vLANE}
            v_cmp_eq_u32 s[{sT+10}:{sT+11}], 1, v{t+1}
            v_cmp_eq_u32 s[{sT+12}:{sT+13}], 2, v{t+1}
            v_cmp_eq_u32 vcc, 3, v{t+1}''')
            exec_set(0,'0xffff0000')
            for lt in range(4): a(f'ds_write_b32 v{t}, v{acc+16+4*lt} offset:{STAT-192+64*lt}')
            exec_all()
            a('s_waitcnt lgkmcnt(0)\ns_barrier')
            for lt in range(4):
                q=acc+32+4*lt
                a(f'''v_cndmask_b32 v{q}, v{q}, v{q+1}, s[{sT+10}:{sT+11}]
                v_cndmask_b32 v{q}, v{q}, v{q+2}, s[{sT+12}:{sT+13}]
                v_cndmask_b32 v{q}, v{q}, v{q+3}, vcc''')
            a(f'v_and_b32 v{t}, 60, v{t}')
            exec_set('0x00f0000f','0xf0000f00')
            for lt in range(4): a(f'ds_write_b32 v{t}, v{acc+32+4*lt} offset:{STAT+256+64*lt}')
            exec_set(0,'0xffff0000')
            for k in range(16): a(f'v_mov_b32 v{acc+16+k}, -1.0')
            for k in range(4): a(f'v_mov_b32 v{vCS+4+k}, 0')
            exec_all()
        else:
            a(f'v_lshlrev_b32 v{t}, 2, v{vLANE}\nv_and_b32 v{t}, 60, v{t}\ns_barrier\ns_branch {lj}\n{l3}:')
    a(f'{lj}:'); lg.reset(); ts(11)
    t=F; m=F+2; pk=F+8; vL=F+6
    a(f'v_add_u32 v{t}, {STAT}, v{t}')
    lg.issue(f'ds_read2_b32 {V(m,2)}, v{t} offset0:0 offset1:16'); lg.issue(f'ds_read2_b32 {V(m+2,2)}, v{t} offset0:32 offset1:48')
    a(f'v_lshlrev_b32 v{vL}, 4, v{vLANE}')
    lg.drain()
    for lt in range(4):
        for tt in range(3):
            r=acc+16*tt+4*lt
            for i in range(4): a(f'v_fma_f32 v{r+i}, -v{m+lt}, v{vCS+4*tt+i}, v{r+i}')
            for h in range(2):
                p=pk+6*lt+2*tt+h
                a(f'v_cvt_pk_bf16_f32 v{p}, v{r+2*h}, v{r+2*h+1}\nv_pk_max_i16 v{p}, v{p}, 0')
    lG=a.label('hglob'); lD=a.label('hdone')
    a(f's_cmp_eq_u32 s{sLOC}, 0\ns_cbranch_scc1 {lG}')
    for glob in range(2):
        sc=' sc1' if glob else ''
        for lt in range(4):
            a(f's_add_u32 s{sT+8}, s{sT+6}, {lt*45056}')
            a(f'buffer_store_dwordx4 {V(pk+6*lt,4)}, v{vL}, {S(rWS,4)}, s{sT+8} offen{sc}')
        l=a.label('h3'); a(f's_cmp_eq_u32 s{sW}, 3\ns_cbranch_scc1 {l}')
        for lt in range(4):
            a(f's_add_u32 s{sT+8}, s{sT+7}, {lt*45056}')
            a(f'buffer_store_dwordx2 {V(pk+6*lt+4,2)}, v{vL}, {S(rWS,4)}, s{sT+8} offen{sc}')
        a(f'''{l}:
        s_lshl_b32 s{sT+8}, s{sRB}, 7
        s_lshl_b32 s{sT+9}, s{sJ}, 4
        s_add_u32 s{sT+8}, s{sT+8}, s{sT+9}
        s_lshl_b32 s{sT+9}, s{sW}, 2
        s_add_u32 s{sT+8}, s{sT+8}, s{sT+9}
        s_add_u32 s{sT+8}, s{sT+8}, {HF}
        s_add_u32 s{sT+9}, s{sLAY}, 1
        v_mov_b32 v{t}, s{sT+9}
        s_waitcnt vmcnt(0)''')
        exec_set(1,0)
        a(f'buffer_store_dword v{t}, v{vL}, {S(rWS,4)}, s{sT+8} offen{sc}')
        exec_all()
        if not glob: a(f's_branch {lD}\n{lG}:')
    a(f'{lD}:'); vm.reset(); ts(12)
    def emit_retry():
        for lr,lb,c in retry:
            a(f'{lr}:')
            for ks in range(4*c,4*c+4): dma(ks,a)
            a('s_waitcnt vmcnt(0)')
            for k in range(4): a(f'ds_read_b128 {V(tv+4*k,4)}, v{vCK} offset:{(4*c+k)*4096}')
            a('s_waitcnt lgkmcnt(0)'); spin_check(lb)
    return emit_retry

def g2_head():
    t=vW+36
    vL=vW+32
    a(f'''v_lshlrev_b32 v{vL}, 4, v{vLANE}
    v_and_b32 v{t}, 7, v{vLANE}
    v_lshlrev_b32 v{t}, 2, v{t}
    s_lshl_b32 s{sT+2}, s{sRB}, 7
    s_lshl_b32 s{sT+3}, s{sW}, 5
    s_add_u32 s{sT+2}, s{sT+2}, s{sT+3}
    s_add_u32 s{sT+2}, s{sT+2}, {HF}
    s_mul_i32 s{sT+3}, s{sRB}, {176*1024}
    s_mul_i32 s{sT+4}, s{sW}, {11*1024}
    s_add_u32 s{sT+3}, s{sT+3}, s{sT+4}
    s_add_u32 s{sT+3}, s{sT+3}, {HB}''')
    for r in range(4):
        a(f'''s_add_u32 s{sT+4}, s{sW}, {r+1}
        s_and_b32 s{sT+4}, s{sT+4}, 3
        s_mul_i32 s{sT+8+3*r}, s{sT+4}, 45056
        s_add_u32 s{sT+8+3*r}, s{sT+8+3*r}, s{sT+3}
        s_add_u32 s{sT+9+3*r}, s{sT+8+3*r}, 4096
        s_add_u32 s{sT+10+3*r}, s{sT+8+3*r}, 8192''')
        if r<3: a(f's_mul_i32 s{sT+4}, s{sT+4}, 12288\ns_add_u32 s{sT+5+r}, s{sT+4}, {RED+4096*r}')
    with L0():
        stage_consume(R5,RG45,'r5'); barrier()
    l=a.label('hp'); d=a.label('hpd')
    a(f'''{l}:
    buffer_load_dword v{t+1}, v{t}, {S(rWS,4)}, s{sT+2} offen sc1
    s_waitcnt vmcnt(0)
    v_cmp_ge_u32 vcc, s{sLAY}, v{t+1}
    s_cbranch_vccz {d}''')
    spin_check(l); a(f'{d}:'); vm.reset(); ts(13)
def g2(layer):
    acc=vW; vL=vW+32; vR=vW+33; vA=vW+34; vB=vW+35; F=vW+36
    slots=[F+4*k for k in range(22)]
    res=slots[-11:]; slots=slots[:11]
    P=res[0]; T=res[4]; XR=res[8]; RS=res[10]
    mfs=[]
    for r in range(4):
        for ks in range(11):
            for dt in range(4):
                def f(rg,r=r,ks=ks,dt=dt):
                    h=V(rg[(r,ks)],4); w=W2R(ks,dt); d=V(acc+16*(r&1)+4*dt,4)
                    A,B=(h,w) if layer==0 else (w,h)
                    return f'{MF} {d}, {A}, {B}, '+('0' if ks==0 else d)
                mfs.append((f,[(r,ks)]))
    def ld(u,rg):
        r,ks=u
        return [f'buffer_load_dwordx4 {V(rg,4)}, v{vL}, {S(rWS,4)}, s{sT+8+3*r+(ks>>2)} offen offset:{(ks&3)*1024} sc1']
    hooks={}
    def add(i,fn):
        if i in hooks:
            g=hooks[i]; hooks[i]=lambda: (g(),fn())
        else: hooks[i]=fn
    for r in range(3):
        add(44*(r+1)+2,lambda r=r: a(f'v_add_u32 v{vR}, s{sT+5+r}, v{vL}'))
        for dt in range(4):
            add(44*(r+1)+4+2*dt,lambda r=r,dt=dt: lg.issue(f'ds_write_b128 v{vR}, {V(acc+16*(r&1)+4*dt,4)} offset:{dt*1024}'))
    b=132+14
    def mid():
        a(f's_mul_i32 s{sT+4}, s{sW}, 12288\ns_add_u32 s{sT+4}, s{sT+4}, {RED}\nv_add_u32 v{vR}, s{sT+4}, v{vL}')
        lg.drain(); barrier()
        for dt in range(4): lg.issue(f'ds_read_b128 {V(P+4*dt,4)}, v{vR} offset:{dt*1024}')
        for dt in range(4): lg.issue(f'ds_read_b128 {V(T+4*dt,4)}, v{vR} offset:{4096+dt*1024}','p1')
        for dt in range(4): lg.issue(f'ds_read_b128 {V(acc+4*dt,4)}, v{vR} offset:{8192+dt*1024}','p2')
    add(b,mid)
    def addr():
        if layer==0:
            a(f'''v_and_b32 v{vA}, 15, v{vLANE}
            v_bfe_u32 v{vB}, v{vLANE}, 1, 2
            v_xor_b32 v{vB}, s{sW}, v{vB}
            v_lshlrev_b32 v{vB}, 5, v{vB}
            v_lshl_add_u32 v{vA}, v{vA}, 7, v{vB}
            v_lshrrev_b32 v{vB}, 4, v{vLANE}
            v_lshl_add_u32 v{vA}, v{vB}, 3, v{vA}
            v_lshlrev_b32 v{vB}, 4, v{vB}''')
        else:
            a(f'''v_bfe_u32 v{vB}, v{vLANE}, 3, 2
            v_xor_b32 v{vB}, s{sW}, v{vB}
            v_lshlrev_b32 v{vB}, 5, v{vB}
            v_lshrrev_b32 v{vA}, 2, v{vLANE}
            v_lshl_add_u32 v{vA}, v{vA}, 7, v{vB}
            v_and_b32 v{vB}, 3, v{vLANE}
            v_lshl_add_u32 v{vA}, v{vB}, 3, v{vA}
            v_and_b32 v{vB}, 15, v{vLANE}
            v_lshlrev_b32 v{vB}, 2, v{vB}''')
        a(f'''s_lshl_b32 s{sT+4}, s{sJ}, 13
        s_add_u32 s{sT+4}, s{sT+4}, {XT}
        v_add_u32 v{vA}, s{sT+4}, v{vA}
        s_lshl_b32 s{sT+4}, s{sW}, 6
        v_add_u32 v{vB}, s{sT+4}, v{vB}''')
        for dt in range(4):
            lg.issue(f'ds_read_b64{"_tr_b16" if layer else ""} {V(XR+2*dt,2)}, v{vA} offset:{dt*2048}')
    add(100,addr)
    def sum1(k):
        lg.wait('p1'); a(f'v_add_f32 v{P+k}, v{P+k}, v{T+k}\nv_add_f32 v{P+k+1}, v{P+k+1}, v{T+k+1}')
    def sum2(k):
        lg.wait('p2'); a(f'v_add_f32 v{P+k}, v{P+k}, v{acc+k}\nv_add_f32 v{P+k+1}, v{P+k+1}, v{acc+k+1}')
    for k in range(8): add(b+5+k,lambda k=k: sum1(2*k))
    for k in range(8): add(b+13+k,lambda k=k: sum2(2*k))
    nr=4 if layer==0 else 1
    def rd_stat():
        w='b128' if layer==0 else 'b32'
        lg.issue(f'ds_read_{w} {V(T,nr)}, v{vB} offset:{STAT}'); lg.issue(f'ds_read_{w} {V(RS,nr)}, v{vB} offset:{STAT+256}','st')
    add(b+14,rd_stat)
    def fin_stat(i):
        lg.wait('st'); ln_final(T+i,RS+i,0)
    for i in range(nr): add(b+21+2*i,lambda i=i: fin_stat(i))
    pipeline(mfs,ld,vm,slots,63,80,per=1,hooks=hooks)
    ts(14)
    x=acc
    for dt in range(4):
        for h in range(2):
            a(f'v_lshlrev_b32 v{x+4*dt+2*h}, 16, v{XR+2*dt+h}\nv_and_b32 v{x+4*dt+2*h+1}, 0xffff0000, v{XR+2*dt+h}')
    if layer==0: a2_store_addr(vA,sT+4,vB)
    else:
        a(f'''v_bfe_u32 v{vA}, v{vLANE}, 3, 1
        v_lshlrev_b32 v{vA}, 14, v{vA}
        v_and_b32 v{vB}, 7, v{vLANE}
        v_lshl_add_u32 v{vA}, v{vB}, 10, v{vA}
        v_bfe_u32 v{vB}, v{vLANE}, 4, 1
        v_lshl_add_u32 v{vA}, v{vB}, 5, v{vA}
        v_lshrrev_b32 v{vB}, 5, v{vLANE}
        v_lshl_add_u32 v{vA}, v{vB}, 4, v{vA}
        s_lshl_b32 s{sT+4}, s{sW}, 2
        s_add_u32 s{sT+4}, s{sT+4}, s{sOB}
        s_lshl_b32 s{sT+4}, s{sT+4}, 13
        s_lshl_b32 s{sT+5}, s{sJ}, 7
        s_add_u32 s{sT+4}, s{sT+4}, s{sT+5}''')
    for p in range(2):
        for dt in (2*p,2*p+1):
            for h in range(2):
                k=4*dt+2*h
                a(f'v_pk_add_f32 {V(P+k,2)}, {V(P+k,2)}, {V(acc+16+k,2)}')
                if layer==0: a(f'v_pk_fma_f32 {V(x+k,2)}, {V(P+k,2)}, {V(RS+2*h,2)}, {V(x+k,2)}')
                else: a(f'v_pk_fma_f32 {V(x+k,2)}, {V(P+k,2)}, {V(RS,2)}, {V(x+k,2)} op_sel_hi:[1,0,1]')
                a(f'v_cvt_pk_bf16_f32 v{T+k//2}, v{x+k}, v{x+k+1}')
        d=T+4*p
        if layer==0:
            for k in range(4): a(f'v_min_u32 v{d+k}, -2, v{d+k}')
        a(f'v_permlane16_swap_b32 v{d}, v{d+2}\nv_permlane16_swap_b32 v{d+1}, v{d+3}')
        if layer==0: vm.issue(f'buffer_store_dwordx4 {V(d,4)}, v{vA}, {S(rWS,4)}, s{sT+4} offen offset:{512*p} sc1')
        else: vm.issue(f'buffer_store_dwordx4 {V(d,4)}, v{vA}, {S(rOUT,4)}, s{sT+4} offen offset:{64*p}')
    if layer==1:
        ts(15); return
    q=P
    for i in range(4):
        a(f'v_add_f32 v{q+2*i}, v{x+i}, v{x+4+i}\nv_mul_f32 v{q+2*i+1}, v{x+i}, v{x+i}')
    for dt in range(1,4):
        for i in range(4):
            if dt>1: a(f'v_add_f32 v{q+2*i}, v{q+2*i}, v{x+4*dt+i}')
            a(f'v_fmac_f32 v{q+2*i+1}, v{x+4*dt+i}, v{x+4*dt+i}')
    for sh in (8,4,2,1):
        for k in range(8): a(f'v_add_f32_dpp v{q+k}, v{q+k}, v{q+k} row_ror:{sh} row_mask:0xf bank_mask:0xf')
    for k in range(8): a(f'v_min_u32 v{q+k}, -2, v{q+k}')
    ps_addr(sT+5)
    a(f'v_lshlrev_b32 v{vB}, 1, v{vLANE}')
    exec_set('0x00010001','0x00010001')
    vm.issue(f'buffer_store_dwordx4 {V(q,4)}, v{vB}, {S(rWS,4)}, s{sT+5} offen sc1')
    vm.issue(f'buffer_store_dwordx4 {V(q+4,4)}, v{vB}, {S(rWS,4)}, s{sT+5} offen offset:16 sc1')
    exec_all(); ts(15)
    d=a.label('fsd'); l=a.label('fsl'); ok=a.label('fsok')
    a(f'''s_lshr_b32 s{sT+6}, s{sJ}, 1
    s_cmp_lg_u32 s{sW}, s{sT+6}
    s_cbranch_scc1 {d}
    s_andn2_b32 s{sT+5}, s{sT+5}, 0x3ff
    s_and_b32 s{sT+6}, s{sJ}, 1
    s_lshl_b32 s{sT+6}, s{sT+6}, 6
    s_add_u32 s{sT+5}, s{sT+5}, s{sT+6}
    v_lshrrev_b32 v{vA}, 3, v{vLANE}
    v_and_b32 v{vB}, 7, v{vLANE}
    v_lshlrev_b32 v{vB}, 3, v{vB}
    v_lshl_add_u32 v{vA}, v{vA}, 7, v{vB}
    v_lshlrev_b32 v{vB}, 2, v{vLANE}''')
    st1_addr(sT+6)
    a(f'''s_waitcnt vmcnt(0)
    {l}:
    buffer_load_dwordx2 {V(x,2)}, v{vA}, {S(rWS,4)}, s{sT+5} offen sc1
    s_waitcnt vmcnt(0)
    v_max_u32 v{x+2}, v{x}, v{x+1}
    v_cmp_eq_u32 vcc, -1, v{x+2}
    s_cbranch_vccz {ok}''')
    spin_check(l); a(f'{ok}:')
    for k in range(2): a(f'v_add_f32_dpp v{x+k}, v{x+k}, v{x+k} row_ror:8 row_mask:0xf bank_mask:0xf')
    for op in ('v_permlane16_swap_b32','v_permlane32_swap_b32'):
        for k in range(2): a(f'v_mov_b32 v{x+2+k}, v{x+k}')
        for k in range(2): a(f'{op} v{x+k}, v{x+2+k}')
        for k in range(2): a(f'v_add_f32 v{x+k}, v{x+k}, v{x+2+k}')
    ln_final(x,x+1,0)
    a(f'''v_cmp_gt_u32 vcc, 8, v{vLANE}
    v_cndmask_b32 v{x}, v{x}, v{x+1}, vcc
    v_min_u32 v{x}, -2, v{x}''')
    exec_set(0xffff,0)
    a(f'buffer_store_dword v{x}, v{vB}, {S(rWS,4)}, s{sT+6} offen sc1')
    exec_all()
    a(f'{d}:')
    vm.drain(); ts(16)

c=p0(); p0b(c)
stage_consume(R1,RG12,'r1');
vm.cond=True; stage_issue(R2,RG12,'r2'); vm.cond=False
barrier0_wait(); xid_check(); ts(5)
a('L_layer:')
conv(); stop('conv')
emit_retry=g1(); stop('g1')
g2_head()
a(f's_cmp_lg_u32 s{sLAY}, 0\ns_cbranch_scc1 L_last')
import copy
st=copy.deepcopy((vm.ops,vm.dc,vm.du,vm.tags,lg.ops,lg.dc,lg.du,lg.tags))
g2(0); stop('g2')
ts_dump(0)
a(f'''s_mov_b32 s{sLAY}, 1
s_mov_b32 s{sA2L}, {A2+2*MB}
s_mov_b32 s{sX1L}, {X1+2*MB}
s_mov_b32 s{sSTL}, {ST+16384}''')
barrier(); ts(5)
a('s_branch L_layer\nL_last:')
vm.ops,vm.dc,vm.du,vm.tags,lg.ops,lg.dc,lg.du,lg.tags=st
g2(1)
ts_dump(256)
if opt['probe']>=0:
    a('''s_add_u32 s101, s101, 10000
    L_probe:
    s_memrealtime s[96:97]
    s_waitcnt lgkmcnt(0)
    s_sub_u32 s96, s96, s101
    s_cmp_lt_i32 s96, 0
    s_cbranch_scc1 L_probe''')
a('L_end:\ns_endpgm')
emit_retry()
a(f'''L_bail:
s_mov_b64 exec, -1
v_mov_b32 v{vW}, 32
v_mov_b32 v{vW+1}, 1
global_atomic_add v{vW}, v{vW+1}, {S(sDBG,2)} sc1
s_endpgm''')
lines=fix_hazards([l for l in a.lines if '@WARM@' not in l])
n=NAME+'_kernel'
hdr=open('cdna_kernels/'+NAME+'.s.ref').read().split('; Override')[0]
s=hdr+f'; @launch grid=(256,1,1) block=(256,1,1) lds={LDS_END}\n.amdgcn_target "amdgcn-amd-amdhsa--gfx950"\n.text\n'+khead(n)+'\n'.join(lines)+'\n.section .rodata,"a"\n'+kdesc(n,512,102,256)
sys.stdout.write(s)
```

```python
import sys, math
from asmlib import *
opt=dict(ts=0, stop='', warm=1, forceglobal=0, probe=-1, play=0, early=0, only=-1)
for s in sys.argv[1:]:
    k,v=s.split('='); opt[k]=int(v) if v.lstrip('-').isdigit() else v
TS=opt['ts']; STOP=opt['stop']
MB=1<<20
A2=0; X1=4*MB; HB=8*MB; ST=13*MB+MB//2; PS=ST+32768; HF=PS+131072; XID=HF+4096; WSZ=14*MB; DUMP=16*MB
KC=0; KCH=8320; KCP=4160
U=16640; UCH=4608
STAT=25856
XT=27648; RED=XT+65536; LDS_END=163840
TAB=XT; TROW=528; TCH=53*TROW; KT=XT+2*TCH; KTCH=1408
BASE=XT; EXCH=XT+16384
RG12=(XT+58880,19328); RG3=(XT+32768,25856); RG45=(RED,17664)
sX=4;sLA=6;sAI=8;sCR=10;sCI=12;sLD=14;sDS=16;sW1=20;sW2=22;sOUT=24;sDBG=26;sWS=28
rWS=32;rW1=36;rW2=40;rOUT=44
sW=48;sCP=49;sRB=50;sJ=51;sLAY=52;sLOC=53;sOB=54;sXCC=55;sSPIN=56;sKH=57;sD0=58;sD1=60
sA2L=62;sX1L=63;sSTL=64;sW1B=65;sW2B=66;sCH=67
rX=68
sT=72
def S(n,k=1): return f's{n}' if k==1 else f's[{n}:{n+k-1}]'
def V(n,k=1): return f'v{n}' if k==1 else f'v[{n}:{n+k-1}]'
vTID=0;vLANE=1;vCS=2;vXT=14;vTS=18;vW=20
def W1R(t,ks,k=4,o=0):
    i=(t*16+ks)*4+o
    return (f'a[{176+i}:{176+i+k-1}]' if k>1 else f'a{176+i}') if i<80 else V(144+i-80,k)
def W2R(ks,dt,k=4,o=0):
    i=(ks*4+dt)*4+o
    return f'a[{i}:{i+k-1}]'
MF='v_mfma_f32_16x16x32_bf16'
a=Asm(); vm=Ctr(a,'vmcnt',63); lg=Ctr(a,'lgkmcnt',15); vm.condreg=sLAY
def ts(i):
    if opt['probe']>=0:
        if i==0 and opt['early']: a('s_mov_b32 s100, s96\ns_mov_b32 s101, s96')
        elif i==0: a('s_memrealtime s[96:97]\ns_waitcnt lgkmcnt(0)\ns_mov_b32 s100, s96\ns_mov_b32 s101, s96'); lg.reset()
        elif i==opt['probe']:
            l=a.label('pr')
            a(f's_cmp_lg_u32 s{sLAY}, {opt["play"]}\ns_cbranch_scc1 {l}\ns_memrealtime s[96:97]\ns_waitcnt lgkmcnt(0)\ns_mov_b32 s101, s96\n{l}:')
    if TS: a(f's_memrealtime s[96:97]\ns_waitcnt lgkmcnt(0)\nv_writelane_b32 v{vTS}, s96, {i}'); lg.reset()
def ts_dump(slot):
    if TS:
        a(f'''s_lshl_b32 s96, s2, 2
        s_add_u32 s96, s96, s{sW}
        s_mul_i32 s96, s96, 768
        s_add_u32 s96, s96, {slot}
        s_add_u32 s98, s{sWS}, {DUMP}
        s_addc_u32 s99, s{sWS+1}, 0
        v_lshl_add_u32 v19, v{vLANE}, 2, s96''')
        vm.issue(f'global_store_dword v19, v{vTS}, s[98:99]')
def exec_set(lo,hi): a(f's_mov_b32 exec_lo, {lo}\ns_mov_b32 exec_hi, {hi}')
def exec_all(): a('s_mov_b64 exec, -1')
def spin_check(lbl):
    a(f's_sub_u32 s{sSPIN}, s{sSPIN}, 1\ns_cbranch_scc1 L_bail\ns_branch {lbl}')
def barrier(): a('s_barrier')
def stop(name):
    if STOP==name:
        ts_dump(0); a('s_waitcnt vmcnt(0) lgkmcnt(0)\ns_endpgm')

vS=vW+112
def w1_addr():
    for k in range(3):
        a(f'''v_add_u32 v{vS+3}, {64*k}, v{vLANE}
        v_mul_u32_u24 v{vS+4}, 0xaaab, v{vS+3}
        v_lshrrev_b32 v{vS+4}, 18, v{vS+4}
        v_mul_u32_u24 v{vS+5}, 6, v{vS+4}
        v_sub_u32 v{vS+3}, v{vS+3}, v{vS+5}
        v_mul_u32_u24 v{vS+4}, 2752, v{vS+4}
        v_lshl_add_u32 v{vS+k}, v{vS+3}, 4, v{vS+4}''')
def swz_addr(vd,rowshift,tmp):
    a(f'''v_lshrrev_b32 v{tmp}, 3, v{vLANE}
    v_and_b32 v{vd}, 6, v{tmp}
    v_xor_b32 v{vd}, v{vd}, v{vLANE}
    v_and_b32 v{vd}, 7, v{vd}
    v_lshlrev_b32 v{vd}, 4, v{vd}
    v_lshl_add_u32 v{vd}, v{tmp}, {rowshift}, v{vd}''')
def w2_tiles(ks):
    if ks==10: return (16*8, 172+16*8)
    jj,k=divmod(ks,5); ta,tb=[(0,1),(3,4),(6,7),(9,10),(2,5)][k]
    return (172*jj+16*ta,172*jj+16*tb)
def stage_issue(items,region,tag):
    base,stride=region
    if any(k=='w1' for k,_ in items): w1_addr()
    if any(k=='w2' for k,_ in items): swz_addr(vS+3,10,vS+4)
    a(f's_mul_i32 s{sT}, s{sW}, {stride}\ns_add_u32 m0, s{sT}, {base}')
    first=True
    for kind,ks in items:
        if kind=='w1':
            a(f's_add_u32 s{sT+1}, s{sW1B}, {ks*88064}')
            for k in range(3):
                if not first: a('s_addk_i32 m0, 1024')
                first=False
                vm.issue(f'buffer_load_dwordx4 v{vS+k}, {S(rW1,4)}, s{sT+1} offen lds',tag)
        else:
            fa,fb=w2_tiles(ks)
            for k in range(4):
                f0=(fa if k<2 else fb)+8*(k&1)
                if not first: a('s_addk_i32 m0, 1024')
                first=False
                a(f's_add_u32 s{sT+1}, s{sW2B}, {f0*1024}')
                vm.issue(f'buffer_load_dwordx4 v{vS+3}, {S(rW2,4)}, s{sT+1} offen lds',tag)
def stage_consume(items,region,tag):
    base,stride=region
    a(f's_mul_i32 s{sT}, s{sW}, {stride}\ns_add_u32 s{sT}, s{sT}, {base}')
    if any(k=='w1' for k,_ in items):
        a(f'''v_lshrrev_b32 v{vS}, 2, v{vLANE}
        v_mul_u32_u24 v{vS}, 96, v{vS}
        v_and_b32 v{vS+1}, 3, v{vLANE}
        v_lshl_add_u32 v{vS}, v{vS+1}, 3, v{vS}
        v_add_u32 v{vS}, s{sT}, v{vS}''')
    if any(k=='w2' for k,_ in items):
        a(f's_sub_u32 s{sT}, s{sT}, {XT}')
        for dt in range(4): a(f'v_add_u32 v{vS+1+dt}, s{sT}, v{vXT+dt}')
    vm.wait(tag)
    off=0
    for kind,ks in items:
        if kind=='w1':
            for t in range(3):
                for hh in range(2): lg.issue(f'ds_read_b64_tr_b16 {W1R(t,ks,2,2*hh)}, v{vS} offset:{off+hh*1536+t*32}')
            off+=3072
        else:
            for dt in range(4):
                for hh in range(2): lg.issue(f'ds_read_b64_tr_b16 {W2R(ks,dt,2,2*hh)}, v{vS+1+dt} offset:{off+hh*2048}')
            off+=4096
    lg.drain()
R1=[('w1',k) for k in range(0,6)]; R2=[('w1',k) for k in range(6,12)]
R3=[('w1',k) for k in range(12,16)]+[('w2',k) for k in range(0,3)]
R4=[('w2',k) for k in range(3,7)]; R5=[('w2',k) for k in range(7,11)]
def w1_finish():
    l=a.label('w3skip')
    a(f's_cmp_lg_u32 s{sW}, 3\ns_cbranch_scc1 {l}')
    exec_set('0xf000f000','0xf000f000'); a(f'v_mov_b32 v{vW}, 0x3f803f80')
    for ks in range(16):
        for o in range(4):
            r=W1R(1,ks,1,o); a((f'v_accvgpr_write_b32 {r}, v{vW}') if r[0]=='a' else f'v_mov_b32 {r}, v{vW}')
    exec_all(); a(f'{l}:')
    for k in range(4): a(f'v_mov_b32 v{vW+k}, 0x3b003b00')
    for ks in range(16):
        for t in range(3): a(f'{MF} {V(vCS+4*t,4)}, {W1R(t,ks)}, {V(vW,4)}, '+('0' if ks==0 else V(vCS+4*t,4)))

def pipeline(mfs, loadfn, ctr, slots, maxout, ahead, per=2, hooks=None, gates=None, release=None):
    hooks=hooks or {}; gates=gates or {}
    first={};last={}
    for i,(f,us) in enumerate(mfs):
        for u in us: first.setdefault(u,i); last[u]=i
    order=sorted(first,key=lambda u:first[u]); nxt=0; free=list(slots); reg={}
    def try_issue(i,budget):
        nonlocal nxt
        while nxt<len(order) and budget>0:
            u=order[nxt]
            must=first[u]<=i
            if not must:
                if first[u]-i>ahead or not free or gates.get(u,-1)>i: break
                if ctr.pending()+len(loadfn(u,0))>maxout: break
            assert free, ('no slot',i,u)
            reg[u]=free.pop(0)
            for t in loadfn(u,reg[u]): ctr.issue(t,('f',u)); budget-=1
            nxt+=1
    for i,(f,us) in enumerate(mfs):
        if i in hooks: hooks[i]()
        try_issue(i, 99 if i==0 else per)
        while nxt<len(order) and first[order[nxt]]<=i: try_issue(i,1)
        for u in us: ctr.wait(('f',u))
        a(f(reg))
        for u in set(us):
            if last[u]==i:
                if release and nxt>=len(order): release(reg[u])
                free.append(reg[u])
    if len(mfs) in hooks: hooks[len(mfs)]()

def cmul(d,x,y):
    a(f'v_pk_mul_f32 {V(d,2)}, {V(x,2)}, {V(y,2)} op_sel:[0,0] op_sel_hi:[0,1]')
    return f'v_pk_fma_f32 {V(d,2)}, {V(x,2)}, {V(y,2)}, {V(d,2)} op_sel:[1,1,0] op_sel_hi:[1,0,1] neg_lo:[0,1,0]'
def cmuls(L):
    for t in [cmul(*x) for x in L]: a(t)
def p0():
    if opt['early']: a('s_memrealtime s[96:97]')
    a(f'''s_cmp_ge_u32 s2, 256
    s_cbranch_scc1 L_end
    s_load_dwordx16 s[4:19], s[0:1], 0
    s_load_dwordx8 s[20:27], s[0:1], 64
    s_load_dwordx2 s[28:29], s[0:1], 96
    v_lshrrev_b32 v{vW}, 6, v0
    v_and_b32 v{vLANE}, 63, v0
    v_readfirstlane_b32 s{sW}, v{vW}
    s_getreg_b32 s{sXCC}, hwreg(HW_REG_XCC_ID, 0, 4)
    s_and_b32 s{sT}, s2, 7
    s_lshr_b32 s{sT+1}, s2, 3
    s_lshl_b32 s{sCP}, s{sT}, 5
    s_add_u32 s{sCP}, s{sCP}, s{sT+1}
    s_lshr_b32 s{sRB}, s{sCP}, 3
    s_and_b32 s{sJ}, s{sCP}, 7
    s_lshl_b32 s{sOB}, s{sT}, 5
    s_and_b32 s{sT+2}, s{sRB}, 1
    s_lshl_b32 s{sT+2}, s{sT+2}, 4
    s_add_u32 s{sOB}, s{sOB}, s{sT+2}
    s_bfe_u32 s{sT+2}, s{sRB}, 0x10001
    s_add_u32 s{sOB}, s{sOB}, s{sT+2}
    s_and_b32 s{sKH}, s{sW}, 1
    s_lshr_b32 s{sCH}, s{sW}, 1
    s_mov_b32 s{sLAY}, 0
    s_mov_b32 s{sSPIN}, 0x40000
    s_mov_b32 s{sA2L}, {A2}
    s_mov_b32 s{sX1L}, {X1}
    s_mov_b32 s{sSTL}, {ST}
    s_mul_i32 s{sW1B}, s{sJ}, 344
    s_mul_i32 s{sT+2}, s{sW}, 96
    s_add_u32 s{sW1B}, s{sW1B}, s{sT+2}
    s_mul_i32 s{sW2B}, s{sW}, {344*1024}
    s_lshl_b32 s{sT+2}, s{sJ}, 7
    s_add_u32 s{sW2B}, s{sW2B}, s{sT+2}''')
    if TS: a(f'v_mov_b32 v{vTS}, 0')
    vM=vW
    vL16=vW+4; vST=vW+5; vP=vW+6; vXB=vW+7; vXD=vW+8; vT0=vW+9
    for k in range(4): a(f'v_mov_b32 v{vM+k}, -1')
    a(f'''v_lshlrev_b32 v{vL16}, 4, v{vLANE}
    v_and_b32 v{vST}, 1, v{vLANE}
    v_lshlrev_b32 v{vST}, 5, v{vST}
    v_lshrrev_b32 v{vT0}, 5, v0
    v_lshl_add_u32 v{vST}, v{vT0}, 2, v{vST}
    v_lshlrev_b32 v{vP}, 1, v0
    v_lshlrev_b32 v{vXB}, 5, v0
    v_lshrrev_b32 v{vT0}, 4, v{vLANE}
    v_and_b32 v{vXD}, 15, v{vLANE}
    v_lshlrev_b32 v{vXD}, 4, v{vXD}
    v_lshl_add_u32 v{vXD}, v{vT0}, 10, v{vXD}
    s_lshl_b32 s{sT+3}, s2, 13
    s_lshl_b32 s{sT+4}, s{sW}, 11
    s_add_u32 s{sT+4}, s{sT+4}, s{sT+3}
    s_lshl_b32 s{sT+5}, s2, 6
    s_add_u32 s{sT+5}, s{sT+5}, {ST}
    s_lshl_b32 s{sT+6}, s{sCP}, 9
    v_add_u32 v{vP}, s{sT+6}, v{vP}
    s_lshl_b32 s{sT+6}, s{sCP}, 1
    s_add_u32 s{sT+6}, s{sT+6}, s{sCH}
    s_lshl_b32 s{sT+6}, s{sT+6}, 1
    v_mov_b32 v{vT0+1}, s{sT+6}
    s_lshl_b32 s{sT+7}, s{sCP}, 2
    s_waitcnt lgkmcnt(0)''')
    ts(0)
    for r,p,n in ((rWS,sWS,WSZ),(rX,sX,2*MB),(rW1,sW1,512*2752),(rW2,sW2,1376*1024),(rOUT,sOUT,2*MB)):
        a(f's_mov_b32 s{r}, s{p}\ns_mov_b32 s{r+1}, s{p+1}\ns_mov_b32 s{r+2}, {n}\ns_mov_b32 s{r+3}, 0x20000')
    vm.issue(f'buffer_store_dwordx4 {V(vM,4)}, v{vL16}, {S(rWS,4)}, s{sT+4} offen sc1')
    vm.issue(f'buffer_store_dwordx4 {V(vM,4)}, v{vL16}, {S(rWS,4)}, s{sT+4} offen offset:1024 sc1')
    exec_set('0xc0000000','0xc0000000')
    vm.issue(f'buffer_store_dword v{vM}, v{vST}, {S(rWS,4)}, s{sT+5} offen sc1')
    exec_set(1,0)
    a(f'''s_lshl_b32 s{sT+8}, s{sRB}, 7
    s_lshl_b32 s{sT+9}, s{sJ}, 4
    s_add_u32 s{sT+8}, s{sT+8}, s{sT+9}
    s_lshl_b32 s{sT+9}, s{sW}, 2
    s_add_u32 s{sT+8}, s{sT+8}, s{sT+9}
    s_add_u32 s{sT+9}, s{sT+8}, {XID}
    s_add_u32 s{sT+8}, s{sT+8}, {HF}
    v_mov_b32 v{vT0+2}, s{sXCC}''')
    vm.issue(f'buffer_store_dword v{vT0+2}, v{vL16}, {S(rWS,4)}, s{sT+9} offen sc1')
    vm.issue(f'buffer_store_dword v{vL16}, v{vL16}, {S(rWS,4)}, s{sT+8} offen sc1','fill0')
    exec_all()
    vPar=vW+12
    vXR=vW+20
    a(f's_load_dword s{sD0}, {S(sDS,2)}, s{sT+7}')
    a(f's_lshl_b32 s{sT+10}, s{sW}, 8\ns_add_u32 s{sT+10}, s{sT+10}, s{sT+3}\ns_add_u32 s{sT+11}, s{sT+10}, 4096')
    a(f's_lshl_b32 m0, s{sW}, 11')
    vm.issue(f'buffer_load_dwordx4 v{vXD}, {S(rX,4)}, s{sT+10} offen lds')
    a('s_addk_i32 m0, 1024')
    vm.issue(f'buffer_load_dwordx4 v{vXD}, {S(rX,4)}, s{sT+11} offen lds','xs')
    vm.issue(f'buffer_load_dwordx4 {V(vXR,4)}, v{vXB}, {S(rX,4)}, s{sT+3} offen')
    vm.issue(f'buffer_load_dwordx4 {V(vXR+4,4)}, v{vXB}, {S(rX,4)}, s{sT+3} offen offset:16','xr')
    vm.issue(f'global_load_ushort v{vPar}, v{vT0+1}, {S(sLD,2)}')
    for k,p in enumerate((sLA,sAI,sCR,sCI)): vm.issue(f'global_load_ushort v{vPar+1+k}, v{vP}, {S(p,2)}','par')
    a(f'''s_lshl_b32 s{sT+12}, s{sCP}, 13
    s_lshl_b32 s{sT+13}, s{sW}, 11
    s_add_u32 s{sT+12}, s{sT+12}, s{sT+13}
    s_add_u32 s{sT+12}, s{sT+12}, {X1}''')
    vm.issue(f'buffer_store_dwordx4 {V(vM,4)}, v{vL16}, {S(rWS,4)}, s{sT+12} offen sc1')
    vm.issue(f'buffer_store_dwordx4 {V(vM,4)}, v{vL16}, {S(rWS,4)}, s{sT+12} offen offset:1024 sc1','fill1')
    a(f'''v_lshrrev_b32 v{vT0+2}, 2, v{vLANE}
    v_lshlrev_b32 v{vT0+2}, 7, v{vT0+2}
    v_and_b32 v{vXT}, 3, v{vLANE}
    v_lshl_add_u32 v{vT0+2}, v{vXT}, 3, v{vT0+2}
    v_add_u32 v{vT0+2}, {XT}, v{vT0+2}
    v_bfe_u32 v{vT0}, v{vLANE}, 3, 2''')
    for lt in range(4): a(f'v_xor_b32 v{vXT+lt}, {lt}, v{vT0}\nv_lshl_add_u32 v{vXT+lt}, v{vXT+lt}, 5, v{vT0+2}')
    stage_issue(R1,RG12,'r1')
    if opt['warm']: a('@WARM@')
    vm.wait('fill0'); barrier()
    l=a.label('noarr')
    a(f's_cmp_lg_u32 s{sW}, 3\ns_cbranch_scc1 {l}')
    a(f'''s_and_b32 s{sT+14}, s2, 3
    s_lshl_b32 s{sT+14}, s{sT+14}, 6
    v_mov_b32 v{vT0}, s{sT+14}
    v_mov_b32 v{vT0+2}, 1''')
    exec_set(1,0)
    a(f'global_atomic_add v{vT0}, v{vT0+2}, {S(sDBG,2)} sc1')
    exec_all(); a(f'{l}:')
    return dict(vM=vM,vL16=vL16,vST=vST,vPar=vPar,vXR=vXR,vT0=vT0)

LOG2E=math.log2(math.e)
def rbf(v): a(f'v_cvt_pk_bf16_f32 v{v}, v{v}, v{v}\nv_lshlrev_b32 v{v}, 16, v{v}')
def p0b(c):
    vM,vL16,vST,vPar,vXR,vT0=c['vM'],c['vL16'],c['vST'],c['vPar'],c['vXR'],c['vT0']
    vIX=vW+80
    t0=vW+30
    a(f'''v_and_b32 v{t0}, 127, v0
    v_lshlrev_b32 v{t0}, 4, v{t0}
    v_sub_u32 v{t0}, 2047, v{t0}
    v_cvt_f32_i32 v{t0+1}, v{t0}
    s_mul_i32 s{sT+14}, s{sCH}, {KTCH}
    s_add_u32 s{sT+14}, s{sT+14}, {KT}
    s_mov_b32 s{sT+15}, 0x42804280''')
    for k in range(0,18,2):
        a(f'''v_subrev_f32 v{t0+2}, {fhex(k)}, v{t0+1}
        v_subrev_f32 v{t0+3}, {fhex(k+1)}, v{t0+1}
        v_cvt_pk_bf16_f32 v{t0+2}, v{t0+2}, v{t0+3}
        v_pk_sub_i16 v{t0+2}, v{t0+2}, s{sT+15}''')
        for h in range(2):
            if k+h>16: break
            a(f'''v_subrev_u32 v{t0+4}, {k+h}, v{t0}
            v_min_i32 v{t0+4}, 127, v{t0+4}
            v_bfe_i32 v{t0+5}, v{t0+2}, {16*h}, 16
            v_max_i32 v{t0+4}, v{t0+4}, v{t0+5}
            v_lshl_add_u32 v{vIX+k+h}, v{t0+4}, 1, s{sT+14}''')
    a(f'''s_add_u32 s{sT+15}, s{sT+14}, 1400
    v_mov_b32 v{t0+4}, s{sT+15}
    v_cmp_eq_u32 vcc, 15, v{t0}
    v_cndmask_b32 v{vIX+16}, v{vIX+16}, v{t0+4}, vcc
    v_mov_b32 v{t0+5}, 0''')
    lg.issue(f'ds_write_b32 v{t0+4}, v{t0+5}')
    a(f'''v_lshlrev_b32 v{t0+4}, 2, v0
    v_and_b32 v{t0+4}, 511, v{t0+4}
    s_mul_i32 s{sT+15}, s{sCH}, {UCH}
    v_add_u32 v{t0+4}, s{sT+15}, v{t0+4}''')
    lg.issue(f'ds_write_b32 v{t0+4}, v{t0+5} offset:{U}')
    a(f'''v_bfe_u32 v{t0}, v{vLANE}, 2, 2
    v_lshlrev_b32 v{t0}, 8, v{t0}
    v_lshrrev_b32 v{t0+1}, 4, v{vLANE}
    v_lshl_add_u32 v{t0}, v{t0+1}, 5, v{t0}
    v_and_b32 v{t0+1}, 3, v{vLANE}
    v_lshl_add_u32 v{t0}, v{t0+1}, 3, v{t0}
    s_lshl_b32 s{sT+15}, s{sW}, 11
    v_add_u32 v{t0}, s{sT+15}, v{t0}
    v_mov_b32 v{t0+1}, 0x3f803f80''')
    vm.wait('xs'); ts(1)
    xt=vW+36
    for cb in range(2):
        for hh in range(2): lg.issue(f'ds_read_b64_tr_b16 {V(xt+4*cb+2*hh,2)}, v{t0} offset:{cb*128+hh*1024}','xt')
    vm.wait('xr')
    sS,sQ=t0+2,t0+3
    for k in range(8):
        a(f'v_dot2_f32_bf16 v{sS}, v{vXR+k}, v{t0+1}, '+('0' if k==0 else f'v{sS}'))
        a(f'v_dot2_f32_bf16 v{sQ}, v{vXR+k}, v{vXR+k}, '+('0' if k==0 else f'v{sQ}'))
    lg.wait('xt')
    for k in range(8): a(f'v_min_u32 v{xt+k}, -2, v{xt+k}')
    vm.wait('fill1')
    vm.issue(f'buffer_store_dwordx4 {V(xt,4)}, v{vL16}, {S(rWS,4)}, s{sT+4} offen sc1')
    vm.issue(f'buffer_store_dwordx4 {V(xt+4,4)}, v{vL16}, {S(rWS,4)}, s{sT+4} offen offset:1024 sc1')
    for sh in (8,4,2,1):
        for r in (sS,sQ): a(f'v_add_f32_dpp v{r}, v{r}, v{r} row_ror:{sh} row_mask:0xf bank_mask:0xf')
    for r in (sS,sQ): a(f'v_add_f32_dpp v{r}, v{r}, v{r} row_bcast:15 row_mask:0xa bank_mask:0xf')
    ln_final(sS,sQ,t0+4)
    a(f'''v_and_b32 v{t0+4}, 1, v{vLANE}
    v_cmp_eq_u32 vcc, 1, v{t0+4}
    v_cndmask_b32 v{sS}, v{sQ}, v{sS}, vcc
    v_min_u32 v{sS}, -2, v{sS}''')
    exec_set('0xc0000000','0xc0000000')
    vm.issue(f'buffer_store_dword v{sS}, v{vST}, {S(rWS,4)}, s{sT+5} offen sc1')
    exec_all()
    ts(2)
    a(f's_add_u32 s{sT+12}, s{sT+12}, {2*MB}')
    vm.issue(f'buffer_store_dwordx4 {V(vM,4)}, v{vL16}, {S(rWS,4)}, s{sT+12} offen sc1')
    vm.issue(f'buffer_store_dwordx4 {V(vM,4)}, v{vL16}, {S(rWS,4)}, s{sT+12} offen offset:1024 sc1')
    a2_store_addr(t0,sT+12,t0+1)
    vm.issue(f'buffer_store_dwordx4 {V(vM,4)}, v{t0}, {S(rWS,4)}, s{sT+12} offen sc1')
    vm.issue(f'buffer_store_dwordx4 {V(vM,4)}, v{t0}, {S(rWS,4)}, s{sT+12} offen offset:512 sc1')
    ps_addr(sT+12); st1_addr(sT+13)
    exec_set(0xff,0)
    vm.issue(f'buffer_store_dwordx4 {V(vM,4)}, v{vL16}, {S(rWS,4)}, s{sT+12} offen sc1')
    exec_set(0xf,0)
    vm.issue(f'buffer_store_dwordx4 {V(vM,4)}, v{vL16}, {S(rWS,4)}, s{sT+13} offen sc1')
    exec_all()
    dt,la,ai,cr,ci=[vPar+k for k in range(5)]
    for k in range(5): a(f'v_lshlrev_b32 v{vPar+k}, 16, v{vPar+k}')
    a(f'''v_mul_f32 v{dt}, {fhex(LOG2E)}, v{dt}
    v_mul_f32 v{la}, {fhex(LOG2E)}, v{la}
    v_exp_f32 v{dt}, v{dt}
    v_exp_f32 v{la}, v{la}''')
    rbf(dt); rbf(la)
    E=vW+20
    e1,e8,e256,c2=E,E+2,E+4,E+6
    a(f'''v_mul_f32 v{la}, v{la}, v{dt}
    v_mul_f32 v{ai}, v{ai}, v{dt}
    v_mul_f32 v{cr}, v{cr}, v{dt}
    v_mul_f32 v{ci}, v{ci}, v{dt}
    v_mul_f32 v{la}, {fhex(-LOG2E)}, v{la}
    v_mul_f32 v{ai}, 0.15915494, v{ai}
    v_add_f32 v{c2}, v{cr}, v{cr}
    v_mul_f32 v{c2+1}, -2.0, v{ci}''')
    tm=E+8
    for k,(d,p) in enumerate(((e1,1.0),(e8,8.0),(e256,256.0))):
        a(f'v_mul_f32 v{tm+2*k}, {fhex(p)}, v{la}\nv_mul_f32 v{tm+2*k+1}, {fhex(p)}, v{ai}')
    for k in range(3): a(f'v_exp_f32 v{tm+2*k}, v{tm+2*k}\nv_fract_f32 v{tm+2*k+1}, v{tm+2*k+1}')
    for k,d in enumerate((e1,e8,e256)): a(f'v_cos_f32 v{d}, v{tm+2*k+1}\nv_sin_f32 v{d+1}, v{tm+2*k+1}')
    for k,d in enumerate((e1,e8,e256)): a(f'v_pk_mul_f32 {V(d,2)}, {V(d,2)}, {V(tm+2*k,2)} op_sel_hi:[1,0]')
    vTA=vPar
    a(f'''v_and_b32 v{vTA}, 127, v0
    v_lshlrev_b32 v{vTA}, 2, v{vTA}
    s_mul_i32 s{sT+15}, s{sCH}, {TCH}
    s_add_u32 s{sT+15}, s{sT+15}, {TAB}
    v_add_u32 v{vTA}, s{sT+15}, v{vTA}
    v_xor_b32 v{e8+1}, 0x80000000, v{e8+1}''')
    pk=[vPar+1,vPar+2,vPar+3,vPar+4]; pi=[0]
    def put(row,r):
        p=pk[pi[0]%4]; pi[0]+=1
        a(f'v_cvt_pk_bf16_f32 v{p}, v{r}, v{r+1}')
        lg.issue(f'ds_write_b32 v{vTA}, v{p} offset:{row*TROW}')
    e2,e3,e4,e5,e6,e7=[E+8+2*k for k in range(6)]
    e16,e32,b1,b2,b3=[E+20+2*k for k in range(5)]
    e512,e768,e1024,ta,tb,tc,td=[E+30+2*k for k in range(7)]
    a(f'v_mov_b32 v{pk[3]}, 0x3f80'); lg.issue(f'ds_write_b32 v{vTA}, v{pk[3]}')
    cmuls([(e2,e1,e1),(e16,e8,e8),(b1,c2,e8),(e512,e256,e256)])
    put(1,e1); put(8,e256); put(21,c2)
    cmuls([(e3,e2,e1),(e4,e2,e2),(e32,e16,e16),(b2,c2,e16),(b3,b1,e16),(e768,e512,e256),(e1024,e512,e512),(ta,e256,e2)])
    put(2,e2); put(22,b1); put(12,e512); put(9,ta)
    cmuls([(e5,e4,e1),(e6,e4,e2),(e7,e4,e3),(ta,e256,e4),(tb,e512,e4),(tc,e768,e4),(td,e1024,e256)])
    put(3,e3); put(4,e4); put(23,b2); put(24,b3); put(14,e768); put(16,e1024)
    put(10,ta); put(13,tb); put(15,tc); put(17,td)
    cmuls([(ta,e256,e6),(tb,e1024,e512),(tc,e1024,e768),(td,e1024,e1024)])
    put(5,e5); put(6,e6); put(7,e7)
    put(11,ta); put(18,tb); put(19,tc); put(20,td)
    cur=[c2,b1,b2,b3]; alt=[e2,e3,e4,e5]
    for m in range(1,8):
        cmuls([(alt[k],cur[k],e32) for k in range(4)])
        cur,alt=alt,cur
        for k in range(4): put(21+4*m+k,cur[k])
    vA=E; vB=E+1
    a(f'''v_and_b32 v{vA}, 15, v{vLANE}
    v_mul_u32_u24 v{vA}, {TROW}, v{vA}
    v_and_b32 v{vB}, 48, v{vLANE}
    v_add3_u32 v{vA}, v{vA}, v{vB}, s{sT+15}
    s_mul_i32 s{sT+15}, s{sKH}, {16*TROW}
    s_add_u32 s{sT+15}, s{sT+15}, {21*TROW}
    v_add_u32 v{vB}, s{sT+15}, v{vA}''')
    lg.drain(); ts(3); barrier()
    acc=E+4
    mfs=[]
    for ks in range(8):
        for t in range(2):
            mfs.append((lambda r,ks=ks,t=t: f'{MF} {V(acc+4*t,4)}, {V(r[("A",t,ks)],4)}, {V(r[("B",0,ks)],4)}, '+('0' if ks==0 else V(acc+4*t,4)), [('A',t,ks),('B',0,ks)]))
    def ld(u,r):
        k,t,ks=u
        return [f'ds_read_b128 {V(r,4)}, v{vA if k=="A" else vB} offset:{ks*64+(t*16*TROW if k=="A" else 0)}']
    pipeline(mfs,ld,lg,[E+12+4*k for k in range(11)],15,8)
    t1=E+12
    a(f'''v_and_b32 v{t1}, 15, v{vLANE}
    s_lshl_b32 s{sT+15}, s{sKH}, 4
    v_add_u32 v{t1}, s{sT+15}, v{t1}
    v_lshrrev_b32 v{t1+1}, 4, v{vLANE}
    v_lshlrev_b32 v{t1+2}, 4, v{t1}
    v_lshl_add_u32 v{t1+2}, v{t1+1}, 3, v{t1+2}
    v_lshlrev_b32 v{t1+3}, 3, v{t1}
    v_add_u32 v{t1+3}, 512, v{t1+3}
    v_cmp_eq_u32 vcc, 2, v{t1+1}
    v_cndmask_b32 v{t1+2}, v{t1+2}, v{t1+3}, vcc
    v_add_u32 v{t1+4}, 4, v{t1+2}
    v_lshlrev_b32 v{t1+3}, 2, v{t1}
    v_add_u32 v{t1+5}, 768, v{t1+3}
    v_add_u32 v{t1+3}, 896, v{t1+3}
    v_cmp_eq_u32 vcc, 3, v{t1+1}
    v_cndmask_b32 v{t1+2}, v{t1+2}, v{t1+5}, vcc
    v_cndmask_b32 v{t1+4}, v{t1+4}, v{t1+3}, vcc
    v_add_u32 v{t1+2}, s{sT+14}, v{t1+2}
    v_add_u32 v{t1+4}, s{sT+14}, v{t1+4}
    v_lshlrev_b32 v{t1+3}, 1, v{t1}
    v_lshl_add_u32 v{t1+3}, v{t1+1}, 8, v{t1+3}
    v_add_u32 v{t1+3}, s{sT+14}, v{t1+3}
    v_cvt_pk_bf16_f32 v{acc}, v{acc}, v{acc+1}
    v_cvt_pk_bf16_f32 v{acc+2}, v{acc+2}, v{acc+3}
    v_cvt_pk_bf16_f32 v{acc+4}, v{acc+4}, v{acc+5}
    v_cvt_pk_bf16_f32 v{acc+6}, v{acc+6}, v{acc+7}''')
    lg.issue(f'ds_write_b32 v{t1+2}, v{acc}')
    lg.issue(f'ds_write_b32 v{t1+4}, v{acc+2}')
    exec_set(-1,0)
    lg.issue(f'ds_write_b16 v{t1+3}, v{acc+4} offset:1024')
    exec_set(0xffff,0)
    lg.issue(f'ds_write_b16_d16_hi v{t1+3}, v{acc+4} offset:1088')
    lg.issue(f'ds_write_b16 v{t1+3}, v{acc+6} offset:1152')
    lg.issue(f'ds_write_b16_d16_hi v{t1+3}, v{acc+6} offset:1216')
    exec_all()
    lg.drain(); barrier()
    g=E
    for k in range(17): lg.issue(f'ds_read_u16 v{g+k}, v{vIX+k}',('g',k))
    o=E+20
    a(f'''v_and_b32 v{o+16}, 127, v0
    v_lshlrev_b32 v{o+16}, 5, v{o+16}
    s_mul_i32 s{sT+15}, s{sCH}, {KCH}
    v_add_u32 v{o+16}, s{sT+15}, v{o+16}
    v_mov_b32 v{o+18}, 0
    v_mov_b32 v{o+19}, 0
    v_and_b32 v{o+17}, 7, v{vLANE}
    v_lshlrev_b32 v{o+17}, 3, v{o+17}
    s_mul_i32 s{sT+15}, s{sW}, {KCP}
    v_add_u32 v{o+17}, s{sT+15}, v{o+17}''')
    for k in range(16):
        lg.wait(('g',k+1))
        a(f'v_lshl_or_b32 v{o+(k>>1)+8*(k&1)}, v{g+k+1}, 16, v{g+k}')
    for cpy in range(2):
        for h in range(2): lg.issue(f'ds_write_b128 v{o+16}, {V(o+8*cpy+4*h,4)} offset:{KC+cpy*KCP+16*h}')
    lg.issue(f'ds_write_b64 v{o+17}, {V(o+18,2)} offset:{KC+4096}')
    a(f'''s_and_b32 s{sD1}, s{sD0}, 0xffff0000
    s_lshl_b32 s{sD0}, s{sD0}, 16
    s_mov_b32 s{sD0+1}, s{sD0}
    s_mov_b32 s{sD1+1}, s{sD1}''')
    ts(4)
def ln_final(s,q,t):
    a(f'''v_mul_f32 v{s}, {fhex(-1/512)}, v{s}
    v_mul_f32 v{q}, {fhex(1/512)}, v{q}
    v_fma_f32 v{q}, -v{s}, v{s}, v{q}
    v_max_f32 v{q}, 0, v{q}
    v_add_f32 v{q}, {fhex(1e-5)}, v{q}
    v_rsq_f32 v{q}, v{q}
    v_mul_f32 v{s}, v{s}, v{q}''')
def a2_store_addr(vd,sd,tmp):
    a(f'''v_lshrrev_b32 v{tmp}, 5, v{vLANE}
    v_and_b32 v{vd}, 31, v{vLANE}
    v_lshlrev_b32 v{vd}, 4, v{vd}
    v_lshl_add_u32 v{vd}, v{tmp}, 14, v{vd}
    s_lshl_b32 s{sd}, s{sW}, 2
    s_add_u32 s{sd}, s{sd}, s{sOB}
    s_lshl_b32 s{sd}, s{sd}, 3
    s_add_u32 s{sd}, s{sd}, s{sJ}
    s_lshl_b32 s{sd}, s{sd}, 10
    s_add_u32 s{sd}, s{sd}, {A2+2*MB}''')
def ps_addr(sd):
    a(f'''s_lshl_b32 s{sd}, s{sRB}, 2
    s_add_u32 s{sd}, s{sd}, s{sW}
    s_lshl_b32 s{sd}, s{sd}, 3
    s_add_u32 s{sd}, s{sd}, s{sJ}
    s_lshl_b32 s{sd}, s{sd}, 7
    s_add_u32 s{sd}, s{sd}, {PS}''')
def st1_addr(sd):
    a(f'''s_lshl_b32 s{sd}, s{sJ}, 1
    s_add_u32 s{sd}, s{sd}, s{sOB}
    s_lshl_b32 s{sd}, s{sd}, 6
    s_add_u32 s{sd}, s{sd}, {ST+16384}''')
def barrier0_wait():
    t=vW
    l=a.label('b0'); d=a.label('b0done')
    a(f's_cmp_lg_u32 s{sW}, 3\ns_cbranch_scc1 {d}')
    a(f'v_and_b32 v{t}, 3, v{vLANE}\nv_lshlrev_b32 v{t}, 6, v{t}\n{l}:')
    a(f'global_load_dword v{t+1}, v{t}, {S(sDBG,2)} sc1\ns_waitcnt vmcnt(0)\nv_cmp_gt_u32 vcc, 64, v{t+1}\ns_cbranch_vccz {d}')
    spin_check(l)
    a(f'{d}:'); lg.drain(); barrier()
def xid_check():
    t=vW
    a(f'''v_and_b32 v{t}, 31, v{vLANE}
    v_lshlrev_b32 v{t}, 2, v{t}
    s_lshl_b32 s{sT}, s{sRB}, 7
    s_add_u32 s{sT}, s{sT}, {XID}''')
    vm.issue(f'buffer_load_dword v{t+1}, v{t}, {S(rWS,4)}, s{sT} offen sc1','xid')
    vm.wait('xid')
    a(f'''v_cmp_ne_u32 vcc, s{sXCC}, v{t+1}
    s_nop 1
    s_cmp_eq_u64 vcc, 0
    s_cselect_b32 s{sLOC}, {0 if opt['forceglobal'] else 1}, 0''')

class L0:
    def __enter__(self):
        self.l=a.label('l0'); a(f's_cmp_lg_u32 s{sLAY}, 0\ns_cbranch_scc1 {self.l}'); vm.cond=lg.cond=True
    def __exit__(self,*x):
        a(f'{self.l}:'); vm.cond=lg.cond=False
def maxchain(dst,regs):
    regs=list(regs)
    a(f'v_max3_u32 v{dst}, v{regs[0]}, v{regs[1]}, v{regs[2]}'); regs=regs[3:]
    while len(regs)>=2: a(f'v_max3_u32 v{dst}, v{dst}, v{regs[0]}, v{regs[1]}'); regs=regs[2:]
    if regs: a(f'v_max_u32 v{dst}, v{dst}, v{regs[0]}')

def conv():
    acc=vW; vKA=vW+32; vUB=vW+36; vEX=vW+37; vXS=vW+38; vBR=vW+39; F=vW+40
    xx=F; st=F+8; xf=F+24; uf=F+40; pk=F+56; vGA=F+64; vGS=F+65; t=F+66
    a(f'''v_lshlrev_b32 v{vGA}, 13, v0
    v_lshlrev_b32 v{vGS}, 6, v0
    s_lshl_b32 s{sT+2}, s{sCP}, 5
    s_add_u32 s{sT+2}, s{sT+2}, s{sA2L}''')
    def gather(iss):
        for k in range(2): iss(f'buffer_load_dwordx4 {V(xx+4*k,4)}, v{vGA}, {S(rWS,4)}, s{sT+2} offen offset:{16*k} sc1')
        for k in range(4): iss(f'buffer_load_dwordx4 {V(st+4*k,4)}, v{vGS}, {S(rWS,4)}, s{sSTL} offen offset:{16*k} sc1')
    gather(lambda s: vm.issue(s,'ga'))
    with L0():
        stage_consume(R2,RG12,'r2'); barrier(); stage_issue(R3,RG3,'r3')
    a(f'''v_and_b32 v{t}, 15, v{vLANE}
    v_lshrrev_b32 v{t+1}, 4, v{vLANE}
    v_and_b32 v{t+2}, 1, v{vLANE}
    v_xor_b32 v{t+2}, 1, v{t+2}
    v_mul_u32_u24 v{t+3}, {KCP-2}, v{t+2}
    v_lshl_add_u32 v{t+4}, v{t+1}, 3, v{t}
    v_lshlrev_b32 v{t+4}, 1, v{t+4}
    v_sub_u32 v{t+3}, v{t+3}, v{t+4}
    s_mul_i32 s{sT+3}, s{sCH}, {KCH}
    s_lshl_b32 s{sT+4}, s{sKH}, 8
    s_sub_u32 s{sT+3}, s{sT+3}, s{sT+4}
    s_add_u32 s{sT+3}, s{sT+3}, {KC+4110-192-512}
    v_add_u32 v{vKA}, s{sT+3}, v{t+3}''')
    for m in range(1,4): a(f'v_subrev_u32 v{vKA+m}, {1024*m}, v{vKA}')
    a(f'''v_lshlrev_b32 v{vUB}, 5, v{t}
    v_lshlrev_b32 v{t+3}, 4, v{t+1}
    v_sub_u32 v{vUB}, v{vUB}, v{t+3}
    s_mul_i32 s{sT+3}, s{sCH}, {UCH}
    s_sub_u32 s{sT+3}, s{sT+3}, s{sT+4}
    s_add_u32 s{sT+3}, s{sT+3}, {U+528-192}
    v_add_u32 v{vUB}, s{sT+3}, v{vUB}
    v_lshl_add_u32 v{vBR}, v{t}, 6, v{t+3}
    s_lshl_b32 s{sT+3}, s{sCH}, 13
    s_add_u32 s{sT+3}, s{sT+3}, {BASE}
    v_add_u32 v{vBR}, s{sT+3}, v{vBR}
    s_lshl_b32 s{sT+3}, s{sCH}, 13
    s_add_u32 s{sT+3}, s{sT+3}, {EXCH}
    v_lshl_add_u32 v{vEX}, v{vLANE}, 4, s{sT+3}
    v_and_b32 v{t+2}, 1, v{t+1}
    v_mul_u32_u24 v{t+2}, 3, v{t+2}
    v_xor_b32 v{t+2}, s{sKH}, v{t+2}
    v_lshlrev_b32 v{t+2}, 9, v{t+2}
    v_lshrrev_b32 v{t+3}, 1, v{t+1}
    v_lshl_add_u32 v{t+2}, v{t+3}, 8, v{t+2}
    v_lshl_add_u32 v{vXS}, v{t}, 4, v{t+2}
    v_lshlrev_b32 v{t}, 4, v0
    v_lshlrev_b32 v{t+1}, 5, v0
    s_lshl_b32 s{sT+5}, s{sCP}, 1
    s_add_u32 s{sT+5}, s{sT+5}, s{sCH}
    s_lshl_b32 s{sT+5}, s{sT+5}, 12
    s_add_u32 s{sT+5}, s{sT+5}, s{sX1L}''')
    vm.wait('ga')
    lc=a.label('gchk'); lo=a.label('gok')
    a(f'{lc}:'); maxchain(t+2,range(xx,xx+24))
    a(f'v_cmp_eq_u32 vcc, -1, v{t+2}\ns_cbranch_vccz {lo}')
    gather(a); a('s_waitcnt vmcnt(0)'); spin_check(lc)
    a(f'{lo}:'); ts(6)
    for ch in range(2):
        for k in range(4):
            a(f'v_lshlrev_b32 v{xf+8*ch+2*k}, 16, v{xx+4*ch+k}\nv_and_b32 v{xf+8*ch+2*k+1}, 0xffff0000, v{xx+4*ch+k}')
        for k in range(4): a(f'v_pk_fma_f32 {V(uf+8*ch+2*k,2)}, {V(xf+8*ch+2*k,2)}, {V(st+2*k,2)}, {V(st+8+2*k,2)}')
        for k in range(4): a(f'v_cvt_pk_bf16_f32 v{pk+4*ch+k}, v{uf+8*ch+2*k}, v{uf+8*ch+2*k+1}')
        lg.issue(f'ds_write_b128 v{t}, {V(pk+4*ch,4)} offset:{U+512+ch*UCH}')
    for ch in range(2):
        for k in range(4): a(f'v_pk_fma_f32 {V(xf+8*ch+2*k,2)}, {V(uf+8*ch+2*k,2)}, {S((sD0,sD1)[ch],2)}, {V(xf+8*ch+2*k,2)}')
        for h in range(2): lg.issue(f'ds_write_b128 v{t+1}, {V(xf+8*ch+4*h,4)} offset:{BASE+8192*ch+16*h}')
    KEEP=[(0,3,4,7),(1,2,5,6)]
    for G in range(8):
        a(f'v_mov_b64 {V(acc+4*G,2)}, 0\nv_mov_b64 {V(acc+4*G+2,2)}, 0')
    lg.drain(); barrier(); ts(7)
    l1=a.label('kh1'); l2=a.label('khj')
    a(f's_cmp_lg_u32 s{sKH}, 0\ns_cbranch_scc1 {l1}')
    for G in KEEP[0]: a(f'ds_read_b128 {V(acc+4*G,4)}, v{vBR} offset:{G*1024}')
    a(f's_branch {l2}\n{l1}:')
    for G in KEEP[1]: lg.issue(f'ds_read_b128 {V(acc+4*G,4)}, v{vBR} offset:{G*1024}')
    a(f'{l2}:')
    def ld(u,r):
        k,s,x=u
        if k=='B': return [f'ds_read_b128 {V(r,4)}, v{vUB} offset:{192-64*s+512*x}']
        o=(192-64*s+512*(1-(x&1)))//4
        return [f'ds_read2_b32 {V(r,2)}, v{vKA+(x>>1)} offset0:{o} offset1:{o+1}', f'ds_read2_b32 {V(r+2,2)}, v{vKA+(x>>1)} offset0:{o+2} offset1:{o+3}']
    def mf(s,q,b): return (lambda r: f'{MF} {V(acc+4*(q+b),4)}, {V(r[("A",s,q)],4)}, {V(r[("B",s,b)],4)}, {V(acc+4*(q+b),4)}', [('A',s,q),('B',s,b)])
    mfs=[]
    for s in range(3):
        for q in range(7,-1,-1):
            for b in range(8-q): mfs.append(mf(s,q,b))
    fin={}
    mfs.append((lambda r: fin.update(r) or 's_nop 0', [('A',3,q) for q in range(8)]+[('B',3,q) for q in range(8)]))
    pipeline(mfs,ld,lg,[F+4*k for k in range(21)],15,24)
    used={fin[(k,3,q)] for k in 'AB' for q in range(8)}
    fr=[F+4*k for k in range(21) if F+4*k not in used]
    l1=a.label('tkh1'); l2=a.label('tkhj')
    a(f's_cmp_lg_u32 s{sKH}, 0\ns_cbranch_scc1 {l1}')
    for kh in range(2):
        keep=KEEP[kh]; send=KEEP[1-kh]
        def seq(gs): return [(q,G-q) for q in range(8) for G in gs if q<=G]
        for q,b in seq(send): a(mf(3,q,b)[0](fin))
        ks=seq(keep)
        for n,(q,b) in enumerate(ks):
            a(mf(3,q,b)[0](fin))
            if 3<=n<7: a(f'ds_write_b128 v{vEX}, {V(acc+4*send[n-3],4)} offset:{kh*4096+(n-3)*1024}')
            if n==11: a('s_waitcnt lgkmcnt(0)\ns_barrier')
            if 12<=n<16: a(f'ds_read_b128 {V(fr[n-12],4)}, v{vEX} offset:{(1-kh)*4096+(n-12)*1024}')
        o=acc+4*send[0]; o2=acc+4*send[2]
        for p in range(2):
            a(f's_waitcnt lgkmcnt({2-2*p})')
            d=(o,o2)[p]
            for e in range(2):
                G=keep[2*p+e]; r=fr[2*p+e]
                a(f'v_pk_add_f32 {V(r,2)}, {V(r,2)}, {V(acc+4*G,2)}\nv_pk_add_f32 {V(r+2,2)}, {V(r+2,2)}, {V(acc+4*G+2,2)}')
                a(f'v_cvt_pk_bf16_f32 v{d+2*e}, v{r}, v{r+1}\nv_cvt_pk_bf16_f32 v{d+2*e+1}, v{r+2}, v{r+3}')
            for k in range(4): a(f'v_min_u32 v{d+k}, -2, v{d+k}')
            a(f'v_permlane16_swap_b32 v{d}, v{d+2}\nv_permlane16_swap_b32 v{d+1}, v{d+3}')
            txt=f'buffer_store_dwordx4 {V(d,4)}, v{vXS}, {S(rWS,4)}, s{sT+5} offen offset:{2048*p} sc1'
            if kh==0: a(txt)
            else: vm.issue(txt,'x1st')
        if kh==0: a(f's_branch {l2}\n{l1}:')
    a(f'{l2}:'); lg.reset(); ts(8)

def g1():
    acc=vW; F=vW+48; vXD=vW+80; vCK=vW+81; tv=vW+84; mx=vW+82
    with L0():
        stage_consume(R3,RG3,'r3'); barrier(); stage_issue(R4,RG45,'r4')
    swz_addr(vXD,12,mx)
    a(f'''s_lshl_b32 s{sT+2}, s{sW}, 15
    s_lshl_b32 s{sT+3}, s{sRB}, 7
    s_add_u32 s{sT+2}, s{sT+2}, s{sT+3}
    s_add_u32 s{sT+2}, s{sT+2}, s{sX1L}
    s_lshl_b32 s{sT+3}, s{sW}, 10
    s_add_u32 s{sT+3}, s{sT+3}, {XT}
    v_lshl_add_u32 v{vCK}, v{vLANE}, 4, s{sT+3}''')
    vm.wait('x1st'); barrier(); ts(9)
    def dma(ks,iss):
        a(f's_add_u32 m0, s{sT+3}, {ks*4096}\ns_add_u32 s{sT+4}, s{sT+2}, {ks*131072}')
        iss(f'buffer_load_dwordx4 v{vXD}, {S(rWS,4)}, s{sT+4} offen sc1 lds')
    for ks in range(16): dma(ks,lambda s: vm.issue(s,('x',ks>>2)))
    with L0():
        w1_finish()
        stage_consume(R4,RG45,'r4'); stage_issue(R5,RG45,'r5')
    a(f'''s_mul_i32 s{sT+5}, s{sRB}, {176*1024}
    s_lshr_b32 s{sT+6}, s{sJ}, 1
    s_mul_i32 s{sT+6}, s{sT+6}, {11*1024}
    s_add_u32 s{sT+5}, s{sT+5}, s{sT+6}
    s_add_u32 s{sT+5}, s{sT+5}, {HB}
    s_and_b32 s{sT+7}, s{sJ}, 1
    s_mul_i32 s{sT+6}, s{sT+7}, 5
    s_add_u32 s{sT+8}, s{sT+6}, 4
    s_add_u32 s{sT+6}, s{sT+6}, s{sW}
    s_lshl_b32 s{sT+6}, s{sT+6}, 10
    s_add_u32 s{sT+6}, s{sT+6}, s{sT+5}
    s_cmp_eq_u32 s{sW}, 2
    s_cselect_b32 s{sT+8}, 10, s{sT+8}
    s_cselect_b32 s{sT+7}, s{sT+7}, s{sW}
    s_lshl_b32 s{sT+8}, s{sT+8}, 10
    s_lshl_b32 s{sT+7}, s{sT+7}, 3
    s_add_u32 s{sT+7}, s{sT+7}, s{sT+8}
    s_add_u32 s{sT+7}, s{sT+7}, s{sT+5}''')
    retry=[]
    def chk_read(c):
        vm.wait(('x',c))
        for k in range(4): lg.issue(f'ds_read_b128 {V(tv+4*k,4)}, v{vCK} offset:{(4*c+k)*4096}',('ck',c))
    def chk_test(c):
        lg.wait(('ck',c))
        lr=a.label('xre'); lb=a.label('xbk')
        a(f'{lb}:'); maxchain(mx,range(tv,tv+16))
        a(f'v_cmp_eq_u32 vcc, -1, v{mx}\ns_cbranch_vccnz {lr}')
        barrier(); retry.append((lr,lb,c))
    chk_read(0); chk_test(0); ts(10)
    def ld(u,r):
        ks,lt=u
        return [f'ds_read_b64_tr_b16 {V(r+2*hh,2)}, v{vXT+lt} offset:{ks*4096+hh*2048}' for hh in range(2)]
    l3=a.label('g1w3'); lj=a.label('g1j')
    a(f's_cmp_eq_u32 s{sW}, 3\ns_cbranch_scc1 {l3}')
    import copy
    st=copy.deepcopy((vm.ops,vm.dc,vm.du,vm.tags,lg.ops,lg.dc,lg.du,lg.tags))
    for var in range(2):
        vm.ops,vm.dc,vm.du,vm.tags,lg.ops,lg.dc,lg.du,lg.tags=copy.deepcopy(st)
        mfs=[]
        for ks in range(16):
            for lt in range(4):
                for t in range(3):
                    def f(r,ks=ks,lt=lt,t=t):
                        x=V(r[(ks,lt)],4); A=x if (var==1 and t==2) else W1R(t,ks); d=V(acc+16*t+4*lt,4)
                        return f'{MF} {d}, {A}, {x}, '+('0' if ks==0 else d)
                    mfs.append((f,[(ks,lt)]))
        hooks={};gates={}
        for c in range(1,4):
            hooks[48*c-30]=lambda c=c: chk_read(c)
            hooks[48*c-18]=lambda c=c: chk_test(c)
            for ks in range(4*c,4*c+4):
                for lt in range(4): gates[(ks,lt)]=48*c-18
        pipeline(mfs,ld,lg,[F+4*k for k in range(8)],12,15,hooks=hooks,gates=gates)
        t=F
        if var==1:
            a(f'''v_lshlrev_b32 v{t}, 2, v{vLANE}
            v_and_b32 v{t+1}, 3, v{vLANE}
            v_cmp_eq_u32 s[{sT+10}:{sT+11}], 1, v{t+1}
            v_cmp_eq_u32 s[{sT+12}:{sT+13}], 2, v{t+1}
            v_cmp_eq_u32 vcc, 3, v{t+1}''')
            exec_set(0,'0xffff0000')
            for lt in range(4): a(f'ds_write_b32 v{t}, v{acc+16+4*lt} offset:{STAT-192+64*lt}')
            exec_all()
            a('s_waitcnt lgkmcnt(0)\ns_barrier')
            for lt in range(4):
                q=acc+32+4*lt
                a(f'''v_cndmask_b32 v{q}, v{q}, v{q+1}, s[{sT+10}:{sT+11}]
                v_cndmask_b32 v{q}, v{q}, v{q+2}, s[{sT+12}:{sT+13}]
                v_cndmask_b32 v{q}, v{q}, v{q+3}, vcc''')
            a(f'v_and_b32 v{t}, 60, v{t}')
            exec_set('0x00f0000f','0xf0000f00')
            for lt in range(4): a(f'ds_write_b32 v{t}, v{acc+32+4*lt} offset:{STAT+256+64*lt}')
            exec_set(0,'0xffff0000')
            for k in range(16): a(f'v_mov_b32 v{acc+16+k}, -1.0')
            for k in range(4): a(f'v_mov_b32 v{vCS+4+k}, 0')
            exec_all()
        else:
            a(f'v_lshlrev_b32 v{t}, 2, v{vLANE}\nv_and_b32 v{t}, 60, v{t}\ns_barrier\ns_branch {lj}\n{l3}:')
    a(f'{lj}:'); lg.reset(); ts(11)
    t=F; m=F+2; pk=F+8; vL=F+6
    a(f'v_add_u32 v{t}, {STAT}, v{t}')
    lg.issue(f'ds_read2_b32 {V(m,2)}, v{t} offset0:0 offset1:16'); lg.issue(f'ds_read2_b32 {V(m+2,2)}, v{t} offset0:32 offset1:48')
    a(f'v_lshlrev_b32 v{vL}, 4, v{vLANE}')
    lg.drain()
    for lt in range(4):
        for tt in range(3):
            r=acc+16*tt+4*lt
            for i in range(4): a(f'v_fma_f32 v{r+i}, -v{m+lt}, v{vCS+4*tt+i}, v{r+i}')
            for h in range(2):
                p=pk+6*lt+2*tt+h
                a(f'v_cvt_pk_bf16_f32 v{p}, v{r+2*h}, v{r+2*h+1}\nv_pk_max_i16 v{p}, v{p}, 0')
    lG=a.label('hglob'); lD=a.label('hdone')
    a(f's_cmp_eq_u32 s{sLOC}, 0\ns_cbranch_scc1 {lG}')
    for glob in range(2):
        sc=' sc1' if glob else ''
        for lt in range(4):
            a(f's_add_u32 s{sT+8}, s{sT+6}, {lt*45056}')
            a(f'buffer_store_dwordx4 {V(pk+6*lt,4)}, v{vL}, {S(rWS,4)}, s{sT+8} offen{sc}')
        l=a.label('h3'); a(f's_cmp_eq_u32 s{sW}, 3\ns_cbranch_scc1 {l}')
        for lt in range(4):
            a(f's_add_u32 s{sT+8}, s{sT+7}, {lt*45056}')
            a(f'buffer_store_dwordx2 {V(pk+6*lt+4,2)}, v{vL}, {S(rWS,4)}, s{sT+8} offen{sc}')
        a(f'''{l}:
        s_lshl_b32 s{sT+8}, s{sRB}, 7
        s_lshl_b32 s{sT+9}, s{sJ}, 4
        s_add_u32 s{sT+8}, s{sT+8}, s{sT+9}
        s_lshl_b32 s{sT+9}, s{sW}, 2
        s_add_u32 s{sT+8}, s{sT+8}, s{sT+9}
        s_add_u32 s{sT+8}, s{sT+8}, {HF}
        s_add_u32 s{sT+9}, s{sLAY}, 1
        v_mov_b32 v{t}, s{sT+9}
        s_waitcnt vmcnt(0)''')
        exec_set(1,0)
        a(f'buffer_store_dword v{t}, v{vL}, {S(rWS,4)}, s{sT+8} offen{sc}')
        exec_all()
        if not glob: a(f's_branch {lD}\n{lG}:')
    a(f'{lD}:'); vm.reset(); ts(12)
    def emit_retry():
        for lr,lb,c in retry:
            a(f'{lr}:')
            for ks in range(4*c,4*c+4): dma(ks,a)
            a('s_waitcnt vmcnt(0)')
            for k in range(4): a(f'ds_read_b128 {V(tv+4*k,4)}, v{vCK} offset:{(4*c+k)*4096}')
            a('s_waitcnt lgkmcnt(0)'); spin_check(lb)
    return emit_retry

def g2_head():
    t=vW+36
    vL=vW+32
    a(f'''v_lshlrev_b32 v{vL}, 4, v{vLANE}
    v_and_b32 v{t}, 7, v{vLANE}
    v_lshlrev_b32 v{t}, 2, v{t}
    s_lshl_b32 s{sT+2}, s{sRB}, 7
    s_lshl_b32 s{sT+3}, s{sW}, 5
    s_add_u32 s{sT+2}, s{sT+2}, s{sT+3}
    s_add_u32 s{sT+2}, s{sT+2}, {HF}
    s_mul_i32 s{sT+3}, s{sRB}, {176*1024}
    s_mul_i32 s{sT+4}, s{sW}, {11*1024}
    s_add_u32 s{sT+3}, s{sT+3}, s{sT+4}
    s_add_u32 s{sT+3}, s{sT+3}, {HB}''')
    for r in range(4):
        a(f'''s_add_u32 s{sT+4}, s{sW}, {r+1}
        s_and_b32 s{sT+4}, s{sT+4}, 3
        s_mul_i32 s{sT+8+3*r}, s{sT+4}, 45056
        s_add_u32 s{sT+8+3*r}, s{sT+8+3*r}, s{sT+3}
        s_add_u32 s{sT+9+3*r}, s{sT+8+3*r}, 4096
        s_add_u32 s{sT+10+3*r}, s{sT+8+3*r}, 8192''')
        if r<3: a(f's_mul_i32 s{sT+4}, s{sT+4}, 12288\ns_add_u32 s{sT+5+r}, s{sT+4}, {RED+4096*r}')
    with L0():
        stage_consume(R5,RG45,'r5'); barrier()
    l=a.label('hp'); d=a.label('hpd')
    a(f'''{l}:
    buffer_load_dword v{t+1}, v{t}, {S(rWS,4)}, s{sT+2} offen sc1
    s_waitcnt vmcnt(0)
    v_cmp_ge_u32 vcc, s{sLAY}, v{t+1}
    s_cbranch_vccz {d}''')
    spin_check(l); a(f'{d}:'); vm.reset(); ts(13)
def g2(layer):
    acc=vW; vL=vW+32; vR=vW+33; vA=vW+34; vB=vW+35; F=vW+36
    slots=[F+4*k for k in range(22)]
    res=slots[-11:]; slots=slots[:11]
    P=res[0]; T=res[4]; XR=res[8]; RS=res[10]
    mfs=[]
    for r in range(4):
        for ks in range(11):
            for dt in range(4):
                def f(rg,r=r,ks=ks,dt=dt):
                    h=V(rg[(r,ks)],4); w=W2R(ks,dt); d=V(acc+16*(r&1)+4*dt,4)
                    A,B=(h,w) if layer==0 else (w,h)
                    return f'{MF} {d}, {A}, {B}, '+('0' if ks==0 else d)
                mfs.append((f,[(r,ks)]))
    def ld(u,rg):
        r,ks=u
        return [f'buffer_load_dwordx4 {V(rg,4)}, v{vL}, {S(rWS,4)}, s{sT+8+3*r+(ks>>2)} offen offset:{(ks&3)*1024} sc1']
    hooks={}
    def add(i,fn):
        if i in hooks:
            g=hooks[i]; hooks[i]=lambda: (g(),fn())
        else: hooks[i]=fn
    for r in range(3):
        add(44*(r+1)+2,lambda r=r: a(f'v_add_u32 v{vR}, s{sT+5+r}, v{vL}'))
        for dt in range(4):
            add(44*(r+1)+4+2*dt,lambda r=r,dt=dt: lg.issue(f'ds_write_b128 v{vR}, {V(acc+16*(r&1)+4*dt,4)} offset:{dt*1024}'))
    b=132+14
    def mid():
        a(f's_mul_i32 s{sT+4}, s{sW}, 12288\ns_add_u32 s{sT+4}, s{sT+4}, {RED}\nv_add_u32 v{vR}, s{sT+4}, v{vL}')
        lg.drain(); barrier()
        for dt in range(4): lg.issue(f'ds_read_b128 {V(P+4*dt,4)}, v{vR} offset:{dt*1024}')
        for dt in range(4): lg.issue(f'ds_read_b128 {V(T+4*dt,4)}, v{vR} offset:{4096+dt*1024}','p1')
        for dt in range(4): lg.issue(f'ds_read_b128 {V(acc+4*dt,4)}, v{vR} offset:{8192+dt*1024}','p2')
    add(b,mid)
    def addr():
        if layer==0:
            a(f'''v_and_b32 v{vA}, 15, v{vLANE}
            v_bfe_u32 v{vB}, v{vLANE}, 1, 2
            v_xor_b32 v{vB}, s{sW}, v{vB}
            v_lshlrev_b32 v{vB}, 5, v{vB}
            v_lshl_add_u32 v{vA}, v{vA}, 7, v{vB}
            v_lshrrev_b32 v{vB}, 4, v{vLANE}
            v_lshl_add_u32 v{vA}, v{vB}, 3, v{vA}
            v_lshlrev_b32 v{vB}, 4, v{vB}''')
        else:
            a(f'''v_bfe_u32 v{vB}, v{vLANE}, 3, 2
            v_xor_b32 v{vB}, s{sW}, v{vB}
            v_lshlrev_b32 v{vB}, 5, v{vB}
            v_lshrrev_b32 v{vA}, 2, v{vLANE}
            v_lshl_add_u32 v{vA}, v{vA}, 7, v{vB}
            v_and_b32 v{vB}, 3, v{vLANE}
            v_lshl_add_u32 v{vA}, v{vB}, 3, v{vA}
            v_and_b32 v{vB}, 15, v{vLANE}
            v_lshlrev_b32 v{vB}, 2, v{vB}''')
        a(f'''s_lshl_b32 s{sT+4}, s{sJ}, 13
        s_add_u32 s{sT+4}, s{sT+4}, {XT}
        v_add_u32 v{vA}, s{sT+4}, v{vA}
        s_lshl_b32 s{sT+4}, s{sW}, 6
        v_add_u32 v{vB}, s{sT+4}, v{vB}''')
        for dt in range(4):
            lg.issue(f'ds_read_b64{"_tr_b16" if layer else ""} {V(XR+2*dt,2)}, v{vA} offset:{dt*2048}')
    add(100,addr)
    def sum1(k):
        lg.wait('p1'); a(f'v_add_f32 v{P+k}, v{P+k}, v{T+k}\nv_add_f32 v{P+k+1}, v{P+k+1}, v{T+k+1}')
    def sum2(k):
        lg.wait('p2'); a(f'v_add_f32 v{P+k}, v{P+k}, v{acc+k}\nv_add_f32 v{P+k+1}, v{P+k+1}, v{acc+k+1}')
    for k in range(8): add(b+5+k,lambda k=k: sum1(2*k))
    for k in range(8): add(b+13+k,lambda k=k: sum2(2*k))
    nr=4 if layer==0 else 1
    def rd_stat():
        w='b128' if layer==0 else 'b32'
        lg.issue(f'ds_read_{w} {V(T,nr)}, v{vB} offset:{STAT}'); lg.issue(f'ds_read_{w} {V(RS,nr)}, v{vB} offset:{STAT+256}','st')
    add(b+14,rd_stat)
    def fin_stat(i):
        lg.wait('st'); ln_final(T+i,RS+i,0)
    for i in range(nr): add(b+21+2*i,lambda i=i: fin_stat(i))
    pipeline(mfs,ld,vm,slots,63,80,per=1,hooks=hooks)
    ts(14)
    x=acc
    for dt in range(4):
        for h in range(2):
            a(f'v_lshlrev_b32 v{x+4*dt+2*h}, 16, v{XR+2*dt+h}\nv_and_b32 v{x+4*dt+2*h+1}, 0xffff0000, v{XR+2*dt+h}')
    if layer==0: a2_store_addr(vA,sT+4,vB)
    else:
        a(f'''v_bfe_u32 v{vA}, v{vLANE}, 3, 1
        v_lshlrev_b32 v{vA}, 14, v{vA}
        v_and_b32 v{vB}, 7, v{vLANE}
        v_lshl_add_u32 v{vA}, v{vB}, 10, v{vA}
        v_bfe_u32 v{vB}, v{vLANE}, 4, 1
        v_lshl_add_u32 v{vA}, v{vB}, 5, v{vA}
        v_lshrrev_b32 v{vB}, 5, v{vLANE}
        v_lshl_add_u32 v{vA}, v{vB}, 4, v{vA}
        s_lshl_b32 s{sT+4}, s{sW}, 2
        s_add_u32 s{sT+4}, s{sT+4}, s{sOB}
        s_lshl_b32 s{sT+4}, s{sT+4}, 13
        s_lshl_b32 s{sT+5}, s{sJ}, 7
        s_add_u32 s{sT+4}, s{sT+4}, s{sT+5}''')
    for p in range(2):
        for dt in (2*p,2*p+1):
            for h in range(2):
                k=4*dt+2*h
                a(f'v_pk_add_f32 {V(P+k,2)}, {V(P+k,2)}, {V(acc+16+k,2)}')
                if layer==0: a(f'v_pk_fma_f32 {V(x+k,2)}, {V(P+k,2)}, {V(RS+2*h,2)}, {V(x+k,2)}')
                else: a(f'v_pk_fma_f32 {V(x+k,2)}, {V(P+k,2)}, {V(RS,2)}, {V(x+k,2)} op_sel_hi:[1,0,1]')
                a(f'v_cvt_pk_bf16_f32 v{T+k//2}, v{x+k}, v{x+k+1}')
        d=T+4*p
        if layer==0:
            for k in range(4): a(f'v_min_u32 v{d+k}, -2, v{d+k}')
        a(f'v_permlane16_swap_b32 v{d}, v{d+2}\nv_permlane16_swap_b32 v{d+1}, v{d+3}')
        if layer==0: vm.issue(f'buffer_store_dwordx4 {V(d,4)}, v{vA}, {S(rWS,4)}, s{sT+4} offen offset:{512*p} sc1')
        else: vm.issue(f'buffer_store_dwordx4 {V(d,4)}, v{vA}, {S(rOUT,4)}, s{sT+4} offen offset:{64*p}')
    if layer==1:
        ts(15); return
    q=P
    for i in range(4):
        a(f'v_add_f32 v{q+2*i}, v{x+i}, v{x+4+i}\nv_mul_f32 v{q+2*i+1}, v{x+i}, v{x+i}')
    for dt in range(1,4):
        for i in range(4):
            if dt>1: a(f'v_add_f32 v{q+2*i}, v{q+2*i}, v{x+4*dt+i}')
            a(f'v_fmac_f32 v{q+2*i+1}, v{x+4*dt+i}, v{x+4*dt+i}')
    for sh in (8,4,2,1):
        for k in range(8): a(f'v_add_f32_dpp v{q+k}, v{q+k}, v{q+k} row_ror:{sh} row_mask:0xf bank_mask:0xf')
    for k in range(8): a(f'v_min_u32 v{q+k}, -2, v{q+k}')
    ps_addr(sT+5)
    a(f'v_lshlrev_b32 v{vB}, 1, v{vLANE}')
    exec_set('0x00010001','0x00010001')
    vm.issue(f'buffer_store_dwordx4 {V(q,4)}, v{vB}, {S(rWS,4)}, s{sT+5} offen sc1')
    vm.issue(f'buffer_store_dwordx4 {V(q+4,4)}, v{vB}, {S(rWS,4)}, s{sT+5} offen offset:16 sc1')
    exec_all(); ts(15)
    d=a.label('fsd'); l=a.label('fsl'); ok=a.label('fsok')
    a(f'''s_lshr_b32 s{sT+6}, s{sJ}, 1
    s_cmp_lg_u32 s{sW}, s{sT+6}
    s_cbranch_scc1 {d}
    s_andn2_b32 s{sT+5}, s{sT+5}, 0x3ff
    s_and_b32 s{sT+6}, s{sJ}, 1
    s_lshl_b32 s{sT+6}, s{sT+6}, 6
    s_add_u32 s{sT+5}, s{sT+5}, s{sT+6}
    v_lshrrev_b32 v{vA}, 3, v{vLANE}
    v_and_b32 v{vB}, 7, v{vLANE}
    v_lshlrev_b32 v{vB}, 3, v{vB}
    v_lshl_add_u32 v{vA}, v{vA}, 7, v{vB}
    v_lshlrev_b32 v{vB}, 2, v{vLANE}''')
    st1_addr(sT+6)
    a(f'''s_waitcnt vmcnt(0)
    {l}:
    buffer_load_dwordx2 {V(x,2)}, v{vA}, {S(rWS,4)}, s{sT+5} offen sc1
    s_waitcnt vmcnt(0)
    v_max_u32 v{x+2}, v{x}, v{x+1}
    v_cmp_eq_u32 vcc, -1, v{x+2}
    s_cbranch_vccz {ok}''')
    spin_check(l); a(f'{ok}:')
    for k in range(2): a(f'v_add_f32_dpp v{x+k}, v{x+k}, v{x+k} row_ror:8 row_mask:0xf bank_mask:0xf')
    for op in ('v_permlane16_swap_b32','v_permlane32_swap_b32'):
        for k in range(2): a(f'v_mov_b32 v{x+2+k}, v{x+k}')
        for k in range(2): a(f'{op} v{x+k}, v{x+2+k}')
        for k in range(2): a(f'v_add_f32 v{x+k}, v{x+k}, v{x+2+k}')
    ln_final(x,x+1,0)
    a(f'''v_cmp_gt_u32 vcc, 8, v{vLANE}
    v_cndmask_b32 v{x}, v{x}, v{x+1}, vcc
    v_min_u32 v{x}, -2, v{x}''')
    exec_set(0xffff,0)
    a(f'buffer_store_dword v{x}, v{vB}, {S(rWS,4)}, s{sT+6} offen sc1')
    exec_all()
    a(f'{d}:')
    vm.drain(); ts(16)

c=p0(); p0b(c)
stage_consume(R1,RG12,'r1');
vm.cond=True; stage_issue(R2,RG12,'r2'); vm.cond=False
barrier0_wait(); xid_check(); ts(5)
a('L_layer:')
conv(); stop('conv')
emit_retry=g1(); stop('g1')
g2_head()
a(f's_cmp_lg_u32 s{sLAY}, 0\ns_cbranch_scc1 L_last')
import copy
st=copy.deepcopy((vm.ops,vm.dc,vm.du,vm.tags,lg.ops,lg.dc,lg.du,lg.tags))
g2(0); stop('g2')
ts_dump(0)
a(f'''s_mov_b32 s{sLAY}, 1
s_mov_b32 s{sA2L}, {A2+2*MB}
s_mov_b32 s{sX1L}, {X1+2*MB}
s_mov_b32 s{sSTL}, {ST+16384}''')
barrier(); ts(5)
a('s_branch L_layer\nL_last:')
vm.ops,vm.dc,vm.du,vm.tags,lg.ops,lg.dc,lg.du,lg.tags=st
g2(1)
ts_dump(256)
if opt['probe']>=0:
    if opt['only']>=0: a(f's_cmp_lg_u32 s2, {opt["only"]}\ns_cbranch_scc1 L_end')
    a('''s_add_u32 s101, s101, 10000
    L_probe:
    s_memrealtime s[96:97]
    s_waitcnt lgkmcnt(0)
    s_sub_u32 s96, s96, s101
    s_cmp_lt_i32 s96, 0
    s_cbranch_scc1 L_probe''')
a('L_end:\ns_endpgm')
emit_retry()
a(f'''L_bail:
s_mov_b64 exec, -1
v_mov_b32 v{vW}, 32
v_mov_b32 v{vW+1}, 1
global_atomic_add v{vW}, v{vW+1}, {S(sDBG,2)} sc1
s_endpgm''')
lines=fix_hazards([l for l in a.lines if '@WARM@' not in l])
n=NAME+'_kernel'
hdr=open('cdna_kernels/'+NAME+'.s.ref').read().split('; Override')[0]
s=hdr+f'; @launch grid=(256,1,1) block=(256,1,1) lds={LDS_END}\n.amdgcn_target "amdgcn-amd-amdhsa--gfx950"\n.text\n'+khead(n)+'\n'.join(lines)+'\n.section .rodata,"a"\n'+kdesc(n,512,102,256)
sys.stdout.write(s)
```

```python
import struct
NAME='interleave_layers__ssm_conv_s4d__dense_activation_relu__prompt'
def f2u(x): return struct.unpack('<I', struct.pack('<f', x))[0]
def fhex(x): return '0x%08x' % f2u(x)

class Asm:
    def __init__(self):
        self.lines=[]; self.n=0; self.spr=[]; self.every=0; self.cnt=0; self.hold=0
    def __call__(self, s):
        for l in s.split('\n'):
            l=l.strip()
            if l:
                self.lines.append(('' if l.endswith(':') else '    ')+l)
                if self.spr and not self.hold:
                    self.cnt+=1
                    if self.cnt>=self.every and l.startswith('v_') and not l.startswith('v_cmp'):
                        self.cnt=0; self.hold+=1; self.spr.pop(0)(); self.hold-=1
    def sprinkle(self, items, every): self.spr=list(items); self.every=every; self.cnt=0
    def flush(self):
        self.hold+=1
        while self.spr: self.spr.pop(0)()
        self.hold-=1
    def label(self, base):
        self.n+=1
        return f'L_{base}_{self.n}'
    def text(self): return '\n'.join(self.lines)+'\n'

def kdesc(name, vgpr=256, sgpr=102, accum=None, extra=''):
    if accum is None: accum=min(256,(vgpr+3)//4*4)
    return f'''.p2align 6
.amdhsa_kernel {name}
  .amdhsa_next_free_vgpr {vgpr}
  .amdhsa_next_free_sgpr {sgpr}
  .amdhsa_accum_offset {accum}
  .amdhsa_group_segment_fixed_size 0
  .amdhsa_kernarg_size 104
  .amdhsa_user_sgpr_count 2
  .amdhsa_user_sgpr_kernarg_segment_ptr 1
  .amdhsa_system_sgpr_workgroup_id_x 1
  .amdhsa_float_denorm_mode_32 3
  .amdhsa_ieee_mode 0
{extra}.end_amdhsa_kernel
'''
def khead(name):
    return f'.globl {name}\n.p2align 8\n.type {name},@function\n{name}:\n'

def build_file(launches, kernels, header=''):
    s=header
    for (n,g,b,l) in launches:
        s+=f'; @launch kernel={n} grid=({g},1,1) block=({b},1,1) lds={l}\n'
    s+='.amdgcn_target "amdgcn-amd-amdhsa--gfx950"\n.text\n'
    for (n,t,d) in kernels:
        s+=khead(n)+t
    s+='.section .rodata,"a"\n'
    for (n,t,d) in kernels:
        s+=d
    return s

import re
_RX=re.compile(r'\b([vas])\[(\d+):(\d+)\]|\b([vas])(\d+)\b|\b(vcc|exec|m0)\b')
def _regs(op):
    out=set()
    for m in _RX.finditer(op):
        if m.group(1):
            for k in range(int(m.group(2)),int(m.group(3))+1): out.add((m.group(1),k))
        elif m.group(4): out.add((m.group(4),int(m.group(5))))
        else: out.add((m.group(6),0))
    return out
_TRANS=('v_exp_f32','v_log_f32','v_rcp_f32','v_rsq_f32','v_sqrt_f32','v_sin_f32','v_cos_f32')
def _split(rest):
    ops=[];d=0;cur=''
    for ch in rest:
        if ch=='[': d+=1
        if ch==']': d-=1
        if ch==',' and d==0: ops.append(cur.strip()); cur=''
        else: cur+=ch
    if cur.strip(): ops.append(cur.strip())
    return ops
def parse(line):
    l=line.split(';')[0].strip()
    if not l or l.endswith(':') or l.startswith('.'): return None
    p=l.split(None,1); mn=p[0]; ops=_split(p[1]) if len(p)>1 else []
    I=dict(mn=mn,dst=set(),src=set(),kind='other',srcC=set(),ab=set(),sdata=set(),states=1,dpp=False)
    R=[_regs(o.split(' ')[0]) if o else set() for o in ops]
    if mn=='s_nop': I['states']=int(ops[0])+1; return I
    if mn.startswith('v_mfma'):
        I['kind']='mfma'; I['dst']=R[0]; I['ab']=R[1]|R[2]; I['srcC']=R[3]; I['src']=R[1]|R[2]|R[3]
        I['passes']=8 if '32x32' in mn else 4
    elif mn.startswith('v_'):
        I['kind']='valu'; I['dst']=set(R[0]); I['src']=set().union(*R[1:]) if len(R)>1 else set()
        if mn.startswith('v_permlane') or mn.startswith('v_swap'): I['dst']=R[0]|R[1]; I['src']=R[0]|R[1]
        if 'fmac' in mn or 'dot2c' in mn or '_dpp' in mn: I['src']|=R[0]
        if '_dpp' in mn: I['dpp']=True
        if mn.startswith('v_cndmask') and len(ops)==3: I['src'].add(('vcc',0))
        if mn.startswith(('v_add_co','v_sub_co','v_addc_co')): I['dst']|=R[1]
    elif mn.startswith('ds_'):
        I['kind']='ds'
        if mn.startswith(('ds_read','ds_bpermute','ds_swizzle')): I['dst']=R[0]; I['src']=set().union(*R[1:])
        else: I['src']=set().union(*R)
    elif mn.startswith(('buffer_','global_')):
        I['kind']='vmem'
        lds=' lds' in l
        I['lds']=lds
        if not R: pass
        elif 'load' in mn and not lds: I['dst']=R[0]; I['src']=set().union(*R[1:])
        else:
            I['src']=set().union(*R)
            if 'store' in mn and ('x4' in mn or 'x3' in mn): I['sdata']=R[0] if mn.startswith('buffer_') else R[1]
            if 'atomic' in mn and ' sc0' in l: I['dst']=R[0]
    elif mn.startswith('s_'):
        I['kind']='salu'
        if mn.startswith(('s_cmp','s_cbranch','s_branch','s_waitcnt','s_barrier','s_sleep','s_endpgm','s_setprio')): I['src']=set().union(*R) if R else set()
        else:
            I['dst']=R[0] if R else set(); I['src']=set().union(*R[1:]) if len(R)>1 else set()
    return I
def _isv(s): return {r for r in s if r[0] in 'va'}
def _iss(s): return {r for r in s if r[0] in ('s','vcc')}
def need(P,C):
    n=0
    pk,ck=P['kind'],C['kind']
    if pk=='valu':
        vd=_isv(P['dst']); sd=_iss(P['dst'])
        isdot='dot2' in P['mn']
        if ck=='mfma' and vd&C['src']: n=max(n,3 if isdot else 2)
        if ck=='valu':
            if vd&C['src']:
                if C['dpp'] or C['mn'].startswith('v_permlane'): n=max(n,2)
                if C['mn'].startswith(('v_readlane','v_readfirstlane')): n=max(n,1)
                if P['mn'].startswith(_TRANS) and not C['mn'].startswith(_TRANS): n=max(n,1)
                if '_sdwa' in P['mn']: n=max(n,1)
            if isdot and vd&(C['src']|C['dst']) and (C['mn']!=P['mn']): n=max(n,3)
            if sd&C['src']: n=max(n,4 if C['mn'].startswith(('v_readlane','v_writelane')) else 2)
        if ck in('ds','vmem') and isdot and vd&C['src']: n=max(n,3)
        if ck in('ds','vmem') and P['mn'].startswith(_TRANS) and vd&C['src']: n=max(n,1)
        if ck=='vmem' and sd&C['src']: n=max(n,5)
        if ck=='salu' and sd&C['src']: n=max(n,1)
    if pk=='mfma':
        ps=P['passes']; d=P['dst']
        if ck=='mfma':
            if d&C['ab']: n=max(n,ps+4)
            if d&C['srcC'] and not(d==C['srcC'] and ps==C['passes']): n=max(n,ps+2)
            if d&C['dst'] and not d&C['srcC']: n=max(n,ps+2)
        elif ck in('valu','ds','vmem'):
            if d&(C['src']|C['dst']): n=max(n,ps+4)
            if ck=='valu' and P['srcC']&C['dst']: n=max(n,ps-1)
    if pk=='salu' and ('m0',0) in P['dst'] and ck=='vmem' and C.get('lds'): n=max(n,1)
    if pk=='vmem' and P['sdata'] and P['sdata']&C['dst']: n=max(n,2)
    return n
def fix_hazards(lines, verbose=False):
    out=[];win=[];added=0
    for ln in lines:
        I=parse(ln)
        if I is None: out.append(ln); continue
        dist=0;pad=0
        for P in reversed(win):
            pad=max(pad,need(P,I)-dist)
            dist+=P['states']
            if dist>=20: break
        if pad>0:
            out.append(f'    s_nop {pad-1}'); win.append(dict(mn='s_nop',dst=set(),src=set(),kind='other',srcC=set(),ab=set(),sdata=set(),states=pad,dpp=False)); added+=1
        out.append(ln); win.append(I)
        if len(win)>24: win=win[-24:]
    if verbose: print('hazard nops added',added)
    return out

class Ctr:
    def __init__(self,a,name,mx):
        self.a=a; self.name=name; self.mx=mx; self.ops=[]; self.dc=0; self.du=0; self.tags={}; self.cond=False; self.condreg=None
    def issue(self,text,tag=None):
        self.a(text); self.ops.append(self.cond)
        if tag is not None: self.tags[tag]=len(self.ops)
    def pending(self):
        return len(self.ops)-self.dc
    def wait(self,tag):
        k=self.tags[tag]
        if k<=(self.dc if self.cond else self.du): return
        young=self.ops[k:]
        N=len(young) if self.cond else sum(1 for c in young if not c)
        N=min(N,self.mx)
        Nc=min(len(young),self.mx)
        if Nc!=N and self.condreg is not None:
            l=self.a.label('w2')
            if k>self.dc: self.a(f's_waitcnt {self.name}({Nc})')
            self.a(f's_cmp_eq_u32 s{self.condreg}, 0\ns_cbranch_scc1 {l}\ns_waitcnt {self.name}({N})\n{l}:')
            self.dc=max(self.dc,k)
        else:
            self.a(f's_waitcnt {self.name}({N})')
            self.dc=max(self.dc,k,len(self.ops)-N)
        if not self.cond: self.du=max(self.du,k)
    def drain(self):
        self.a(f's_waitcnt {self.name}(0)'); self.reset()
    def reset(self):
        self.dc=len(self.ops)
        if not self.cond: self.du=len(self.ops)

import subprocess, tempfile, os
def _sizes(lines,wrap):
    d=tempfile.mkdtemp(); s=os.path.join(d,'t.s'); o=os.path.join(d,'t.o')
    open(s,'w').write(wrap(lines))
    r=subprocess.run(['clang','-x','assembler','-target','amdgcn-amd-amdhsa','-mcpu=gfx950','-c',s,'-o',o],capture_output=True,text=True)
    assert r.returncode==0,r.stderr
    t=subprocess.run(['llvm-objdump','-d','--mcpu=gfx950',o],capture_output=True,text=True).stdout
    sz=[4*len(l.split('//')[1].split(':')[1].split('<')[0].split()) for l in t.split('\n') if '//' in l and l.startswith('\t')]
    return sz
def add_warm(lines,wrap,sW):
    w=[i for i,l in enumerate(lines) if '@WARM@' in l][0]
    base=lines[:w]+lines[w+1:]
    sz=_sizes(base,wrap); k=0; out=[]; addr=0; nst=0; page=1; stop=False
    ninstr=sum(1 for l in base if parse(l) is not None); assert ninstr==len(sz),(ninstr,len(sz))
    body=[]
    for i,l in enumerate(base):
        I=parse(l)
        if i<w:
            if I is not None: k+=1
            continue
        if l.startswith('L_cold'): stop=True
        if I is not None:
            if addr>=4096*page and not stop and 'exec_hi' not in l:
                body.append(('stub',nst)); nst+=1; page+=1; addr+=8
            addr+=sz[k]; k+=1
        body.append(l)
    per=[list(range(x,nst,4)) for x in range(4)]
    nxt={}
    for p in per:
        for n,j in enumerate(p): nxt[j]=f'L_stub_{p[n+1]}' if n+1<len(p) else 'L_warm_back'
    out=base[:w]+['    s_mov_b64 exec, 0']
    for x in range(4):
        if per[x]: out+= [f'    s_cmp_eq_u32 s{sW}, {x}', f'    s_cbranch_scc1 L_stub_{per[x][0]}']
    out+=['    s_branch L_warm_back','.p2align 12','L_warm_back:','    s_mov_b64 exec, -1','    s_nop 0']
    for l in body:
        if isinstance(l,tuple): out+=[f'L_stub_{l[1]}:',f'    s_cbranch_execz {nxt[l[1]]}','    s_nop 0']
        else: out.append(l)
    return out
```

```python
import sys, math
from asmlib import *
opt=dict(ts=0, stop='', warm=1, forceglobal=0, probe=-1, play=0, early=0, only=-1, cv_ahead=20, g1_ahead=15, ch1=8, ch2=55, spr1=12, spr2=4, g2pre=8, g2pace=4, touch=2, htouch=1, cvsp=4, g1sp=3, nor1=0, xpre=6, now=0, basei=40, cv0=6, tpos=1, g1f=100)
for s in sys.argv[1:]:
    k,v=s.split('='); opt[k]=int(v) if v.lstrip('-').isdigit() else v
TS=opt['ts']; STOP=opt['stop']
MB=1<<20
A2=0; A2S=6*MB; X1=10*MB; HB=0; PS=14*MB; HF=PS+131072; XID=HF+4096; CB=XID+32768; WSZ=15*MB; DUMP=20*MB
KC=0; KCH=8320; KCP=4160
U=16640; UCH=4608
STAT=25856
XT=27648; RED=XT+65536; LDS_END=163840
TAB=XT; TROW=528; TCH=53*TROW; KT=XT+2*TCH; KTCH=1408
EXCH=XT
RG12=(XT+58880,19328); RGX=(XT+16384,12288); RG45=(RED,17664)
sX=4;sLA=6;sAI=8;sCR=10;sCI=12;sLD=14;sDS=16;sW1=20;sW2=22;sOUT=24;sDBG=26;sWS=28
rWS=32;rW1=36;rW2=40;rOUT=44
sW=48;sCP=49;sRB=50;sJ=51;sLAY=52;sLOC=53;sOB=54;sXCC=55;sSPIN=56;sKH=57;sD0=58;sD1=60
sR12=62;sRX=63;sR45=64;sW1B=65;sW2B=66;sCH=67
rX=68
sT=72
def S(n,k=1): return f's{n}' if k==1 else f's[{n}:{n+k-1}]'
def V(n,k=1): return f'v{n}' if k==1 else f'v[{n}:{n+k-1}]'
vTID=0;vLANE=1;vCS=2;vXT=14;vTS=18;vEPS=19;vW=20
def W1R(t,ks,k=4,o=0):
    i=(t*16+ks)*4+o
    return (f'a[{176+i}:{176+i+k-1}]' if k>1 else f'a{176+i}') if i<80 else V(144+i-80,k)
def W2R(ks,dt,k=4,o=0):
    i=(ks*4+dt)*4+o
    return f'a[{i}:{i+k-1}]'
MF='v_mfma_f32_16x16x32_bf16'
a=Asm(); vm=Ctr(a,'vmcnt',63); lg=Ctr(a,'lgkmcnt',15)
LAY=[0]
def ts(i):
    if opt['probe']>=0:
        if i==0 and opt['early']: a('s_mov_b32 s100, s96\ns_mov_b32 s101, s96')
        elif i==0: a('s_memrealtime s[96:97]\ns_waitcnt lgkmcnt(0)\ns_mov_b32 s100, s96\ns_mov_b32 s101, s96'); lg.reset()
        elif i==opt['probe']:
            l=a.label('pr')
            if LAY[0]==opt['play']: a('s_memrealtime s[96:97]\ns_waitcnt lgkmcnt(0)\ns_mov_b32 s101, s96')
    if TS: a(f's_memrealtime s[96:97]\ns_memtime s[98:99]\ns_waitcnt lgkmcnt(0)\nv_writelane_b32 v{vTS}, s96, {i}\nv_writelane_b32 v{vTS}, s98, {32+i}'); lg.reset()
def ts_park():
    if TS: a(f'v_lshlrev_b32 v143, 2, v0\nds_write_b32 v143, v{vTS} offset:{STAT+512}\ns_waitcnt lgkmcnt(0)')
def ts_dump(slot):
    if TS:
        if slot==0: a(f'v_lshlrev_b32 v143, 2, v0\nds_read_b32 v{vTS}, v143 offset:{STAT+512}\ns_waitcnt lgkmcnt(0)')
        a(f'''s_lshl_b32 s96, s2, 2
        s_add_u32 s96, s96, s{sW}
        s_mul_i32 s96, s96, 768
        s_add_u32 s96, s96, {slot}
        s_add_u32 s98, s{sWS}, {DUMP}
        s_addc_u32 s99, s{sWS+1}, 0
        v_lshl_add_u32 v143, v{vLANE}, 2, s96''')
        vm.issue(f'global_store_dword v143, v{vTS}, s[98:99]')
def exec_set(lo,hi):
    a.hold=100; a(f's_mov_b32 exec_lo, {lo}\ns_mov_b32 exec_hi, {hi}')
def exec_all():
    a('s_mov_b64 exec, -1'); a.hold=0
def spin_check(lbl):
    a(f's_sub_u32 s{sSPIN}, s{sSPIN}, 1\ns_cbranch_scc1 L_bail\ns_branch {lbl}')
def barrier(): a('s_barrier')
def stop(name):
    if STOP==name:
        ts_dump(0); a('s_waitcnt vmcnt(0) lgkmcnt(0)\ns_endpgm')

def w1_addr(vd,tmp):
    for k in range(3):
        a(f'''v_add_u32 v{tmp}, {64*k}, v{vLANE}
        v_mul_u32_u24 v{tmp+1}, 0xaaab, v{tmp}
        v_lshrrev_b32 v{tmp+1}, 18, v{tmp+1}
        v_mul_u32_u24 v{tmp+2}, 6, v{tmp+1}
        v_sub_u32 v{tmp}, v{tmp}, v{tmp+2}
        v_mul_u32_u24 v{tmp+1}, 2752, v{tmp+1}
        v_lshl_add_u32 v{vd+k}, v{tmp}, 4, v{tmp+1}''')
def swz_addr(vd,rowshift,tmp):
    a(f'''v_lshrrev_b32 v{tmp}, 3, v{vLANE}
    v_and_b32 v{vd}, 6, v{tmp}
    v_xor_b32 v{vd}, v{vd}, v{vLANE}
    v_and_b32 v{vd}, 7, v{vd}
    v_lshlrev_b32 v{vd}, 4, v{vd}
    v_lshl_add_u32 v{vd}, v{tmp}, {rowshift}, v{vd}''')
def w2_tiles(ks):
    if ks==10: return (16*8, 172+16*8)
    if ks>=8: return (172*(ks-8)+32, 172*(ks-8)+80)
    jj,k=divmod(ks,4); ta,tb=[(0,1),(3,4),(6,7),(9,10)][k]
    return (172*jj+16*ta,172*jj+16*tb)
def mkround(*parts):
    r=[]
    for sreg,items in parts:
        off=0
        for kind,ks in items:
            r.append((kind,ks,sreg,off)); off+=3072 if kind=='w1' else 4096
    return r
R1=mkround((sR12,[('w1',k) for k in range(0,6)])); R2=mkround((sR12,[('w1',k) for k in range(6,12)]))
R3=mkround((sR45,[('w1',k) for k in range(12,16)]+[('w2',0)]),(sRX,[('w2',1),('w2',2),('w2',3)]))
R4=mkround((sR45,[('w2',k) for k in range(4,8)])); R5=mkround((sR45,[('w2',k) for k in range(8,11)]))
def issue_items(R,tag,v1,v2):
    L=[]
    if opt['now']: return L
    for kind,ks,sreg,off in R:
        for k in range(3 if kind=='w1' else 4):
            def f(kind=kind,ks=ks,sreg=sreg,off=off,k=k):
                a(f's_add_u32 m0, s{sreg}, {off+1024*k}')
                if kind=='w1':
                    a(f's_add_u32 s{sT+1}, s{sW1B}, {ks*88064}')
                    vm.issue(f'buffer_load_dwordx4 v{v1+k}, {S(rW1,4)}, s{sT+1} offen lds',(tag,kind,ks))
                else:
                    fa,fb=w2_tiles(ks); f0=(fa if k<2 else fb)+8*(k&1)
                    a(f's_add_u32 s{sT+1}, s{sW2B}, {f0*1024}')
                    vm.issue(f'buffer_load_dwordx4 v{v2}, {S(rW2,4)}, s{sT+1} offen lds',(tag,kind,ks))
            L.append(f)
    return L
def consume_items(R,tag,vt):
    L=[]; cur={}
    if opt['now']: return [('s',lambda: lg.tags.__setitem__(('c',tag),len(lg.ops)))]*30
    for kind,ks,sreg,off in R:
        if cur.get('reg')!=(kind,sreg):
            cur['reg']=(kind,sreg)
            if kind=='w1':
                t=f'''v_lshrrev_b32 v{vt}, 2, v{vLANE}
                v_mul_u32_u24 v{vt}, 96, v{vt}
                v_and_b32 v{vt+1}, 3, v{vLANE}
                v_lshl_add_u32 v{vt}, v{vt+1}, 3, v{vt}
                v_add_u32 v{vt}, s{sreg}, v{vt}'''
            else:
                t=f's_sub_u32 s{sT}, s{sreg}, {XT}\n'+'\n'.join(f'v_add_u32 v{vt+1+dt}, s{sT}, v{vXT+dt}' for dt in range(4))
            L+=[(x[1],x[2]) for x in FX(0,t)]
        L.append(('s',lambda kind=kind,ks=ks: vm.wait((tag,kind,ks))))
        if kind=='w1':
            for t in range(3):
                for hh in range(2): L.append(('m',lambda t=t,hh=hh,ks=ks,off=off: lg.issue(f'ds_read_b64_tr_b16 {W1R(t,ks,2,2*hh)}, v{vt} offset:{off+hh*1536+t*32}',('c',tag))))
        else:
            for dt in range(4):
                for hh in range(2): L.append(('m',lambda dt=dt,hh=hh,ks=ks,off=off: lg.issue(f'ds_read_b64_tr_b16 {W2R(ks,dt,2,2*hh)}, v{vt+1+dt} offset:{off+hh*2048}',('c',tag))))
    return L
def consume(R,tag,vt):
    for k,f in consume_items(R,tag,vt): f()
def w1_finish(dm):
    l=a.label('w3skip')
    a(f's_cmp_lg_u32 s{sW}, 3\ns_cbranch_scc1 {l}')
    exec_set('0xf000f000','0xf000f000'); a(f'v_mov_b32 v{vW}, 0x3f803f80')
    for ks in range(16):
        for o in range(4):
            r=W1R(1,ks,1,o); a((f'v_accvgpr_write_b32 {r}, v{vW}') if r[0]=='a' else f'v_mov_b32 {r}, v{vW}')
    exec_all(); a(f'{l}:')
    for k in range(4): a(f'v_mov_b32 v{vW+k}, 0x3b003b00')
    for ks in range(16):
        for t in range(3): a(f'{MF} {V(vCS+4*t,4)}, {W1R(t,ks)}, {V(vW,4)}, '+('0' if ks==0 else V(vCS+4*t,4)))
        if dm: dm.pop(0)()

def pipeline(mfs, loadfn, ctr, slots, ahead, fill=None, gates=None, limited=None, fixed=None, pre=8, late=None, pace=1):
    fill=list(fill or []); gates=gates or {}; limited=limited or {}; fixed=fixed or {}; late=late or {}
    first={};last={}
    for i,(f,us) in enumerate(mfs):
        for u in us: first.setdefault(u,i); last[u]=i
    order=sorted(first,key=lambda u:first[u]); free=list(slots); reg={}; opened=set()
    q=[]; nxt=[0]
    def alloc(u,i):
        if u in fixed:
            r,e=fixed[u]
            return r if e<=i else None
        for r in sorted(free,key=lambda r:limited.get(r,1<<30)):
            if limited.get(r,1<<30)>=last[u] and late.get(r,0)<=i: free.remove(r); return r
        return None
    def one_load(i,force=False):
        if not q:
            if nxt[0]>=len(order): return False
            u=order[nxt[0]]
            if u in gates and gates[u] not in opened:
                if not force: return False
                while gates[u] not in opened: run_fill()
            if not force and first[u]-i>ahead: return False
            r=alloc(u,i)
            if r is None:
                assert not force,('no slot',i,u); return False
            reg[u]=r; q.extend((u,t) for t in loadfn(u,r)); nxt[0]+=1
            if not q: return one_load(i,force)
        u,t=q.pop(0); ctr.issue(t,('f',u)); return True
    def run_fill():
        r=fill.pop(0)[2]()
        if isinstance(r,str): opened.add(r)
    def unissued(us): return any(u not in reg or any(x[0]==u for x in q) for u in us)
    for i,(f,us) in enumerate(mfs):
        if i==0:
            for k in range(pre): one_load(0)
        else:
            vs=2; mem=False
            urgent = (q and first[q[0][0]]-i<=ahead//2) or (not q and nxt[0]<len(order) and first[order[nxt[0]]]-i<=ahead//2)
            if (urgent or not(fill and fill[0][0]<=i and fill[0][1]=='m')) and i%pace==1%pace:
                if one_load(i): mem=True; vs-=1
            ns=0
            while fill and fill[0][0]<=i:
                k=fill[0][1]
                if k=='m':
                    if mem or vs<=0: break
                    mem=True; vs-=1
                elif k=='M':
                    if vs<=0 or ns>=100: break
                    vs-=1; ns+=100
                elif k=='v':
                    if vs<=0: break
                    vs-=1
                else:
                    ns+=1
                    if ns%100>3: break
                run_fill()
        while any(len(x)>3 and x[3]<=i for x in fill): run_fill()
        while unissued(us): one_load(i,True)
        tg=[('f',u) for u in us if ('f',u) in ctr.tags]
        if tg: ctr.wait(max(tg,key=lambda t:ctr.tags[t]))
        a(f(reg))
        for u in set(us):
            if last[u]==i and u not in fixed: free.append(reg[u])
    while fill: run_fill()
    return reg
def FV(i,text,dl=1<<30): return [(i,'v',(lambda t=t: a(t)),dl) for t in text.split('\n') if t.strip()]
def FS(i,text): return [(i,'s',(lambda t=t: a(t))) for t in text.split('\n') if t.strip()]
def FX(i,text): return [(i,'s' if t.strip().startswith('s_') else 'v',(lambda t=t: a(t))) for t in text.split('\n') if t.strip()]

import copy
def save(): return copy.deepcopy((vm.ops,vm.dc,vm.du,vm.tags,lg.ops,lg.dc,lg.du,lg.tags))
def restore(st): vm.ops,vm.dc,vm.du,vm.tags,lg.ops,lg.dc,lg.du,lg.tags=copy.deepcopy(st)
def maxchain(dst,regs):
    regs=list(regs)
    a(f'v_max3_u32 v{dst}, v{regs[0]}, v{regs[1]}, v{regs[2]}'); regs=regs[3:]
    while len(regs)>=2: a(f'v_max3_u32 v{dst}, v{dst}, v{regs[0]}, v{regs[1]}'); regs=regs[2:]
    if regs: a(f'v_max_u32 v{dst}, v{dst}, v{regs[0]}')
def cmul(d,x,y):
    a(f'v_pk_mul_f32 {V(d,2)}, {V(x,2)}, {V(y,2)} op_sel:[0,0] op_sel_hi:[0,1]')
    return f'v_pk_fma_f32 {V(d,2)}, {V(x,2)}, {V(y,2)}, {V(d,2)} op_sel:[1,1,0] op_sel_hi:[1,0,1] neg_lo:[0,1,0]'
def cmuls(L):
    for t in [cmul(*x) for x in L]: a(t)
LOG2E=math.log2(math.e)
def rbf(v): a(f'v_cvt_pk_bf16_f32 v{v}, v{v}, v{v}\nv_lshlrev_b32 v{v}, 16, v{v}')
def ln_final(s,q):
    a(f'''v_mul_f32 v{s}, {fhex(-1/512)}, v{s}
    v_fmamk_f32 v{q}, v{q}, {fhex(1/512)}, v{vEPS}
    v_fma_f32 v{q}, -v{s}, v{s}, v{q}
    v_max_f32 v{q}, v{q}, v{vEPS}
    v_rsq_f32 v{q}, v{q}
    v_mul_f32 v{s}, v{s}, v{q}''')
def a2_vaddr(vd,tmp):
    return f'''v_lshrrev_b32 v{tmp}, 5, v{vLANE}
    v_and_b32 v{vd}, 31, v{vLANE}
    v_lshlrev_b32 v{vd}, 4, v{vd}
    v_lshl_add_u32 v{vd}, v{tmp}, 15, v{vd}'''
vV1=2; vV2=5; vNEG=6; vL16=10; vTCH=11; vJ0=12; vJ1=13
sA2S=30; sPS=31; sA2B=18; sHF=19; sX1F=3; sXID=sLAY
cold=[]
GB=vW+116; vGA=vW+104; vGB=vW+39
def gather_u(lay,iss):
    for ch in range(2):
        a(f's_add_u32 m0, s{sT+19}, {ch*UCH}\ns_add_u32 s{sT+21}, s{sT+20}, {16*ch}')
        iss(f'buffer_load_dwordx4 v{vGA}, {S(rWS,4)}, s{sT+21} offen sc1 lds')
def gather_b(n,iss):
    a(f's_add_u32 s{sT+21}, s{sT+18}, {n<<21}')
    iss(f'buffer_load_dwordx4 {V(GB+4*n,4)}, v{vGB}, {S(rWS,4)}, s{sT+21} offen sc1')
def gather_addr(lay):
    a(f'''v_lshlrev_b32 v{vGA}, 14, v0
    s_lshl_b32 s{sT+20}, s{sCP}, 5
    s_add_u32 s{sT+20}, s{sT+20}, {A2+A2S*lay}
    s_lshl_b32 s{sT+19}, s{sW}, 10
    s_add_u32 s{sT+19}, s{sT+19}, {U+512}''')
def touch(srd,soff,dst,nl):
    def f():
        if nl<256: a(f'v_min_u32 v{vJ1}, {(nl-1)*128}, v{vTCH}')
        vm.issue(f'buffer_load_dword v{dst}, v{vTCH if nl==256 else vJ1}, {S(srd,4)}, {soff} offen')
    return f
def htouch():
    a(f'''s_and_b32 s{sT+1}, s{sCP}, 31
    s_mul_i32 s{sT+1}, s{sT+1}, 6
    s_add_u32 s{sT+1}, s{sT+1}, 512
    s_lshl_b32 s{sT+1}, s{sT+1}, 3
    s_lshr_b32 s{sT}, s{sCP}, 5
    s_add_u32 s{sT+1}, s{sT+1}, s{sT}
    s_lshl_b32 s{sT+1}, s{sT+1}, 10
    v_min_u32 v{vJ1}, 47, v0
    v_lshrrev_b32 v{vTCH}, 3, v{vJ1}
    v_and_b32 v{vJ1}, 7, v{vJ1}
    v_lshlrev_b32 v{vJ1}, 7, v{vJ1}
    v_lshl_add_u32 v{vJ1}, v{vTCH}, 13, v{vJ1}''')
    vm.issue(f'buffer_load_dword v{vJ0}, v{vJ1}, {S(rWS,4)}, s{sT+1} offen')
def arrive_b(va,vb):
    return f'''s_and_b32 s{sT+1}, s2, 15
    s_lshl_b32 s{sT+1}, s{sT+1}, 7
    s_add_u32 s{sT+1}, s{sT+1}, {CB}
    v_lshlrev_b32 v{va}, 11, v{vLANE}
    v_mov_b32 v{vb}, 1
    s_mov_b64 exec, 0xffff
    buffer_atomic_add v{vb}, v{va}, {S(rWS,4)}, s{sT+1} offen sc1
    s_mov_b64 exec, -1'''
def w3poll(vPV,load,lim,pre='',post=''):
    d=a.label('pd'); l=a.label('pl'); k=a.label('pk'); a.hold+=1
    if pre is None: pre=f'v_cmp_gt_u32 vcc, {lim}, v{vPV}\ns_cbranch_vccz {k}'
    a(f's_cmp_lg_u32 s{sW}, 3\ns_cbranch_scc1 {d}\n{pre}\n{l}:\n{load}\ns_waitcnt vmcnt(0)\nv_cmp_gt_u32 vcc, {lim}, v{vPV}\ns_cbranch_vccz {k}\ns_sleep 2')
    spin_check(l); a(f'{k}:\n{post}\n{d}:'); a.hold-=1
def poll_b(va,vb,lim):
    w3poll(vb,f'buffer_load_dword v{vb}, v{va}, {S(rWS,4)}, s{sT+2} offen sc1',lim,
      f'''s_and_b32 s{sT+2}, s2, 15
      s_lshl_b32 s{sT+2}, s{sT+2}, 11
      s_add_u32 s{sT+2}, s{sT+2}, {CB}
      v_and_b32 v{va}, 15, v{vLANE}
      v_lshlrev_b32 v{va}, 7, v{va}''')
def p0():
    if opt['early']: a('s_memrealtime s[96:97]')
    vST=vW; vP=vW+1; vXB=vW+2; vXD=vW+3; vT0=vW+4; vPar=vW+8; vXR=vW+16
    a(f'''s_cmp_ge_u32 s2, 256
    s_cbranch_scc1 L_end
    s_load_dwordx16 s[4:19], s[0:1], 0
    s_load_dwordx8 s[20:27], s[0:1], 64
    s_load_dwordx2 s[28:29], s[0:1], 96
    s_getpc_b64 s[{sD0}:{sD0+1}]
    L_pc:
    s_lshr_b32 s{sT+1}, s2, 3
    s_mul_i32 s{sT}, s{sT+1}, {14*128}
    v_min_u32 v{vJ1}, 13, v0
    v_lshl_add_u32 v{vJ1}, v{vJ1}, 7, s{sT}
    v_min_u32 v{vJ1}, @CODEMAX@, v{vJ1}
    global_load_dword v{vJ0}, v{vJ1}, s[{sD0}:{sD0+1}]
    v_lshrrev_b32 v{vW}, 6, v0
    v_and_b32 v{vLANE}, 63, v0
    v_readfirstlane_b32 s{sW}, v{vW}
    s_getreg_b32 s{sXCC}, hwreg(HW_REG_XCC_ID, 0, 4)
    s_and_b32 s{sT}, s2, 7
    s_lshr_b32 s{sT+1}, s2, 3
    s_lshl_b32 s{sCP}, s{sT}, 5
    s_add_u32 s{sCP}, s{sCP}, s{sT+1}
    s_lshr_b32 s{sRB}, s{sCP}, 3
    s_and_b32 s{sJ}, s{sCP}, 7
    s_and_b32 s{sKH}, s{sW}, 1
    s_lshr_b32 s{sCH}, s{sW}, 1
    v_mov_b64 {V(vNEG,2)}, -1
    v_mov_b64 {V(vNEG+2,2)}, -1
    v_lshlrev_b32 v{vL16}, 4, v{vLANE}
    v_and_b32 v{vST}, 1, v{vLANE}
    v_lshlrev_b32 v{vST}, 5, v{vST}
    v_lshrrev_b32 v{vT0}, 5, v0
    v_lshl_add_u32 v{vST}, v{vT0}, 2, v{vST}
    v_lshlrev_b32 v{vP}, 1, v0
    v_lshlrev_b32 v{vXB}, 5, v0
    v_lshrrev_b32 v{vT0}, 4, v{vLANE}
    v_and_b32 v{vXD}, 15, v{vLANE}
    v_lshlrev_b32 v{vXD}, 4, v{vXD}
    v_lshl_add_u32 v{vXD}, v{vT0}, 10, v{vXD}
    v_lshlrev_b32 v{vTCH}, 7, v0
    s_lshl_b32 s{sT+3}, s2, 13
    s_lshl_b32 s{sT+13}, s{sW}, 11
    s_lshl_b32 s{sT+4}, s2, 14
    s_add_u32 s{sT+4}, s{sT+4}, s{sT+13}
    s_add_u32 s{sT+5}, s{sT+4}, 8192
    v_lshlrev_b32 v{vT0+2}, 1, v{vLANE}
    v_lshl_add_u32 v{vT0+2}, s{sW}, 8, v{vT0+2}
    s_lshl_b32 s{sT+6}, s{sCP}, 9
    v_add_u32 v{vP}, s{sT+6}, v{vP}
    s_lshl_b32 s{sT+6}, s{sCP}, 1
    s_add_u32 s{sT+6}, s{sT+6}, s{sCH}
    s_lshl_b32 s{sT+6}, s{sT+6}, 1
    v_mov_b32 v{vT0+1}, s{sT+6}
    s_lshl_b32 s{sT+7}, s{sCP}, 2
    s_add_u32 s{sT+8}, s{sT+7}, s{sW}
    s_lshl_b32 s{sT+8}, s{sT+8}, 2
    s_add_u32 s{sT+8}, s{sT+8}, {HF}
    s_lshl_b32 s{sT+9}, s{sCP}, 7
    s_add_u32 s{sT+9}, s{sT+9}, {XID}
    s_lshl_b32 s{sT+12}, s{sRB}, 7
    s_add_u32 s{sT+12}, s{sT+12}, {HF}
    s_lshl_b32 s{sT+17}, s{sJ}, 2
    s_add_u32 s{sT+17}, s{sT+17}, s{sW}
    s_cmp_eq_u32 s{sT+17}, 2
    s_cselect_b32 s{sT+9}, s{sT+12}, s{sT+9}
    s_cselect_b32 s{sT+15}, 0, s{sXCC}
    s_cselect_b32 s{sT+17}, 1, s{sW}
    s_lshl_b32 s{sT+16}, s2, 11
    s_add_u32 s{sT+16}, s{sT+16}, {CB}
    s_cmp_eq_u32 s{sW}, 3
    s_cselect_b32 s{sT+15}, 0, s{sT+15}
    v_mov_b32 v{vW+28}, s{sT+15}
    v_mov_b32 v{vW+28+1}, s{sT+15}
    v_mov_b32 v{vW+28+2}, s{sT+15}
    v_mov_b32 v{vW+28+3}, s{sT+15}
    s_lshl_b32 s{sT+10}, s{sW}, 8
    s_add_u32 s{sT+10}, s{sT+10}, s{sT+3}
    s_add_u32 s{sT+11}, s{sT+10}, 4096
    s_lshl_b32 s{sX1F}, s{sCP}, 13
    s_add_u32 s{sX1F}, s{sX1F}, s{sT+13}
    s_add_u32 s{sX1F}, s{sX1F}, {X1}
    s_lshl_b32 s{sT+22}, s{sT+1}, 15
    s_mul_i32 s{sT+23}, s{sT+1}, {88*128}
    s_add_u32 s{sT+23}, s{sT+23}, {8192*128}
    s_mov_b32 m0, s{sT+13}''')
    for r,n in ((rWS,WSZ),(rX,2*MB),(rW1,512*2752),(rW2,1376*1024),(rOUT,2*MB)):
        a(f's_mov_b32 s{r+2}, {n}\ns_mov_b32 s{r+3}, 0x20000')
    if TS: a(f'v_mov_b32 v{vTS}, 0')
    a('s_waitcnt lgkmcnt(0)')
    ts(0)
    for r,p in ((rWS,sWS),(rX,sX),(rW1,sW1),(rW2,sW2),(rOUT,sOUT)): a(f's_mov_b64 {S(r,2)}, {S(p,2)}')
    a(f's_mov_b32 s{sHF}, s{sT+8}')
    l=a.label('nosm')
    vm.tags['fill0']=len(vm.ops)
    a(f's_cmp_lg_u32 s{sT+17}, 1\ns_cbranch_scc1 {l}')
    exec_set(0xff,0)
    a(f'buffer_store_dwordx4 {V(vW+28,4)}, v{vL16}, {S(rWS,4)}, s{sT+9} offen sc1')
    exec_all(); a(f'{l}:')
    l=a.label('noz')
    a(f'''s_cmp_lg_u32 s{sW}, 3
    s_cbranch_scc1 {l}
    s_cmp_ge_u32 s2, 16
    s_cbranch_scc1 {l}
    buffer_store_dwordx4 {V(vW+28,4)}, v{vL16}, {S(rWS,4)}, s{sT+16} offen sc1
    buffer_store_dwordx4 {V(vW+28,4)}, v{vL16}, {S(rWS,4)}, s{sT+16} offen offset:1024 sc1
    {l}:''')
    vm.tags['zero']=len(vm.ops)
    vm.issue(f'buffer_load_dwordx4 v{vXD}, {S(rX,4)}, s{sT+10} offen lds')
    a('s_addk_i32 m0, 1024')
    vm.issue(f'buffer_load_dwordx4 v{vXD}, {S(rX,4)}, s{sT+11} offen lds','xs')
    vm.issue(f'buffer_load_dwordx4 {V(vXR,4)}, v{vXB}, {S(rX,4)}, s{sT+3} offen')
    vm.issue(f'buffer_load_dwordx4 {V(vXR+4,4)}, v{vXB}, {S(rX,4)}, s{sT+3} offen offset:16','xr')
    vm.issue(f'global_load_ushort v{vPar}, v{vT0+1}, {S(sLD,2)}')
    for k,p in enumerate((sLA,sAI,sCR,sCI)): vm.issue(f'global_load_ushort v{vPar+1+k}, v{vP}, {S(p,2)}','par')
    for cb in range(2): vm.issue(f'global_load_ushort v{vPar+6+cb}, v{vT0+2}, {S(sDS,2)} offset:{128*cb}','dsk')
    vm.issue(f'buffer_store_dwordx4 {V(vNEG,4)}, v{vL16}, {S(rWS,4)}, s{sX1F} offen sc1')
    vm.issue(f'buffer_store_dwordx4 {V(vNEG,4)}, v{vL16}, {S(rWS,4)}, s{sX1F} offen offset:1024 sc1','fill1')
    def malltouch():
        if opt['touch']:
            a(f's_mul_i32 s{sT+12}, s2, {43*128}')
            touch(rW1,f's{sT+12}',vJ0,43)(); touch(rW2,f's{sT+12}',vJ0,43)()
    if opt['tpos']==0: malltouch()
    ts(17)
    a(f'''s_mov_b32 s{sSPIN}, 0x40000
    s_lshl_b32 s{sOB}, s{sT}, 5
    s_and_b32 s{sT+2}, s{sRB}, 1
    s_lshl_b32 s{sT+2}, s{sT+2}, 4
    s_add_u32 s{sOB}, s{sOB}, s{sT+2}
    s_bfe_u32 s{sT+2}, s{sRB}, 0x10001
    s_add_u32 s{sOB}, s{sOB}, s{sT+2}
    s_mul_i32 s{sW1B}, s{sJ}, 344
    s_mul_i32 s{sT+2}, s{sW}, 96
    s_add_u32 s{sW1B}, s{sW1B}, s{sT+2}
    s_mul_i32 s{sW2B}, s{sW}, {344*1024}
    s_lshl_b32 s{sT+2}, s{sJ}, 7
    s_add_u32 s{sW2B}, s{sW2B}, s{sT+2}
    s_lshl_b32 s{sA2S}, s{sW}, 2
    s_add_u32 s{sA2S}, s{sA2S}, s{sOB}
    s_lshl_b32 s{sA2S}, s{sA2S}, 4
    s_add_u32 s{sA2S}, s{sA2S}, s{sJ}
    s_lshl_b32 s{sA2S}, s{sA2S}, 10
    s_add_u32 s{sA2S}, s{sA2S}, {A2+A2S}
    s_add_u32 s{sA2B}, s{sA2S}, 8192
    s_lshl_b32 s{sPS}, s{sRB}, 2
    s_add_u32 s{sPS}, s{sPS}, s{sW}
    s_lshl_b32 s{sPS}, s{sPS}, 3
    s_add_u32 s{sPS}, s{sPS}, s{sJ}
    s_lshl_b32 s{sPS}, s{sPS}, 7
    s_add_u32 s{sPS}, s{sPS}, {PS}
    s_lshl_b32 s{sXID}, s{sRB}, 10
    s_add_u32 s{sXID}, s{sXID}, {XID}
    v_mov_b32 v{vEPS}, {fhex(1e-5)}''')
    for sr,(b,st) in ((sR12,RG12),(sRX,RGX),(sR45,RG45)): a(f's_mul_i32 s{sr}, s{sW}, {st}\ns_add_u32 s{sr}, s{sr}, {b}')
    t0=vW+24
    a(f'''v_lshrrev_b32 v{t0}, 2, v{vLANE}
    v_lshlrev_b32 v{t0}, 7, v{t0}
    v_and_b32 v{t0+1}, 3, v{vLANE}
    v_lshl_add_u32 v{t0}, v{t0+1}, 3, v{t0}
    v_add_u32 v{t0}, {XT}, v{t0}
    v_bfe_u32 v{t0+1}, v{vLANE}, 3, 2''')
    for lt in range(4): a(f'v_xor_b32 v{vXT+lt}, {lt}, v{t0+1}\nv_lshl_add_u32 v{vXT+lt}, v{vXT+lt}, 5, v{t0}')
    w1_addr(vV1,t0); swz_addr(vV2,10,t0); gather_addr(0)
    vIX=vW+72
    vK=vW+89
    vTA,vA,vB,vC1,vC2,vC3,vE1,vE2,vXTR=[vK+k for k in range(9)]
    a(f'''v_and_b32 v{t0+6}, 127, v0
    v_lshlrev_b32 v{t0}, 4, v{t0+6}
    v_sub_u32 v{t0}, 2032, v{t0}
    v_cvt_f32_i32 v{t0+1}, v{t0}
    s_mul_i32 s{sT+16}, s{sCH}, {KTCH}
    s_add_u32 s{sT+16}, s{sT+16}, {KT}
    v_lshrrev_b32 v{t0+2}, 16, v{t0+1}
    v_subrev_u32 v{t0+2}, 0x4280, v{t0+2}
    v_min_i32 v{t0+3}, 127, v{t0}
    v_max_i32 v{t0+2}, v{t0+2}, v{t0+3}
    v_or_b32 v{t0+2}, 0x4b000000, v{t0+2}
    v_and_b32 v{t0+1}, 0x7f800000, v{t0+1}
    v_max_u32 v{t0+1}, 0x43000000, v{t0+1}
    v_sub_u32 v{t0+1}, 0x82800000, v{t0+1}
    s_sub_u32 s{sT+15}, s{sT+16}, 0x96000000''')
    for k in range(16):
        a(f'v_fmamk_f32 v{t0+3}, v{t0+1}, {fhex(15-k)}, v{t0+2}\nv_lshl_add_u32 v{vIX+k}, v{t0+3}, 1, s{sT+15}')
    a(f'''s_add_u32 s{sT+15}, s{sT+16}, 1400
    v_mov_b32 v{t0+4}, s{sT+15}
    v_subrev_u32 v{vIX+16}, 2, v{vIX+15}
    v_cmp_lt_u32 vcc, 256, v{t0}
    v_cndmask_b32 v{vIX+16}, v{vIX+16}, v{vIX+15}, vcc
    v_cmp_eq_u32 vcc, 0, v{t0}
    v_cndmask_b32 v{vIX+16}, v{vIX+16}, v{t0+4}, vcc
    v_mov_b32 v{t0+5}, 0''')
    lg.issue(f'ds_write_b32 v{t0+4}, v{t0+5}')
    a(f'''s_mul_i32 s{sT+15}, s{sCH}, {UCH}
    v_lshl_add_u32 v{t0+4}, v{t0+6}, 2, s{sT+15}''')
    lg.issue(f'ds_write_b32 v{t0+4}, v{t0+5} offset:{U}')
    a(f'''s_mul_i32 s{sT+15}, s{sCH}, {TCH}
    s_add_u32 s{sT+15}, s{sT+15}, {TAB}
    s_lshl_b32 s{sT+14}, s{sKH}, 8
    s_add_u32 s{sT+14}, s{sT+14}, s{sT+15}
    v_and_b32 v{t0}, 15, v{vLANE}
    v_mul_u32_u24 v{vA}, {TROW}, v{t0}
    v_and_b32 v{vB}, 48, v{vLANE}
    v_add3_u32 v{vA}, v{vA}, v{vB}, s{sT+15}
    s_mul_i32 s{sT+15}, s{sKH}, {16*TROW}
    s_add_u32 s{sT+15}, s{sT+15}, {21*TROW}
    v_add_u32 v{vB}, s{sT+15}, v{vA}
    s_lshl_b32 s{sT+15}, s{sKH}, 4
    v_add_u32 v{t0}, s{sT+15}, v{t0}
    v_lshrrev_b32 v{t0+1}, 4, v{vLANE}
    v_lshlrev_b32 v{vC1}, 4, v{t0}
    v_lshl_add_u32 v{vC1}, v{t0+1}, 3, v{vC1}
    v_lshlrev_b32 v{t0+3}, 3, v{t0}
    v_add_u32 v{t0+3}, 512, v{t0+3}
    v_cmp_eq_u32 vcc, 2, v{t0+1}
    v_cndmask_b32 v{vC1}, v{vC1}, v{t0+3}, vcc
    v_add_u32 v{vC2}, 4, v{vC1}
    v_lshlrev_b32 v{t0+3}, 2, v{t0}
    v_add_u32 v{t0+5}, 768, v{t0+3}
    v_add_u32 v{t0+3}, 896, v{t0+3}
    v_cmp_eq_u32 vcc, 3, v{t0+1}
    v_cndmask_b32 v{vC1}, v{vC1}, v{t0+5}, vcc
    v_cndmask_b32 v{vC2}, v{vC2}, v{t0+3}, vcc
    v_add_u32 v{vC1}, s{sT+16}, v{vC1}
    v_add_u32 v{vC2}, s{sT+16}, v{vC2}
    v_lshlrev_b32 v{vC3}, 1, v{t0}
    v_lshl_add_u32 v{vC3}, v{t0+1}, 8, v{vC3}
    v_add_u32 v{vC3}, s{sT+16}, v{vC3}
    s_mul_i32 s{sT+15}, s{sCH}, {KCH}
    v_lshl_add_u32 v{vE1}, v{t0+6}, 5, s{sT+15}
    v_and_b32 v{vE2}, 7, v{vLANE}
    s_mul_i32 s{sT+15}, s{sW}, {KCP}
    v_lshl_add_u32 v{vE2}, v{vE2}, 3, s{sT+15}
    v_bfe_u32 v{vXTR}, v{vLANE}, 2, 2
    v_lshlrev_b32 v{vXTR}, 8, v{vXTR}
    v_lshl_add_u32 v{vXTR}, v{t0+1}, 5, v{vXTR}
    v_and_b32 v{t0+1}, 3, v{vLANE}
    v_lshl_add_u32 v{vXTR}, v{t0+1}, 3, v{vXTR}
    v_add_u32 v{vXTR}, s{sT+13}, v{vXTR}
    v_mov_b32 v{t0+1}, 0x3f803f80
    v_and_b32 v{t0+4}, 1, v{vLANE}
    v_cmp_eq_u32 vcc, 1, v{t0+4}''')
    l=a.label('noa')
    a(f'''s_cmp_lg_u32 s{sW}, 3
    s_cbranch_scc1 {l}
    s_cmp_ge_u32 s2, 16
    s_cbranch_scc1 {l}
    v_mov_b32 v{vW+2}, 0
    v_mov_b32 v{vW+3}, 1
    s_waitcnt vmcnt({len(vm.ops)-vm.tags['zero']})''')
    exec_set(1,0)
    a(f'global_atomic_add v{vW+2}, v{vW+3}, {S(sDBG,2)} sc1')
    exec_all(); a(f'{l}:')
    ts(20)
    if opt['warm']: a('@WARM@')
    ts(18)
    vm.wait('xs'); ts(1)
    xt=vW+32
    for cb in range(2):
        for hh in range(2): lg.issue(f'ds_read_b64_tr_b16 {V(xt+4*cb+2*hh,2)}, v{vXTR} offset:{cb*128+hh*1024}','xt')
    vm.wait('xr')
    sS,sQ=t0+2,t0+3
    for k in range(8):
        a(f'v_dot2_f32_bf16 v{sS}, v{vXR+k}, v{t0+1}, '+('0' if k==0 else f'v{sS}'))
        a(f'v_dot2_f32_bf16 v{sQ}, v{vXR+k}, v{vXR+k}, '+('0' if k==0 else f'v{sQ}'))
    lg.wait('xt')
    xf=vW+40; rq=vW+56; uf=vXR
    ups=[]
    for k in range(8): ups+=[f'v_lshlrev_b32 v{xf+2*k}, 16, v{xt+k}', f'v_and_b32 v{xf+2*k+1}, 0xffff0000, v{xt+k}']
    a(ups.pop()); a(ups.pop()); a(ups.pop())
    for sh in (8,4,2,1):
        for r in (sS,sQ): a(f'v_add_f32_dpp v{r}, v{r}, v{r} row_ror:{sh} row_mask:0xf bank_mask:0xf')
        a(ups.pop())
    for r in (sS,sQ): a(f'v_add_f32_dpp v{r}, v{r}, v{r} row_bcast:15 row_mask:0xa bank_mask:0xf')
    ln_final(sS,sQ)
    a(f'v_cndmask_b32 v{sS}, v{sQ}, v{sS}, vcc')
    exec_set('0xc0000000','0xc0000000')
    lg.issue(f'ds_write_b32 v{vST}, v{sS} offset:{STAT}')
    exec_all()
    for u_ in ups: a(u_)
    a(f'v_mov_b32 v{t0+4}, {STAT}')
    vm.wait('dsk'); lg.drain(); barrier()
    for k in range(4): lg.issue(f'ds_read_b128 {V(rq+4*k,4)}, v{t0+4} offset:{16*k}')
    a(f'v_lshlrev_b32 v{vPar+6}, 16, v{vPar+6}\nv_lshlrev_b32 v{vPar+7}, 16, v{vPar+7}')
    lg.drain()
    def early_poll():
        l=a.label('nop'); a(f'''s_cmp_lg_u32 s{sW}, 3
        s_cbranch_scc1 {l}
        v_mov_b32 v{vW}, 0
        global_load_dword v{vW+1}, v{vW}, {S(sDBG,2)} sc1
        {l}:''')
    for cb in range(2):
        for k in range(4): a(f'v_pk_fma_f32 {V(uf+2*k,2)}, {V(xf+8*cb+2*k,2)}, {V(rq+2*k,2)}, {V(rq+8+2*k,2)}')
        for k in range(4): a(f'v_cvt_pk_bf16_f32 v{xt+k}, v{uf+2*k}, v{uf+2*k+1}')
        for k in range(4): a(f'v_min_u32 v{xt+k}, -2, v{xt+k}')
        vm.issue(f'buffer_store_dwordx4 {V(xt,4)}, v{vL16}, {S(rWS,4)}, s{sT+4} offen offset:{1024*cb} sc1')
        for k in range(4): a(f'v_pk_fma_f32 {V(uf+2*k,2)}, {V(uf+2*k,2)}, {V(vPar+6,2)}, {V(xf+8*cb+2*k,2)} op_sel:[0,{cb},0] op_sel_hi:[1,{cb},1]')
        for k in range(4): a(f'v_cvt_pk_bf16_f32 v{xt+4+k}, v{uf+2*k}, v{uf+2*k+1}')
        for k in range(4): a(f'v_min_u32 v{xt+4+k}, -2, v{xt+4+k}')
        if cb==1: early_poll()
        vm.issue(f'buffer_store_dwordx4 {V(xt+4,4)}, v{vL16}, {S(rWS,4)}, s{sT+5} offen offset:{1024*cb} sc1','pub')
    if opt['tpos']==1: malltouch()
    if opt['htouch']==1: htouch()
    ts(2)
    dt,la,ai,cr,ci=[vPar+k for k in range(5)]
    vPO=vW; vPV=vW+1
    def arrive():
        vm.wait('pub'); barrier(); ts(19)
        w3poll(vPV,f'global_load_dword v{vPV}, v{vPO}, {S(sDBG,2)} sc1',16,None,arrive_b(vPO,vPV))
    items=issue_items(R1,'r1',vV1,vV2)
    a.sprinkle(items,opt['spr1'] if not opt['nor1'] else 10000)
    for k in range(5): a(f'v_lshlrev_b32 v{vPar+k}, 16, v{vPar+k}')
    a(f'''v_mul_f32 v{dt}, {fhex(LOG2E)}, v{dt}
    v_mul_f32 v{la}, {fhex(LOG2E)}, v{la}
    v_exp_f32 v{dt}, v{dt}
    v_exp_f32 v{la}, v{la}''')
    rbf(dt); rbf(la)
    E=vW+16
    e1,e8,e256,c2=E,E+2,E+4,E+6
    a(f'''v_mul_f32 v{la}, v{la}, v{dt}
    v_mul_f32 v{ai}, v{ai}, v{dt}
    v_mul_f32 v{cr}, v{cr}, v{dt}
    v_mul_f32 v{ci}, v{ci}, v{dt}
    v_mul_f32 v{la}, {fhex(-LOG2E)}, v{la}
    v_mul_f32 v{ai}, 0.15915494, v{ai}
    v_add_f32 v{c2}, v{cr}, v{cr}
    v_mul_f32 v{c2+1}, -2.0, v{ci}''')
    tm=E+8
    for k,(d,p) in enumerate(((e1,1.0),(e8,8.0),(e256,256.0))):
        a(f'v_mul_f32 v{tm+2*k}, {fhex(p)}, v{la}\nv_mul_f32 v{tm+2*k+1}, {fhex(p)}, v{ai}')
    for k in range(3): a(f'v_exp_f32 v{tm+2*k}, v{tm+2*k}\nv_fract_f32 v{tm+2*k+1}, v{tm+2*k+1}')
    for k,d in enumerate((e1,e8,e256)): a(f'v_cos_f32 v{d}, v{tm+2*k+1}\nv_sin_f32 v{d+1}, v{tm+2*k+1}')
    for k,d in enumerate((e1,e8,e256)): a(f'v_pk_mul_f32 {V(d,2)}, {V(d,2)}, {V(tm+2*k,2)} op_sel_hi:[1,0]'+(' neg_hi:[1,0]' if d==e8 else ''))
    pk=[vPar+1,vPar+2,vPar+3,vPar+4]; pi=[0]; seen=[-1]
    def tw(p,row):
        if seen[0]!=len(vm.ops): a(f's_mov_b32 m0, s{sT+14}\ns_nop 0'); seen[0]=len(vm.ops)
        lg.issue(f'ds_write_addtid_b32 v{p} offset:{row*TROW}')
    def put(row,r):
        p=pk[pi[0]%4]; pi[0]+=1
        a(f'v_cvt_pk_bf16_f32 v{p}, v{r}, v{r+1}')
        tw(p,row)
    e2,e3,e4,e5,e6,e7=[E+8+2*k for k in range(6)]
    e16,e32,b1,b2,b3=[E+20+2*k for k in range(5)]
    e512,e768,e1024,ta,tb,tc,td=[E+30+2*k for k in range(7)]
    a(f'v_mov_b32 v{pk[3]}, 0x3f80'); tw(pk[3],0)
    cmuls([(e2,e1,e1),(e16,e8,e8),(b1,c2,e8),(e512,e256,e256)])
    put(1,e1); put(8,e256); put(21,c2)
    cmuls([(e3,e2,e1),(e4,e2,e2),(e32,e16,e16),(b2,c2,e16),(b3,b1,e16),(e768,e512,e256),(e1024,e512,e512),(ta,e256,e2)])
    put(2,e2); put(22,b1); put(12,e512); put(9,ta)
    cmuls([(e5,e4,e1),(e6,e4,e2),(e7,e4,e3),(ta,e256,e4),(tb,e512,e4),(tc,e768,e4),(td,e1024,e256)])
    put(3,e3); put(4,e4); put(23,b2); put(24,b3); put(14,e768); put(16,e1024)
    put(10,ta); put(13,tb); put(15,tc); put(17,td)
    cmuls([(ta,e256,e6),(tb,e1024,e512),(tc,e1024,e768),(td,e1024,e1024)])
    put(5,e5); put(6,e6); put(7,e7)
    put(11,ta); put(18,tb); put(19,tc); put(20,td)
    a.hold+=1; arrive(); a.hold=0
    cur=[c2,b1,b2,b3]; alt=[e2,e3,e4,e5]
    for m in range(1,8):
        cmuls([(alt[k],cur[k],e32) for k in range(4)])
        cur,alt=alt,cur
        for k in range(4): put(21+4*m+k,cur[k])
    ts(3); a.flush()
    lg.drain(); barrier()
    acc=E
    mfs=[]
    for ks in range(8):
        for t in range(2):
            mfs.append((lambda r,ks=ks,t=t: f'{MF} {V(acc+4*t,4)}, {V(r[("A",t,ks)],4)}, {V(r[("B",0,ks)],4)}, '+('0' if ks==0 else V(acc+4*t,4)), [('A',t,ks),('B',0,ks)]))
    def ld(u,r):
        k,t,ks=u
        return [f'ds_read_b128 {V(r,4)}, v{vA if k=="A" else vB} offset:{ks*64+(t*16*TROW if k=="A" else 0)}']
    pipeline(mfs,ld,lg,[E+8+4*k for k in range(12)],16,pre=12)
    c1=consume_items(R1,'r1',vW+2)
    for k in range(12): c1.pop(0)[1]()
    for k in range(4): a(f'v_cvt_pk_bf16_f32 v{acc+2*k}, v{acc+2*k}, v{acc+2*k+1}')
    lg.issue(f'ds_write_b32 v{vC1}, v{acc}')
    lg.issue(f'ds_write_b32 v{vC2}, v{acc+2}')
    exec_set(-1,0)
    lg.issue(f'ds_write_b16 v{vC3}, v{acc+4} offset:1024')
    exec_set(0xffff,0)
    lg.issue(f'ds_write_b16_d16_hi v{vC3}, v{acc+4} offset:1088')
    lg.issue(f'ds_write_b16 v{vC3}, v{acc+6} offset:1152')
    lg.issue(f'ds_write_b16_d16_hi v{vC3}, v{acc+6} offset:1216','kt')
    exec_all()
    for k in range(14): c1.pop(0)[1]()
    lg.wait('kt'); barrier()
    g=E; o=E+20
    for k in range(17): lg.issue(f'ds_read_u16 v{g+k}, v{vIX+k}',('g',k))
    for k,f in c1: f()
    a(f'v_mov_b64 {V(o+16,2)}, 0')
    lg.wait(('c','r1')); ts(21)
    a.sprinkle(issue_items(R2,'r2',vV1,vV2),opt['spr2'])
    for k in range(16): a(f'v_lshl_or_b32 v{o+(k>>1)+8*(k&1)}, v{g+k+1}, 16, v{g+k}')
    for cpy in range(2):
        for h in range(2): lg.issue(f'ds_write_b128 v{vE1}, {V(o+8*cpy+4*h,4)} offset:{KC+cpy*KCP+16*h}')
    lg.issue(f'ds_write_b64 v{vE2}, {V(o+16,2)} offset:{KC+4096}')
    ts(4)
    def phase_in():
        a.flush(); poll_b(vPO,vPV,16)
        barrier()
        gather_u(0,lambda s: vm.issue(s,'gu'))
        a(f'v_and_b32 v{vPO}, 7, v{vLANE}\nv_lshlrev_b32 v{vPO}, 7, v{vPO}')
        vm.issue(f'buffer_load_dword v{vPV}, v{vPO}, {S(rWS,4)}, s{sXID} offen sc1','xid')
        ts(5)
    return vPV,phase_in

def conv(lay,vXID,phase_in):
    acc=vW; vKA=vW+32; vUB=vW+36; vEX=vW+37; vXS=vW+38; vBR=vW+39; F=vW+40
    t=F+40; ck=F
    a(f'''v_and_b32 v{t}, 15, v{vLANE}
    v_lshrrev_b32 v{t+1}, 4, v{vLANE}
    v_and_b32 v{t+2}, 1, v{vLANE}
    v_xor_b32 v{t+2}, 1, v{t+2}
    v_mul_u32_u24 v{t+3}, {KCP-2}, v{t+2}
    v_lshl_add_u32 v{t+4}, v{t+1}, 3, v{t}
    v_lshlrev_b32 v{t+4}, 1, v{t+4}
    v_sub_u32 v{t+3}, v{t+3}, v{t+4}
    s_mul_i32 s{sT+3}, s{sCH}, {KCH}
    s_lshl_b32 s{sT+4}, s{sKH}, 8
    s_sub_u32 s{sT+3}, s{sT+3}, s{sT+4}
    s_add_u32 s{sT+3}, s{sT+3}, {KC+4110-192-512}
    v_add_u32 v{vKA}, s{sT+3}, v{t+3}''')
    for m in range(1,4): a(f'v_subrev_u32 v{vKA+m}, {1024*m}, v{vKA}')
    a(f'''v_lshlrev_b32 v{vUB}, 5, v{t}
    v_lshlrev_b32 v{t+3}, 4, v{t+1}
    v_sub_u32 v{vUB}, v{vUB}, v{t+3}
    s_mul_i32 s{sT+3}, s{sCH}, {UCH}
    s_sub_u32 s{sT+3}, s{sT+3}, s{sT+4}
    s_add_u32 s{sT+3}, s{sT+3}, {U+528-192}
    v_add_u32 v{vUB}, s{sT+3}, v{vUB}
    s_lshl_b32 s{sT+3}, s{sCH}, 13
    s_add_u32 s{sT+3}, s{sT+3}, {EXCH}
    v_lshl_add_u32 v{vEX}, v{vLANE}, 4, s{sT+3}
    v_and_b32 v{t+2}, 1, v{t+1}
    v_mul_u32_u24 v{t+2}, 3, v{t+2}
    v_xor_b32 v{t+2}, s{sKH}, v{t+2}
    v_lshlrev_b32 v{t+2}, 9, v{t+2}
    v_lshrrev_b32 v{t+3}, 1, v{t+1}
    v_mul_u32_u24 v{t+4}, 3, v{t+3}
    v_xor_b32 v{t+4}, s{sKH}, v{t+4}
    v_lshlrev_b32 v{t+4}, 5, v{t+4}
    v_and_or_b32 v{t+4}, v{t+1}, 1, v{t+4}
    v_lshl_add_u32 v{t+2}, v{t+3}, 8, v{t+2}
    v_lshl_add_u32 v{vXS}, v{t}, 4, v{t+2}
    v_lshl_add_u32 v{vGB}, v{t}, 1, v{t+4}
    v_lshlrev_b32 v{vGB}, 14, v{vGB}
    v_lshlrev_b32 v{t}, 4, v0
    s_lshl_b32 s{sT+18}, s{sCH}, 4
    s_add_u32 s{sT+18}, s{sT+18}, s{sT+20}
    s_add_u32 s{sT+18}, s{sT+18}, 8192
    s_lshl_b32 s{sT+5}, s{sCP}, 1
    s_add_u32 s{sT+5}, s{sT+5}, s{sCH}
    s_lshl_b32 s{sT+5}, s{sT+5}, 12
    s_add_u32 s{sT+5}, s{sT+5}, {X1+2*MB*lay}''')
    def rb(iss):
        for ch in range(2): iss(f'ds_read_b128 {V(ck+4*ch,4)}, v{t} offset:{U+512+ch*UCH}')
    def check():
        vm.wait('gu')
        if lay==0: return
        rb(lambda s: lg.issue(s,'ck'))
        lr=a.label('gr'); lb=a.label('gb')
        lg.wait('ck'); maxchain(t+2,range(ck,ck+8))
        a(f'v_cmp_eq_u32 vcc, -1, v{t+2}\ns_cbranch_vccnz {lr}\n{lb}:')
        def c():
            a(f'{lr}:\ns_sub_u32 s{sSPIN}, s{sSPIN}, 1\ns_cbranch_scc1 L_bail'); gather_u(lay,a)
            a('s_waitcnt vmcnt(0)'); rb(a); a('s_waitcnt lgkmcnt(0)')
            maxchain(t+2,range(ck,ck+8)); a(f'v_cmp_eq_u32 vcc, -1, v{t+2}\ns_cbranch_vccnz {lr}\ns_branch {lb}')
        cold.append(c)
    ID=GB-8
    def ident():
        a(f'''s_movk_i32 s{sT+17}, 0x3f80
        v_lshrrev_b32 v{t+4}, 4, v{vLANE}
        v_and_b32 v{t+5}, 15, v{vLANE}
        v_lshlrev_b32 v{t+4}, 3, v{t+4}
        v_sub_u32 v{t+5}, v{t+5}, v{t+4}
        v_and_b32 v{t+6}, 1, v{vLANE}
        v_lshlrev_b32 v{t+6}, 4, v{t+6}
        v_lshlrev_b32 v{t+6}, v{t+6}, s{sT+17}
        v_ashrrev_i32 v{t+7}, 1, v{t+5}''')
        for k in range(8): a(f'v_cmp_eq_u32 s[{sT+6+2*(k&3)}:{sT+7+2*(k&3)}], {k if k<4 else k-12}, v{t+7}'+(''.join(f'\nv_cndmask_b32 v{ID+k-3+e}, 0, v{t+6}, s[{sT+6+2*e}:{sT+7+2*e}]' for e in range(4)) if k&3==3 else ''))
    if lay==0: ident()
    phase_in()
    for n in range(2): gather_b(n,lambda s: vm.issue(s,'gb'))
    if lay==1: ident(); check(); ts(6)
    else:
        if opt['htouch']==6: htouch()
        consume(R2,'r2',t+4)
        vm.wait('xid')
        a(f'''v_cmp_ne_u32 vcc, s{sXCC}, v{vXID}
        s_nop 1
        s_cmp_eq_u64 vcc, 0
        s_cselect_b32 s{sLOC}, {0 if opt['forceglobal'] else 1}, 0''')
        ts(6)
    KEEP=[(0,3,4,7),(1,2,5,6)]
    lg.drain(); barrier(); ts(7)
    def ld(u,r):
        k,s,x=u
        if k=='B': return [f'ds_read_b128 {V(r,4)}, v{vUB} offset:{192-64*s+512*x}']
        o=(192-64*s+512*(1-(x&1)))//4
        return [f'ds_read2_b32 {V(r,2)}, v{vKA+(x>>1)} offset0:{o} offset1:{o+1}', f'ds_read2_b32 {V(r+2,2)}, v{vKA+(x>>1)} offset0:{o+2} offset1:{o+3}']
    l1=a.label('tkh1'); l2=a.label('tkhj')
    a(f's_cmp_lg_u32 s{sKH}, 0\ns_cbranch_scc1 {l1}')
    sv=save()
    for kh in range(2):
        restore(sv)
        keep=KEEP[kh]; send=KEEP[1-kh]
        allp=[(q,b) for q in range(8) for b in range(8-q)]
        sq=lambda L: sorted(L,key=lambda p:(max(p),p[1]>=p[0] and p[1]==max(p),min(p)))
        seq=[(s_,q,b) for s_ in range(3) for q,b in sq(allp)]
        seq+=[(3,q,b) for q,b in sq([p for p in allp if sum(p) in send])]+[(3,q,b) for q,b in sq([p for p in allp if sum(p) in keep])]
        seen=set(); mfs=[]; fixed={}; firstk={}
        for s_,q,b in seq:
            G=q+b; us=[('A',s_,q),('B',s_,b)]; c=V(acc+4*G,4)
            if G not in seen:
                seen.add(G)
                c='0'
            mfs.append((lambda r,s_=s_,q=q,b=b,G=G,c=c: f'{MF} {V(acc+4*G,4)}, {V(r[("A",s_,q)],4)}, {V(r[("B",s_,b)],4)}, {c}',us))
        slots=[F+4*k for k in range(21)]; fr=slots[:4]
        fill=[]
        bi=opt['basei']
        for n in range(4): mfs.insert(bi+n,(lambda r,n=n: f'{MF} {V(acc+4*keep[n],4)}, {V(ID+4*(n&1),4)}, {V(GB+4*(n>>1),4)}, {V(acc+4*keep[n],4)}',[]))
        post=[]
        post.append((bi-12,'s',lambda: vm.wait('gb'),bi-3))
        if lay==1:
            lr=a.label('br'); lb=a.label('bb'); mxr=GB-12
            post+=FV(bi-12,f'v_max3_u32 v{mxr}, v{GB}, v{GB+1}, v{GB+2}\nv_max3_u32 v{mxr}, v{mxr}, v{GB+3}, v{GB+4}\nv_max3_u32 v{mxr}, v{mxr}, v{GB+5}, v{GB+6}\nv_max_u32 v{mxr}, v{mxr}, v{GB+7}',bi-2)
            post.append((bi-12,'v',lambda lr=lr,lb=lb: a(f'v_cmp_eq_u32 vcc, -1, v{mxr}\ns_cbranch_vccnz {lr}\n{lb}:'),bi-1))
            def cb(lr=lr,lb=lb):
                a(f'{lr}:\ns_sub_u32 s{sSPIN}, s{sSPIN}, 1\ns_cbranch_scc1 L_bail'); gather_b(0,a); gather_b(1,a)
                a('s_waitcnt vmcnt(0)'); maxchain(mxr,range(GB,GB+8)); a(f'v_cmp_eq_u32 vcc, -1, v{mxr}\ns_cbranch_vccnz {lr}\ns_branch {lb}')
            cold.append(cb)
        if lay==0:
            for n,f in enumerate(issue_items(R3,'r3',vV1,vV2)): fill.append((opt['cv0']+n*opt['cvsp'],'m',f))
        fill=sorted(fill+post,key=lambda x:x[0])
        for n in range(4): fill.append((130+3+2*n,'m',lambda n=n: lg.issue(f'ds_write_b128 v{vEX}, {V(acc+4*send[n],4)} offset:{kh*4096+n*1024}')))
        fill.append((142,'s',lambda: (lg.drain(),barrier())[0]))
        for n in range(4): fill.append((142+n,'m',lambda n=n: lg.issue(f'ds_read_b128 {V(fr[n],4)}, v{vEX} offset:{(1-kh)*4096+n*1024}',('ex',n))))
        pipeline(mfs,ld,lg,slots,opt['cv_ahead'],fill=fill,limited={r:140 for r in fr},fixed=fixed,pre=10,late={GB-12+4*k:bi+5 for k in range(5)})
        o=acc+4*send[0]; o2=acc+4*send[2]
        for p in range(2):
            lg.wait(('ex',2*p+1))
            d=(o,o2)[p]
            for e in range(2):
                G=keep[2*p+e]; r=fr[2*p+e]
                a(f'v_pk_add_f32 {V(r,2)}, {V(r,2)}, {V(acc+4*G,2)}\nv_pk_add_f32 {V(r+2,2)}, {V(r+2,2)}, {V(acc+4*G+2,2)}')
                a(f'v_cvt_pk_bf16_f32 v{d+2*e}, v{r}, v{r+1}\nv_cvt_pk_bf16_f32 v{d+2*e+1}, v{r+2}, v{r+3}')
            for k in range(4): a(f'v_min_u32 v{d+k}, -2, v{d+k}')
            a(f'v_permlane16_swap_b32 v{d}, v{d+2}\nv_permlane16_swap_b32 v{d+1}, v{d+3}')
            vm.issue(f'buffer_store_dwordx4 {V(d,4)}, v{vXS}, {S(rWS,4)}, s{sT+5} offen offset:{2048*p} sc1','x1st')
        if kh==0: a(f's_branch {l2}\n{l1}:')
    a(f'{l2}:'); lg.reset(); ts(8)

def loc_store(text):
    if LAY[0]==0 and not opt['htouch']: vm.issue(text+' sc1'); return
    lq=a.label('hs'); le=a.label('he')
    a(f's_cmp_eq_u32 s{sLOC}, 0\ns_cbranch_scc1 {lq}'); vm.issue(text); a(f'{le}:')
    cold.append(lambda: a(f'{lq}:\n{text} sc1\ns_branch {le}'))

def g1(lay):
    acc=vW; F=vW+48; vXD=vW+80; vCK=vW+81; mx=vW+82; vM=vW+83; tv=vW+84; m=vW+116; vW2=vW+122
    CH=[(0,4),(4,9),(9,16)]; CHAT=[0,opt['ch1'],opt['ch2']]
    swz_addr(vXD,12,mx)
    a(f'''s_lshl_b32 s{sT+2}, s{sW}, 15
    s_lshl_b32 s{sT+3}, s{sRB}, 7
    s_add_u32 s{sT+2}, s{sT+2}, s{sT+3}
    s_add_u32 s{sT+2}, s{sT+2}, {X1+2*MB*lay}
    s_lshl_b32 s{sT+3}, s{sW}, 10
    s_add_u32 s{sT+3}, s{sT+3}, {XT}
    v_lshl_add_u32 v{vCK}, v{vLANE}, 4, s{sT+3}''')
    if lay==0:
        a(f'v_mov_b32 v{vW2}, v{vV2}')
        consume(R3,'r3',tv); lg.drain()
    vm.wait('x1st'); barrier(); ts(9)
    def dma(ks,iss):
        a(f's_add_u32 m0, s{sT+3}, {ks*4096}\ns_add_u32 s{sT+4}, s{sT+2}, {ks*131072}')
        iss(f'buffer_load_dwordx4 v{vXD}, {S(rWS,4)}, s{sT+4} offen sc1 lds')
    dm=[lambda ks=ks: dma(ks,lambda s: vm.issue(s,('x',[c for c in range(len(CH)) if CH[c][0]<=ks<CH[c][1]][0]))) for ks in range(16)]
    if lay==0:
        for k in range(opt['xpre']): dm.pop(0)()
        w1_finish(dm)
    for f in dm: f()
    a(f'''s_bfe_u32 s{sT+5}, s{sCP}, 0x40001
    s_and_b32 s{sT+9}, s{sT+5}, 1
    s_mul_i32 s{sT+5}, s{sT+5}, {44*8192}
    s_lshr_b32 s{sT+6}, s{sCP}, 5
    s_lshl_b32 s{sT+6}, s{sT+6}, 10
    s_add_u32 s{sT+5}, s{sT+5}, s{sT+6}
    s_and_b32 s{sT+7}, s{sJ}, 1
    s_lshl_b32 s{sT+6}, s{sT+7}, 2
    s_add_u32 s{sT+6}, s{sT+6}, s{sW}
    s_lshl_b32 s{sT+6}, s{sT+6}, 13
    s_add_u32 s{sT+6}, s{sT+6}, s{sT+5}
    s_cmp_eq_u32 s{sW}, 2
    s_cselect_b32 s{sT+8}, 2, s{sT+7}
    s_cselect_b32 s{sT+7}, s{sT+7}, s{sW}
    s_xor_b32 s{sT+9}, s{sT+9}, s{sT+7}
    s_lshl_b32 s{sT+8}, s{sT+8}, 1
    s_add_u32 s{sT+7}, s{sT+7}, s{sT+8}
    s_add_u32 s{sT+7}, s{sT+7}, 32
    s_lshl_b32 s{sT+7}, s{sT+7}, 13
    s_add_u32 s{sT+7}, s{sT+7}, s{sT+5}
    v_lshlrev_b32 v{vM}, 2, v{vLANE}
    v_and_b32 v{vM}, 60, v{vM}
    v_add_u32 v{vM}, {STAT}, v{vM}''')
    def chk_items(c,at):
        ks0,ks1=CH[c]; it=[(at,'s',lambda: vm.wait(('x',c)))]
        n=ks1-ks0
        for k in range(n): it.append((at,'m',lambda k=k: lg.issue(f'ds_read_b128 {V(tv+4*k,4)}, v{vCK} offset:{(ks0+k)*4096}',('ck',k))))
        lr=a.label('xre'); lb=a.label('xbk'); at2=at+n+6
        for k in range(n):
            it.append((at2,'s',lambda k=k: lg.wait(('ck',k))))
            r=tv+4*k
            it+=FV(at2,f'v_max3_u32 v{r}, v{r}, v{r+1}, v{r+2}\n'+(f'v_max_u32 v{mx}, v{r}, v{r+3}' if k==0 else f'v_max3_u32 v{mx}, v{mx}, v{r}, v{r+3}'))
        def redo():
            a(f'{lr}:\ns_sub_u32 s{sSPIN}, s{sSPIN}, 1\ns_cbranch_scc1 L_bail')
            for ks in range(ks0,ks1): dma(ks,a)
            a('s_waitcnt vmcnt(0)')
            for k in range(n): a(f'ds_read_b128 {V(tv+4*k,4)}, v{vCK} offset:{(ks0+k)*4096}')
            a('s_waitcnt lgkmcnt(0)'); maxchain(mx,range(tv,tv+4*n))
            a(f'v_cmp_eq_u32 vcc, -1, v{mx}\ns_cbranch_vccnz {lr}\ns_branch {lb}')
        def test():
            a(f'v_cmp_eq_u32 vcc, -1, v{mx}\ns_cbranch_vccnz {lr}\n{lb}:'); barrier(); cold.append(redo); return f'c{c}'
        it.append((at2,'v',test)); return it
    for x in chk_items(0,0): x[2]()
    ts(10)
    def ld(u,r):
        ks,lt=u[:2]
        return [f'ds_read_b64_tr_b16 {V(r+2*hh,2)}, v{vXT+lt} offset:{ks*4096+hh*2048}' for hh in range(2)]
    l3=a.label('g1w3'); lj=a.label('g1j')
    a(f's_cmp_eq_u32 s{sW}, 3\ns_cbranch_scc1 {l3}')
    sv=save()
    for var in range(2):
        restore(sv)
        def mk(ks,lt,t,u):
            def f(r):
                x=V(r[u],4); A=x if (var==1 and t==2) else W1R(t,ks); d=V(acc+16*t+4*lt,4)
                return f'{MF} {d}, {A}, {x}, '+('0' if ks==0 else d)
            return (f,[u])
        mfs=[mk(ks,lt,t,(ks,lt)) for ks in range(16) for lt in range(4) for t in range(3) if not(var==1 and t==2 and ks>=12)]
        if var==1: mfs+=[mk(ks,lt,2,(ks,lt)) for ks in range(12,16) for lt in range(4)]
        fill=[];gates={}
        for c in range(1,len(CH)):
            for ks in range(*CH[c]):
                for lt in range(4): gates[(ks,lt)]=f'c{c}'
        fill+=chk_items(1,CHAT[1])
        if lay==0: fill+=[(30+n*opt['g1sp'],'m',f) for n,f in enumerate(issue_items(R4,'r4',0,vW2)[:8])]
        fill+=chk_items(2,CHAT[2])
        if lay==0:
            fill+=[(80+n*opt['g1sp'],'m',f) for n,f in enumerate(issue_items(R4,'r4',0,vW2)[8:])]
            fill+=[(105+n,'M' if k=='m' else k,f) for n,(k,f) in enumerate(consume_items(R4,'r4',m))]
            fill.append((146,'s',lambda: lg.wait(('c','r4'))))
            fill+=[(148+2*n,'m',f,150+2*n) for n,f in enumerate(issue_items(R5,'r5',0,vW2))]
        if lay==0:
            e=opt['g1f']; ng=tv+24
            late=FV(e,a2_vaddr(mx,vCK)+f'\nv_lshlrev_b32 v{vCK}, 4, v{vLANE}\n'+'\n'.join(f'v_mov_b32 v{ng+k}, -1' for k in range(4)))
            for sb in (sA2S,sA2B):
                for p in range(2): late.append((e,'m',lambda sb=sb,p=p: vm.issue(f'buffer_store_dwordx4 {V(ng,4)}, v{mx}, {S(rWS,4)}, s{sb} offen offset:{512*p} sc1')))
            late+=FS(e,f's_add_u32 s{sT+14}, s{sX1F}, {2*MB}')
            for p in range(2): late.append((e,'m',lambda p=p: vm.issue(f'buffer_store_dwordx4 {V(ng,4)}, v{vCK}, {S(rWS,4)}, s{sT+14} offen offset:{1024*p} sc1')))
            def psf():
                exec_set(0xff,0); vm.issue(f'buffer_store_dwordx4 {V(ng,4)}, v{vCK}, {S(rWS,4)}, s{sPS} offen sc1'); exec_all()
            late.append((e,'m',psf,128))
            k=max(n for n,x in enumerate(fill) if x[0]<=e)+1
            fill[k:k]=late
        if var==1:
            fill+=FV(120,f'''v_lshlrev_b32 v{m+4}, 2, v{vLANE}
            v_and_b32 v{m+5}, 3, v{vLANE}
            v_cmp_eq_u32 s[{sT+10}:{sT+11}], 1, v{m+5}
            v_cmp_eq_u32 s[{sT+12}:{sT+13}], 2, v{m+5}
            v_cmp_eq_u32 vcc, 3, v{m+5}''')
            def pubS():
                exec_set(0,'0xffff0000')
                for lt in range(4): lg.issue(f'ds_write_b32 v{m+4}, v{acc+16+4*lt} offset:{STAT-192+64*lt}')
                exec_all()
            fill.append((179,'s',pubS)); fill.append((182,'s',lambda: (lg.drain(),barrier())[0]))
        else: fill.append((182,'s',barrier))
        fill.append((182,'m',lambda: lg.issue(f'ds_read2_b32 {V(m,2)}, v{vM} offset0:0 offset1:16')))
        fill.append((182,'m',lambda: lg.issue(f'ds_read2_b32 {V(m+2,2)}, v{vM} offset0:32 offset1:48','m')))
        pipeline(mfs,ld,lg,[F+4*k for k in range(8)]+([tv+4*k for k in range(8)] if var else []),opt['g1_ahead'],fill=fill,gates=gates,pre=6,late={tv+4*k:130 for k in range(8)})
        if var==1:
            exec_set(0,'0xffff0000')
            for k in range(8): a(f'v_mov_b64 {V(acc+16+2*k,2)}, 0')
            if lay==0:
                for k in range(2): a(f'v_mov_b64 {V(vCS+4+2*k,2)}, 0')
            exec_all()
        lg.wait('m'); ts(11)
        pk=F; vL=vXD
        a(f'v_lshlrev_b32 v{vL}, 4, v{vLANE}')
        def cvt(tt,lt,p):
            r=acc+16*tt+4*lt
            for h in range(2): a(f'v_pk_fma_f32 {V(r+2*h,2)}, {V(m+(lt&2),2)}, {V(vCS+4*tt+2*h,2)}, {V(r+2*h,2)} op_sel:[{lt&1},0,0] op_sel_hi:[{lt&1},1,1] neg_lo:[1,0,0] neg_hi:[1,0,0]')
            for h in range(2): a(f'v_cvt_pk_bf16_f32 v{p+h}, v{r+2*h}, v{r+2*h+1}')
            for h in range(2): a(f'v_pk_max_i16 v{p+h}, v{p+h}, 0')
        def store(p,sb,off):
            a(f's_add_u32 s{sT+8}, s{sb}, {off}'); loc_store(f'buffer_store_dwordx4 {V(p,4)}, v{vL}, {S(rWS,4)}, s{sT+8} offen')
        for lt in range(4):
            cvt(0,lt,pk+4*lt); cvt(1,lt,pk+4*lt+2); store(pk+4*lt,sT+6,lt*65536)
        if var==0:
            for lt in range(4): cvt(2,lt,pk+16+2*lt)
            l=a.label('nosw'); a(f's_cmp_eq_u32 s{sT+9}, 0\ns_cbranch_scc1 {l}')
            for p in range(2):
                for h in range(2): a(f'v_swap_b32 v{pk+16+4*p+h}, v{pk+18+4*p+h}')
            a(f'{l}:')
            for p in range(2): store(pk+16+4*p,sT+7,p*49152)
            a(f's_branch {lj}\n{l3}:')
        else:
            for lt in range(4):
                q=acc+32+4*lt
                a(f'''v_cndmask_b32 v{q}, v{q}, v{q+1}, s[{sT+10}:{sT+11}]
                v_cndmask_b32 v{q}, v{q}, v{q+2}, s[{sT+12}:{sT+13}]
                v_cndmask_b32 v{q}, v{q}, v{q+3}, vcc''')
            exec_set('0x00f0000f','0xf0000f00')
            for lt in range(4): a(f'ds_write_b32 v{vM}, v{acc+32+4*lt} offset:{256+64*lt}')
            exec_all()
    a(f'{lj}:'); lg.reset()
    t=vW+36; vL2=vW+32
    a(f'''v_mov_b32 v{mx}, {lay+1}
    v_lshlrev_b32 v{vL2}, 4, v{vLANE}
    v_and_b32 v{t}, 7, v{vLANE}
    v_lshlrev_b32 v{t}, 2, v{t}
    s_lshl_b32 s{sT+3}, s{sRB}, 2
    s_add_u32 s{sT+3}, s{sT+3}, s{sW}
    s_lshl_b32 s{sT+2}, s{sT+3}, 5
    s_add_u32 s{sT+2}, s{sT+2}, {HF}
    s_and_b32 s{sT+3}, s{sT+3}, 15
    s_mul_i32 s{sT+3}, s{sT+3}, {44*8192}
    s_lshr_b32 s{sT+4}, s{sCP}, 5
    s_lshl_b32 s{sT+4}, s{sT+4}, 10
    s_add_u32 s{sT+3}, s{sT+3}, s{sT+4}''')
    for r in range(4):
        a(f'''s_xor_b32 s{sT+4}, s{sW}, {3-r}
        s_lshl_b32 s{sT+8+r}, s{sT+4}, 16
        s_add_u32 s{sT+8+r}, s{sT+8+r}, s{sT+3}''')
        if r in (0,2):
            a(f'''s_lshr_b32 s{sT+12+r//2}, s{sT+4}, 1
            s_mul_i32 s{sT+12+r//2}, s{sT+12+r//2}, 49152
            s_add_u32 s{sT+12+r//2}, s{sT+12+r//2}, s{sT+3}
            s_add_u32 s{sT+12+r//2}, s{sT+12+r//2}, {32*8192}''')
        if r<3: a(f's_mul_i32 s{sT+4}, s{sT+4}, 12288\ns_add_u32 s{sT+5+r}, s{sT+4}, {RED+4096*r}')
    vm.drain()
    exec_set(1,0)
    loc_store(f'buffer_store_dword v{mx}, v{vL}, {S(rWS,4)}, s{sHF} offen')
    exec_all(); ts(12)
    pl=f'buffer_load_dword v{t+1}, v{t}, {S(rWS,4)}, s{sT+2} offen sc1'
    if lay==0:
        consume(R5,'r5',m)
    l=a.label('hp'); d=a.label('hpd')
    a(f'{l}:\n{pl}\ns_waitcnt vmcnt(0)\nv_cmp_ge_u32 vcc, {lay}, v{t+1}\ns_cbranch_vccz {d}')
    spin_check(l); a(f'{d}:'); vm.reset()
    if lay==0: lg.drain()
    ts(13)

def g2(layer):
    acc=vW; vL=vW+32; vR=vW+33; vA=vW+34; vB=vW+35; OD=vW+36; F=vW+60
    slots=[F+4*k for k in range(16)]
    P=slots[0]; RS=slots[4]; XF=slots[5]; T=OD; DV=OD+16
    mfs=[]; fixed={}; fill=[]
    M=lambda i,t,tag=None: fill.append((i,'m',lambda: lg.issue(t,tag)))
    W=lambda i,tag: fill.append((i,'s',lambda: lg.wait(tag)))
    BAR=lambda i: fill.append((i,'s',lambda: (lg.drain(),barrier())[0]))
    order=[(0,k) for k in range(10)]+[(1,8),(0,10),(1,9),(1,0),(1,10)]+[(1,k) for k in range(1,8)]
    seen=set(); pos={}
    for pr in range(2):
        for e,ks in order:
            r=2*pr+e; pos[(r,ks)]=len(mfs)
            if ks<8: u=(r,ks); off=0
            else: u=('o',pr,ks); off=2 if e==0 else 0
            for dt in range(4):
                def f(rg,r=r,ks=ks,dt=dt,u=u,off=off,z=r not in seen):
                    h=V(rg[u]+off,4); w=W2R(ks,dt); d=V(acc+16*(r&1)+4*dt,4)
                    A,B=(h,w) if layer==0 else (w,h)
                    return f'{MF} {d}, {A}, {B}, '+('0' if z else d)
                mfs.append((f,[u]))
            seen.add(r)
    for pr in range(2):
        for ks in (8,9,10): fixed[('o',pr,ks)]=(OD+8*(ks-8), 0 if pr==0 else pos[(1,ks)]+4)
    def mov(pr,ks):
        o=OD+8*(ks-8); return FV(pos[(2*pr,ks)]+4,f'v_mov_b32 v{o+2}, v{o+6}\nv_mov_b32 v{o+3}, v{o+7}',pos[(2*pr+1,ks)]-1)
    def put(r,e):
        fill.extend(FV(e,f'v_add_u32 v{vR}, s{sT+5+r}, v{vL}'))
        for dt in range(4): M(e+2+2*dt,f'ds_write_b128 v{vR}, {V(acc+16*(r&1)+4*dt,4)} offset:{dt*1024}')
    if layer==0:
        t=f'''v_and_b32 v{vA}, 15, v{vLANE}
        v_bfe_u32 v{vB}, v{vLANE}, 1, 2
        v_xor_b32 v{vB}, s{sW}, v{vB}
        v_lshlrev_b32 v{vB}, 5, v{vB}
        v_lshl_add_u32 v{vA}, v{vA}, 7, v{vB}
        v_lshrrev_b32 v{vB}, 4, v{vLANE}
        v_lshl_add_u32 v{vA}, v{vB}, 3, v{vA}
        v_lshlrev_b32 v{vB}, 4, v{vB}'''
    else:
        t=f'''v_bfe_u32 v{vB}, v{vLANE}, 3, 2
        v_xor_b32 v{vB}, s{sW}, v{vB}
        v_lshlrev_b32 v{vB}, 5, v{vB}
        v_lshrrev_b32 v{vA}, 2, v{vLANE}
        v_lshl_add_u32 v{vA}, v{vA}, 7, v{vB}
        v_and_b32 v{vB}, 3, v{vLANE}
        v_lshl_add_u32 v{vA}, v{vB}, 3, v{vA}
        v_and_b32 v{vB}, 15, v{vLANE}
        v_lshlrev_b32 v{vB}, 2, v{vB}'''
    t+=f'''
    s_lshl_b32 s{sT+4}, s{sJ}, 13
    s_add_u32 s{sT+4}, s{sT+4}, {XT}
    v_add_u32 v{vA}, s{sT+4}, v{vA}
    s_lshl_b32 s{sT+4}, s{sW}, 6
    v_add_u32 v{vB}, s{sT+4}, v{vB}
    s_mul_i32 s{sT+4}, s{sW}, 12288
    s_add_u32 s{sT+4}, s{sT+4}, {RED}'''
    fill+=FX(4,t); BAR(20)
    if layer==0:
        def arr():
            l=a.label('na'); a(f's_cmp_lg_u32 s{sW}, 3\ns_cbranch_scc1 {l}\n'+arrive_b(vR,vR+0).replace(f'v_mov_b32 v{vR}, 1',f'v_mov_b32 v{vEPS}, 1').replace(f'buffer_atomic_add v{vR},',f'buffer_atomic_add v{vEPS},')+f'\nv_mov_b32 v{vEPS}, {fhex(1e-5)}\n{l}:')
        fill.append((21,'s',arr))
    fill+=mov(0,8)+mov(0,9)+mov(0,10)
    put(0,pos[(0,10)]+6)
    e=62; nr=4 if layer==0 else 1; rw='b128' if layer==0 else 'b32'; tr="_tr_b16" if layer else ""
    M(e,f'ds_read_{rw} {V(XF,nr)}, v{vB} offset:{STAT}'); M(e,f'ds_read_{rw} {V(RS,nr)}, v{vB} offset:{STAT+256}','st')
    for dt in range(1,4): M(e,f'ds_read_b64{tr} {V(XF+4*dt+2,2)}, v{vA} offset:{dt*2048}',('xr',dt))
    e+=9; W(e,'st')
    for i in range(nr): fill+=FV(e,f'v_mul_f32 v{XF+i}, {fhex(1/512)}, v{XF+i}\nv_fmamk_f32 v{RS+i}, v{RS+i}, {fhex(1/512)}, v{vEPS}')
    for i in range(nr): fill+=FV(e,f'v_fma_f32 v{RS+i}, -v{XF+i}, v{XF+i}, v{RS+i}')
    M(e,f'ds_read_b64{tr} {V(XF+2,2)}, v{vA}',('xr',0))
    for i in range(nr): fill+=FV(e,f'v_max_f32 v{RS+i}, v{RS+i}, v{vEPS}')
    for i in range(nr): fill+=FV(e,f'v_rsq_f32 v{RS+i}, v{RS+i}')
    put(1,90)
    for dt in (1,2,3,0):
        W(e,('xr',dt)); x_=XF+4*dt
        fill+=FV(e,f'v_lshlrev_b32 v{x_}, 16, v{x_+2}\nv_and_b32 v{x_+1}, 0xffff0000, v{x_+2}\nv_lshlrev_b32 v{x_+2}, 16, v{x_+3}\nv_and_b32 v{x_+3}, 0xffff0000, v{x_+3}')
    b1=106; BAR(b1); fill+=FV(b1,f'v_add_u32 v{vR}, s{sT+4}, v{vL}')
    for dt in range(4):
        M(b1,f'ds_read_b128 {V(P+4*dt,4)}, v{vR} offset:{dt*1024}')
        M(b1,f'ds_read_b128 {V(acc+16+4*dt,4)}, v{vR} offset:{4096+dt*1024}',('p',dt))
    for dt in range(4):
        W(b1,('p',dt)); fill+=FV(b1,'\n'.join(f'v_add_f32 v{P+4*dt+i}, v{P+4*dt+i}, v{acc+16+4*dt+i}' for i in range(4)),pos[(3,8)]-1)
    fill+=mov(1,8)+mov(1,9)+mov(1,10)
    put(2,pos[(2,10)]+6)
    b2=pos[(2,10)]+18; BAR(b2); fill+=FV(b2,f'v_add_u32 v{vR}, s{sT+4}, v{vL}')
    for dt in range(4): M(b2,f'ds_read_b128 {V(acc+4*dt,4)}, v{vR} offset:{8192+dt*1024}',('q',dt))
    if layer==0:
        fill+=FV(b2,a2_vaddr(vA,vB)+f'''
        v_lshrrev_b32 v{vB}, 2, v{vLANE}
        v_lshlrev_b32 v{vB}, 3, v{vB}
        v_and_b32 v{DV+4}, 15, v{vLANE}
        v_lshlrev_b32 v{DV+4}, 1, v{DV+4}
        v_lshl_add_u32 v{DV+4}, s{sJ}, 7, v{DV+4}''')
        for dt in range(4): fill.append((b2,'m',lambda dt=dt: vm.issue(f'global_load_ushort v{DV+dt}, v{DV+4}, {S(sDS,2)} offset:{32*dt}','dv')))
        fill+=FV(b2,f'''v_and_b32 v{DV+5}, 7, v{vLANE}
        v_lshlrev_b32 v{DV+5}, 7, v{DV+5}
        v_lshrrev_b32 v{DV+6}, 3, v{vLANE}
        v_lshl_add_u32 v{DV+5}, v{DV+6}, 4, v{DV+5}''')
        fill+=FS(b2,f's_andn2_b32 s{sD1}, s{sPS}, 0x3ff')
        fill.append((b2,'m',lambda: vm.issue(f'buffer_load_dword v{DV+6}, v{DV+5}, {S(rWS,4)}, s{sD1} offen sc1')))
    else:
        fill+=FX(b2,f'''v_bfe_u32 v{vA}, v{vLANE}, 3, 1
        v_lshlrev_b32 v{vA}, 14, v{vA}
        v_and_b32 v{vB}, 7, v{vLANE}
        v_lshl_add_u32 v{vA}, v{vB}, 10, v{vA}
        v_bfe_u32 v{vB}, v{vLANE}, 4, 1
        v_lshl_add_u32 v{vA}, v{vB}, 5, v{vA}
        v_lshrrev_b32 v{vB}, 5, v{vLANE}
        v_lshl_add_u32 v{vA}, v{vB}, 4, v{vA}
        s_lshl_b32 s{sT+4}, s{sW}, 2
        s_add_u32 s{sT+4}, s{sT+4}, s{sOB}
        s_lshl_b32 s{sT+4}, s{sT+4}, 13
        s_lshl_b32 s{sT+5}, s{sJ}, 7
        s_add_u32 s{sT+4}, s{sT+4}, s{sT+5}''')
    for dt in range(4):
        W(b2,('q',dt)); fill+=FV(b2,'\n'.join(f'v_add_f32 v{P+4*dt+i}, v{P+4*dt+i}, v{acc+4*dt+i}' for i in range(4)))
    def ld(u,rg):
        if u[0]=='o':
            k=2*(u[2]-8)
            return [f's_add_u32 s{sT+14}, s{sT+12+u[1]}, {(k+e)*8192}\nbuffer_load_dwordx4 {V(rg+4*e,4)}, v{vL}, {S(rWS,4)}, s{sT+14} offen sc1' for e in range(2)]
        r,ks=u
        return [f's_add_u32 s{sT+14}, s{sT+8+r}, {ks*8192}\nbuffer_load_dwordx4 {V(rg,4)}, v{vL}, {S(rWS,4)}, s{sT+14} offen sc1']
    lim={r:b1-1 for r in slots[0:4]}; lim.update({r:60 for r in slots[4:9]})
    pipeline(mfs,ld,vm,slots,200,fill=fill,fixed=fixed,limited=lim,pre=opt['g2pre'],pace=opt['g2pace'])
    ts(14)
    x=XF
    def val(dt):
        for h in range(2):
            k=4*dt+2*h
            a(f'v_pk_add_f32 {V(P+k,2)}, {V(P+k,2)}, {V(acc+16+k,2)}')
        for h in range(2):
            k=4*dt+2*h
            if layer==0: a(f'v_pk_fma_f32 {V(x+k,2)}, {V(P+k,2)}, {V(RS+2*h,2)}, {V(x+k,2)}')
            else: a(f'v_pk_fma_f32 {V(x+k,2)}, {V(P+k,2)}, {V(RS,2)}, {V(x+k,2)} op_sel_hi:[1,0,1]')
    def out(src,p,d,txt):
        for k in range(4): a(f'v_cvt_pk_bf16_f32 v{d+k}, v{src+8*p+2*k}, v{src+8*p+2*k+1}')
        if layer==0:
            for k in range(4): a(f'v_min_u32 v{d+k}, -2, v{d+k}')
        a(f'v_permlane16_swap_b32 v{d}, v{d+2}\nv_permlane16_swap_b32 v{d+1}, v{d+3}')
        vm.issue(f'buffer_store_dwordx4 {V(d,4)}, v{vA}, {txt}','a2st')
    if layer==1:
        for p in range(2): val(2*p); val(2*p+1); out(x,p,T+4*p,f'{S(rOUT,4)}, s{sT+4} offen offset:{64*p}')
        ts(15); return
    for dt in range(4): val(dt)
    s_=P; q_=P+4
    for h in range(2): a(f'v_pk_add_f32 {V(s_+2*h,2)}, {V(x+2*h,2)}, {V(x+4+2*h,2)}\nv_pk_mul_f32 {V(q_+2*h,2)}, {V(x+2*h,2)}, {V(x+2*h,2)}')
    for dt in range(1,4):
        for h in range(2):
            if dt>1: a(f'v_pk_add_f32 {V(s_+2*h,2)}, {V(s_+2*h,2)}, {V(x+4*dt+2*h,2)}')
            a(f'v_pk_fma_f32 {V(q_+2*h,2)}, {V(x+4*dt+2*h,2)}, {V(x+4*dt+2*h,2)}, {V(q_+2*h,2)}')
    D=lambda d,s,c,bm: a(f'v_add_f32_dpp v{d}, v{s}, v{s} {c} row_mask:0xf bank_mask:{bm}')
    for r in (s_,q_):
        for i in range(2): D(r+i,r+i,'row_ror:8','0x3')
    for r in (s_,q_):
        for i in range(2): D(r+i,r+i+2,'row_ror:8','0xc')
    o=P+8
    for k,r in enumerate((s_,q_)): D(o+k,r,'row_half_mirror','0x5')
    for k,r in enumerate((s_,q_)): D(o+k,r+1,'row_half_mirror','0xa')
    for c in ('quad_perm:[2,3,0,1]','quad_perm:[1,0,3,2]'):
        for k in range(2): D(o+k,o+k,c,'0xf')
    for k in range(2): a(f'v_min_u32 v{o+k}, -2, v{o+k}')
    exec_set('0x11111111','0x11111111')
    loc_store(f'buffer_store_dwordx2 {V(o,2)}, v{vB}, {S(rWS,4)}, s{sPS} offen')
    exec_all(); ts(15)
    gather_addr(1); vm.wait('dv')
    for dt in range(4): a(f'v_lshlrev_b32 v{DV+dt}, 16, v{DV+dt}')
    l=a.label('fsl'); ok=a.label('fsok'); y=acc
    a(f'''s_waitcnt vmcnt(0)
    {l}:
    buffer_load_dwordx4 {V(y,4)}, v{DV+5}, {S(rWS,4)}, s{sD1} offen sc1
    s_waitcnt vmcnt(0)''')
    maxchain(y+4,range(y,y+4))
    a(f'v_cmp_eq_u32 vcc, -1, v{y+4}\ns_cbranch_vccz {ok}')
    spin_check(l); a(f'{ok}:'); vm.reset(); ts(23)
    for c in ('quad_perm:[1,0,3,2]','quad_perm:[2,3,0,1]','row_half_mirror'):
        for k in range(4): D(y+k,y+k,c,'0xf')
    rr=y+4; qq=y+8
    for e in range(2): a(f'v_mul_f32 v{y+2*e}, {fhex(-1/512)}, v{y+2*e}\nv_fmamk_f32 v{y+2*e+1}, v{y+2*e+1}, {fhex(1/512)}, v{vEPS}')
    for e in range(2): a(f'v_fma_f32 v{y+2*e+1}, -v{y+2*e}, v{y+2*e}, v{y+2*e+1}')
    for e in range(2): a(f'v_max_f32 v{y+2*e+1}, v{y+2*e+1}, v{vEPS}')
    for e in range(2): a(f'v_rsq_f32 v{rr+e}, v{y+2*e+1}')
    for e in range(2): a(f'v_mul_f32 v{qq+e}, v{y+2*e}, v{rr+e}')
    for r in (rr,qq): a(f'v_mov_b64 {V(r+2,2)}, {V(r,2)}')
    for r in (rr,qq):
        for e in range(2): a(f'v_mov_b32_dpp v{r+e}, v{r+2+e} row_ror:8 row_mask:0xf bank_mask:0xc')
    for r in (rr,qq):
        for e in range(2): a(f'v_mov_b32_dpp v{r+2+e}, v{r+2+e} row_ror:8 row_mask:0xf bank_mask:0x3')
    u=acc+16
    for p in range(2):
        for k in range(4): a(f'v_pk_fma_f32 {V(u+8*p+2*k,2)}, {V(x+8*p+2*k,2)}, {V(rr+2*(k&1),2)}, {V(qq+2*(k&1),2)}')
        out(u,p,T+4*p,f'{S(rWS,4)}, s{sA2S} offen offset:{512*p} sc1'); vm.tags['ust']=len(vm.ops)
    for p in range(2):
        for k in range(4): a(f'v_pk_fma_f32 {V(x+8*p+2*k,2)}, {V(u+8*p+2*k,2)}, {V(DV+2*p,2)}, {V(x+8*p+2*k,2)} op_sel:[0,{k>>1},0] op_sel_hi:[1,{k>>1},1]')
        out(x,p,T+8+4*p,f'{S(rWS,4)}, s{sA2B} offen offset:{512*p} sc1')
    ts(16)

vx,pin=p0()
conv(0,vx,pin); stop('conv')
g1(0); stop('g1')
g2(0); stop('g2')
ts_park(); LAY[0]=1
def pin1():
    poll_b(vW,vW+1,32); vm.wait('ust'); barrier(); ts(22)
    gather_u(1,lambda s: vm.issue(s,'gu')); ts(5)
conv(1,None,pin1); g1(1); g2(1)
ts_dump(256); ts_dump(0)
if opt['probe']>=0:
    if opt['only']>=0: a(f's_cmp_lg_u32 s2, {opt["only"]}\ns_cbranch_scc1 L_end')
    a('''s_add_u32 s101, s101, 10000
    L_probe:
    s_memrealtime s[96:97]
    s_waitcnt lgkmcnt(0)
    s_sub_u32 s96, s96, s101
    s_cmp_lt_i32 s96, 0
    s_cbranch_scc1 L_probe''')
a('L_end:\ns_endpgm\nL_cold:')
for c in cold: c()
a(f'''L_bail:
s_mov_b64 exec, -1
v_mov_b32 v{vW}, 32
v_mov_b32 v{vW+1}, 1
global_atomic_add v{vW}, v{vW+1}, {S(sDBG,2)} sc1
s_endpgm''')
lines=fix_hazards([l.replace('@CODEMAX@','L_cold-L_pc') for l in a.lines])
n=NAME+'_kernel'
def wrap(lines):
    hdr=open('cdna_kernels/'+NAME+'.s.ref').read().split('; Override')[0]
    return hdr+f'; @launch grid=(256,1,1) block=(256,1,1) lds={LDS_END}\n.amdgcn_target "amdgcn-amd-amdhsa--gfx950"\n.text\n'+khead(n)+'\n'.join(lines)+'\n.section .rodata,"a"\n'+kdesc(n,512,102,256)
lines=add_warm(lines,wrap,sW) if opt['warm'] else [l for l in lines if '@WARM@' not in l]
sys.stdout.write(wrap(lines))
```

```python
import sys, math
from asmlib import *
opt=dict(ts=0, stop='', warm=1, forceglobal=0, probe=-1, play=0, early=0, only=-1, cv_ahead=26, g1_ahead=21, nm=3, ch1=20, ch2=55, spr1=12, spr2=4, g2pre=2, g2pace=4, touch=2, htouch=6, cvsp=4, g1sp=2, nor1=0, xpre=4, now=0, basei=40, cv0=40, tpos=0, g1f=11, xl0=34, xlsp=3, xl1=74, xl2=118, he=98, hp=168, hl=42, hlw=14, dfe=0, dfl=7, psl=146, psw=27, r4a=2, r4c=30, r5a=74, xe=128, ul=30, ulw=42, cvm=1, psp=30, c0=4, bl=64, npl=3, hf2=14, bud=2, age=7, age2=30, lag=6, w2t=0, w2s=10, xesp=2, xo=58, hf=146, rot=1, gaf=1, pr1=124)
for s in sys.argv[1:]:
    k,v=s.split('='); opt[k]=int(v) if v.lstrip('-').isdigit() else v
TS=opt['ts']; STOP=opt['stop']
MB=1<<20
A2=0; A2S=6*MB; X1=10*MB; HB=0; PS=14*MB; HF=PS+262144; XID=HF+4096; CB=XID+32768; WSZ=15*MB; DUMP=20*MB
KC=0; KCH=8320; KCP=4160
U=16640; UCH=4608
STAT=25856
XT=27648; RED=XT+65536; LDS_END=163840
TAB=XT; TROW=528; TCH=53*TROW; KT=XT+2*TCH; KTCH=1408
EXCH=XT+32768
RG12=(XT+58880,19328); RGX=(XT+49152,4096); RG45=(RED,17664)
sX=4;sLA=6;sAI=8;sCR=10;sCI=12;sLD=14;sDS=16;sW1=20;sW2=22;sOUT=24;sDBG=26;sWS=28
rWS=32;rW1=36;rW2=40;rOUT=44
sW=48;sCP=49;sRB=50;sJ=51;sLAY=52;sLOC=53;sOB=54;sXCC=55;sSPIN=56;sKH=57;sD0=58;sD1=60
sR12=62;sRX=63;sR45=64;sW1B=65;sW2B=66;sCH=67
rX=68
gH=4;gO=6;gI=7;gB=10;gF=11;hS=12;hO=13;hW=14;xG=15;xL=20;gX=21;gU=22;gP=23;MK=(24,68,70)
sT=72
def S(n,k=1): return f's{n}' if k==1 else f's[{n}:{n+k-1}]'
def V(n,k=1): return f'v{n}' if k==1 else f'v[{n}:{n+k-1}]'
vTID=0;vLANE=1;vCS=2;vXT=14;vTS=18;vEPS=19;vW=20
def W1R(t,ks,k=4,o=0):
    i=(t*16+ks)*4+o
    return (f'a[{176+i}:{176+i+k-1}]' if k>1 else f'a{176+i}') if i<80 else V(144+i-80,k)
def W2R(ks,dt,k=4,o=0):
    i=(ks*4+dt)*4+o
    return f'a[{i}:{i+k-1}]'
MF='v_mfma_f32_16x16x32_bf16'
a=Asm(); vm=Ctr(a,'vmcnt',63); lg=Ctr(a,'lgkmcnt',15)
LAY=[0]
def ts(i):
    if opt['probe']>=0:
        if i==0 and opt['early']: a('s_mov_b32 s100, s96\ns_mov_b32 s101, s96')
        elif i==0: a('s_memrealtime s[96:97]\ns_waitcnt lgkmcnt(0)\ns_mov_b32 s100, s96\ns_mov_b32 s101, s96'); lg.reset()
        elif i==opt['probe']:
            l=a.label('pr')
            if LAY[0]==opt['play']: a('s_memrealtime s[96:97]\ns_waitcnt lgkmcnt(0)\ns_mov_b32 s101, s96')
    if TS==1 or (TS and (i==0 or (i==15 and LAY[0]))): a(f's_memrealtime s[96:97]\ns_waitcnt lgkmcnt(0)\nv_writelane_b32 v{vTS}, s96, {i}\nv_writelane_b32 v{vTS}, s{sSPIN}, {32+i}'); lg.reset()
def ts_park():
    if TS==1: a(f'v_lshlrev_b32 v143, 2, v0\nds_write_b32 v143, v{vTS} offset:{STAT+512}\ns_waitcnt lgkmcnt(0)')
def ts_dump(slot):
    if TS==1 or (TS and slot):
        if slot==0: a(f'v_lshlrev_b32 v143, 2, v0\nds_read_b32 v{vTS}, v143 offset:{STAT+512}\ns_waitcnt lgkmcnt(0)')
        a(f'''s_lshl_b32 s96, s2, 2
        s_add_u32 s96, s96, s{sW}
        s_mul_i32 s96, s96, 768
        s_add_u32 s96, s96, {slot}
        s_add_u32 s98, s{sWS}, {DUMP}
        s_addc_u32 s99, s{sWS+1}, 0
        v_lshl_add_u32 v143, v{vLANE}, 2, s96''')
        vm.issue(f'global_store_dword v143, v{vTS}, s[98:99]')
def exec_set(lo,hi):
    a.hold=100; a(f's_mov_b32 exec_lo, {lo}\ns_mov_b32 exec_hi, {hi}')
def exec_all():
    a('s_mov_b64 exec, -1'); a.hold=0
def spin_check(lbl):
    a(f's_sub_u32 s{sSPIN}, s{sSPIN}, 1\ns_cbranch_scc1 L_bail\ns_branch {lbl}')
def barrier(): a('s_barrier')
def stop(name):
    if STOP==name:
        ts_dump(0); a('s_waitcnt vmcnt(0) lgkmcnt(0)\ns_endpgm')

def w1_addr(vd,tmp):
    for k in range(3):
        a(f'''v_add_u32 v{tmp}, {64*k}, v{vLANE}
        v_mul_u32_u24 v{tmp+1}, 0xaaab, v{tmp}
        v_lshrrev_b32 v{tmp+1}, 18, v{tmp+1}
        v_mul_u32_u24 v{tmp+2}, 6, v{tmp+1}
        v_sub_u32 v{tmp}, v{tmp}, v{tmp+2}
        v_mul_u32_u24 v{tmp+1}, 2752, v{tmp+1}
        v_lshl_add_u32 v{vd+k}, v{tmp}, 4, v{tmp+1}'''+(f'\nv_subrev_u32 v{vd+k}, {1024*k}, v{vd+k}' if k else ''))
def swz_addr(vd,rowshift,tmp):
    a(f'''v_lshrrev_b32 v{tmp}, 3, v{vLANE}
    v_and_b32 v{vd}, 6, v{tmp}
    v_xor_b32 v{vd}, v{vd}, v{vLANE}
    v_and_b32 v{vd}, 7, v{vd}
    v_lshlrev_b32 v{vd}, 4, v{vd}
    v_lshl_add_u32 v{vd}, v{tmp}, {rowshift}, v{vd}''')
def w2_tiles(ks):
    if ks==10: return (16*8, 172+16*8)
    if ks>=8: return (172*(ks-8)+32, 172*(ks-8)+80)
    jj,k=divmod(ks,4); ta,tb=[(0,1),(3,4),(6,7),(9,10)][k]
    return (172*jj+16*ta,172*jj+16*tb)
def mkround(*parts):
    r=[]
    for sreg,items in parts:
        off=0
        for kind,ks in items:
            r.append((kind,ks,sreg,off)); off+=3072 if kind=='w1' else 4096
    return r
R1=mkround((sR12,[('w1',k) for k in range(0,6)])); R2=mkround((sR12,[('w1',k) for k in range(6,12)]))
R3=mkround((sR45,[('w1',k) for k in range(12,16)]+[('w2',0)]),(sRX,[('w2',1)]))
R4=mkround((sR45,[('w2',k) for k in range(2,6)])); R5=mkround((sR45,[('w2',k) for k in range(6,10)]),(sRX,[('w2',10)]))
def issue_items(R,tag,v1,v2,solo=False):
    L=[]
    if opt['now']: return L
    for kind,ks,sreg,off in R:
        for k in range(3 if kind=='w1' else 4):
            def f(kind=kind,ks=ks,sreg=sreg,off=off,k=k):
                if k==0 or not solo: a(f's_add_u32 m0, s{sreg}, {off}')
                if kind=='w1':
                    if k==0: a(f's_add_u32 s{sD0}, s{sW1B}, {ks*88064}')
                    vm.issue(f'buffer_load_dwordx4 v{v1+k}, {S(rW1,4)}, s{sD0} offen offset:{1024*k} lds',(tag,kind,ks))
                else:
                    fa,fb=w2_tiles(ks); f0=(fa if k<2 else fb)+8*(k&1)
                    a(f's_add_u32 s{sD0}, s{sW2B}, {(f0-k)*1024}')
                    vm.issue(f'buffer_load_dwordx4 v{v2}, {S(rW2,4)}, s{sD0} offen offset:{1024*k} lds',(tag,kind,ks))
            L.append(f)
    return L
def consume_items(R,tag,vt):
    L=[]; cur={}
    if opt['now']: return [('s',lambda: lg.tags.__setitem__(('c',tag),len(lg.ops)))]*30
    for kind,ks,sreg,off in R:
        if cur.get('reg')!=(kind,sreg):
            cur['reg']=(kind,sreg)
            if kind=='w1':
                t=f'''v_lshrrev_b32 v{vt}, 2, v{vLANE}
                v_mul_u32_u24 v{vt}, 96, v{vt}
                v_and_b32 v{vt+1}, 3, v{vLANE}
                v_lshl_add_u32 v{vt}, v{vt+1}, 3, v{vt}
                v_add_u32 v{vt}, s{sreg}, v{vt}
                v_mul_u32_u24 v{vt+4}, 96, v{vLANE}
                v_add_u32 v{vt+4}, s{sreg}, v{vt+4}
                v_mov_b32 v{vt+2}, 0x3f803f80
                v_mov_b32 v{vt+3}, 0x3f803f80'''
            else:
                t='\n'.join(f'v_xad_u32 v{vt+1+dt}, v{vXT+2+(dt&1)}, {32*(dt&2)}, s{sreg}' for dt in range(4))
            L+=[(x[1],x[2]) for x in FX(0,t)]
        L.append(('s',lambda kind=kind,ks=ks: vm.wait((tag,kind,ks|(kind=='w1')))))
        def ones(off=off):
            l=a.label('on'); a(f's_cmp_lg_u32 s{sW}, 3\ns_cbranch_scc1 {l}\nds_write_b64 v{vt+4}, {V(vt+2,2)} offset:{off+56}\n{l}:')
        if kind=='w1' and ks%2==0: L.append(('m',ones))
        if kind=='w1':
            for t in range(3):
                for hh in range(2): L.append(('m',lambda t=t,hh=hh,ks=ks,off=off: lg.issue(f'ds_read_b64_tr_b16 {W1R(t,ks,2,2*hh)}, v{vt} offset:{off+hh*1536+t*32}',('c',tag))))
        else:
            for dt in range(4):
                for hh in range(2): L.append(('m',lambda dt=dt,hh=hh,ks=ks,off=off: lg.issue(f'ds_read_b64_tr_b16 {W2R(ks,dt,2,2*hh)}, v{vt+1+dt} offset:{off+hh*2048}',('c',tag))))
    return L
def consume(R,tag,vt):
    for k,f in consume_items(R,tag,vt): f()
def pipeline(mfs, loadfn, ctr, slots, ahead, fill=None, gates=None, limited=None, fixed=None, pre=8, late=None, pace=1, have=None, mark='', age=None):
    age=age or opt['age']; SPL=('s_add_u32','s_addk_i32','s_mul_i32','s_and_b32','s_lshl_b32','s_lshr_b32','s_lshl3_add_u32','s_lshl2_add_u32')
    fill=list(fill or []); gates=gates or {}; limited=limited or {}; fixed=fixed or {}; late=late or {}
    first={};last={}
    for i,(f,us) in enumerate(mfs):
        for u in us: first.setdefault(u,i); last[u]=i
    order=sorted(first,key=lambda u:first[u]); free=list(slots); reg={}; opened=set()
    q=[]; nxt=[0]
    for u,r in (have or {}).items(): reg[u]=r; order.remove(u); free.remove(r)
    def alloc(u,i):
        if u in fixed:
            r,e=fixed[u]
            return r if e<=i else None
        for r in sorted(free,key=lambda r:limited.get(r,1<<30)):
            if limited.get(r,1<<30)>=last[u] and late.get(r,0)<=i: free.remove(r); return r
        return None
    def one_load(i,force=False):
        if not q:
            if nxt[0]>=len(order): return False
            u=order[nxt[0]]
            if u in gates and gates[u] not in opened:
                if not force:
                    c=[x for x in order[nxt[0]:] if x not in gates and first[x]-i<=ahead]
                    if not c or len([r for r in free if late.get(r,0)<=i])<=4: return False
                    order.remove(c[0]); order.insert(nxt[0],c[0]); return one_load(i)
                while gates[u] not in opened: run_fill()
            if not force and first[u]-i>ahead: return False
            r=alloc(u,i)
            if r is None:
                assert not force,('no slot',i,u); return False
            reg[u]=r; q.extend((u,t) for t in loadfn(u,r)); nxt[0]+=1
            if not q: return one_load(i,force)
        u,t=q.pop(0); ctr.issue(t,('f',u)); return True
    skip=[0]; when={}
    def nl(k): return sum(1 for l in a.lines[k:] if not l.endswith(':'))
    def run_fill():
        k=len(a.lines); r=fill.pop(0)[2](); del a.lines[k:k+skip[0]]; skip[0]=0
        if isinstance(r,str): opened.add(r)
    def peek():
        st=save(); k=len(a.lines); nc=len(cold); h=a.hold; fill[0][2](); L=a.lines[k+skip[0]:]; del a.lines[k:]; del cold[nc:]; restore(st); a.hold=h
        return [l for l in L if not l.endswith(':')]
    def unissued(us): return any(u not in reg or any(x[0]==u for x in q) for u in us)
    def need(us):
        tg=[ctr.tags[('f',u)] for u in us if ('f',u) in ctr.tags]
        return max(tg) if tg and max(tg)>ctr.du else 0
    for i,(f,us) in enumerate(mfs):
        k0=len(a.lines); n0=len(ctr.ops)
        if i==0:
            for k in range(pre): one_load(0)
        else:
            room=lambda: opt['bud']-nl(k0)-(1 if need(us) else 0)
            nf=first[q[0][0]] if q else (first[order[nxt[0]]] if nxt[0]<len(order) else 1<<30)
            hot=fill and fill[0][0]<=i
            L=peek() if hot else []
            big=len(L)>1 and L[0].split()[0] not in SPL and nf-i>ahead//3
            if i%pace==1%pace and not(big and pace==1) and not(hot and i-fill[0][0]>opt['lag'] and nf-i>ahead//2): one_load(i)
            mem=0
            while fill and fill[0][0]<=i:
                L=peek(); ism=fill[0][1] in 'mM'
                if len(L)<=room() or (nl(k0)==0 and not(L[0].split()[0] in SPL)) or (room()>0 and i-fill[0][0]>opt['lag']):
                    if ism and mem: break
                    mem+=ism; run_fill()
                elif room()>0 and L[0].split()[0] in SPL: a(L[0]); skip[0]+=1
                else: break
            if pace==1 and room()>0 and len(ctr.ops)==n0: one_load(i)
        while any(len(x)>3 and x[3]<=i for x in fill): run_fill()
        while unissued(us): one_load(i,True)
        for k in range(n0,len(ctr.ops)): when[k+1]=i
        k=need(us)
        if k:
            while k<len(ctr.ops) and when.get(k+1,0)<=i-age: k+=1
            ctr.tags['_']=k; ctr.wait('_')
        a(f(reg))
        if mark and mark==opt.get('tsx') and i%24==23 and i<190: ts(24+i//24)
        for u in set(us):
            if last[u]==i and u not in fixed: free.append(reg[u])
    while fill: run_fill()
    return reg
def FV(i,text,dl=1<<30): return [(i,'v',(lambda t=t: a(t)),dl) for t in text.split('\n') if t.strip()]
def FS(i,text): return [(i,'s',(lambda t=t: a(t))) for t in text.split('\n') if t.strip()]
def FX(i,text): return [(i,'s' if t.strip().startswith('s_') else 'v',(lambda t=t: a(t))) for t in text.split('\n') if t.strip()]

def chain(i,items,step=0,dl=None):
    o=[]
    for n,x in enumerate(items):
        x=x if isinstance(x[0],str) else x[1:]
        o.append((i+int(n*step),)+tuple(x[:2])+((dl,) if dl is not None else tuple(x[2:])))
    return o
def merge(*ch): return sorted(sum(ch,[]),key=lambda x:x[0])
import copy
def save(): return [copy.copy(x) for x in (vm.ops,vm.dc,vm.du,vm.tags,lg.ops,lg.dc,lg.du,lg.tags)]
def restore(st): vm.ops,vm.dc,vm.du,vm.tags,lg.ops,lg.dc,lg.du,lg.tags=[copy.copy(x) for x in st]
def maxchain(dst,regs):
    regs=list(regs)
    a(f'v_max3_u32 v{dst}, v{regs[0]}, v{regs[1]}, v{regs[2]}'); regs=regs[3:]
    while len(regs)>=2: a(f'v_max3_u32 v{dst}, v{dst}, v{regs[0]}, v{regs[1]}'); regs=regs[2:]
    if regs: a(f'v_max_u32 v{dst}, v{dst}, v{regs[0]}')
def cmul(d,x,y):
    a(f'v_pk_mul_f32 {V(d,2)}, {V(x,2)}, {V(y,2)} op_sel:[0,0] op_sel_hi:[0,1]')
    return f'v_pk_fma_f32 {V(d,2)}, {V(x,2)}, {V(y,2)}, {V(d,2)} op_sel:[1,1,0] op_sel_hi:[1,0,1] neg_lo:[0,1,0]'
def cmuls(L):
    for t in [cmul(*x) for x in L]: a(t)
LOG2E=math.log2(math.e)
def rbf(v): a(f'v_cvt_pk_bf16_f32 v{v}, v{v}, v{v}\nv_lshlrev_b32 v{v}, 16, v{v}')
def ln_final(s,q):
    a(f'''v_mul_f32 v{s}, {fhex(-1/512)}, v{s}
    v_fmamk_f32 v{q}, v{q}, {fhex(1/512)}, v{vEPS}
    v_fma_f32 v{q}, -v{s}, v{s}, v{q}
    v_max_f32 v{q}, v{q}, v{vEPS}
    v_rsq_f32 v{q}, v{q}
    v_mul_f32 v{s}, v{s}, v{q}''')
def a2_vaddr(vd,tmp):
    return f'''v_lshrrev_b32 v{tmp}, 5, v{vLANE}
    v_and_b32 v{vd}, 31, v{vLANE}
    v_lshlrev_b32 v{vd}, 4, v{vd}
    v_lshl_add_u32 v{vd}, v{tmp}, 15, v{vd}'''
vV1=2; vV2=5; vNEG=6; vL16=10; vTCH=11; vJ0=12; vJ1=13
sA2S=30; sPS=31; sA2B=18; sHF=19; sX1F=3; sXID=sLAY
cold=[]
GB=vW+116; vGA=vW+104; vGB=vW+39
def gather_u(hf,iss):
    a(f's_add_u32 m0, s{sT+19}, {hf*2048}\ns_add_u32 s{sT+21}, s{sT+20}, {hf<<21}')
    iss(f'buffer_load_dwordx4 v{vGA}, {S(rWS,4)}, s{sT+21} offen sc1 lds')
def gather_b(n,iss):
    a(f's_add_u32 s{sT+21}, s{sT+18}, {n<<21}')
    iss(f'buffer_load_dwordx4 {V(GB+4*n,4)}, v{vGB}, {S(rWS,4)}, s{sT+21} offen sc1')
def gather_addr(lay):
    a(f'''v_and_b32 v{vGA}, 127, v0
    v_lshlrev_b32 v{vGA}, 14, v{vGA}
    s_lshl1_add_u32 s{sT+20}, s{sCP}, s{sCH}
    s_lshl_b32 s{sT+20}, s{sT+20}, 4
    s_add_u32 s{sT+20}, s{sT+20}, {A2+A2S*lay}
    s_mul_i32 s{sT+19}, s{sCH}, {UCH}
    s_lshl_b32 s{sT+21}, s{sKH}, 10
    s_add_u32 s{sT+19}, s{sT+19}, s{sT+21}
    s_add_u32 s{sT+19}, s{sT+19}, {U+512}''')
def touch(srd,soff,dst,nl):
    def f():
        if nl<256: a(f'v_min_u32 v{vJ1}, {(nl-1)*128}, v{vTCH}')
        vm.issue(f'buffer_load_dword v{dst}, v{vTCH if nl==256 else vJ1}, {S(srd,4)}, {soff} offen')
    return f
def htouch():
    a(f'''s_and_b32 s{sT+1}, s{sCP}, 31
    s_mul_i32 s{sT+1}, s{sT+1}, 6
    s_add_u32 s{sT+1}, s{sT+1}, 512
    s_lshl_b32 s{sT+1}, s{sT+1}, 3
    s_lshr_b32 s{sT}, s{sCP}, 5
    s_add_u32 s{sT+1}, s{sT+1}, s{sT}
    s_lshl_b32 s{sT+1}, s{sT+1}, 10
    v_min_u32 v{vJ1}, 47, v0
    v_lshrrev_b32 v{vTCH}, 3, v{vJ1}
    v_and_b32 v{vJ1}, 7, v{vJ1}
    v_lshlrev_b32 v{vJ1}, 7, v{vJ1}
    v_lshl_add_u32 v{vJ1}, v{vTCH}, 13, v{vJ1}''')
    vm.issue(f'buffer_load_dword v{vJ0}, v{vJ1}, {S(rWS,4)}, s{sT+1} offen')
def arrive_b(va,vb):
    return f'''s_and_b32 s{sT+1}, s2, 15
    s_lshl_b32 s{sT+1}, s{sT+1}, 7
    s_add_u32 s{sT+1}, s{sT+1}, {CB}
    v_lshlrev_b32 v{va}, 11, v{vLANE}
    v_mov_b32 v{vb}, 1
    s_mov_b64 exec, 0xffff
    buffer_atomic_add v{vb}, v{va}, {S(rWS,4)}, s{sT+1} offen sc1
    s_mov_b64 exec, -1'''
def w3poll(vPV,load,lim,pre='',post=''):
    d=a.label('pd'); l=a.label('pl'); k=a.label('pk'); a.hold+=1
    if pre is None: pre=f'v_cmp_gt_u32 vcc, {lim}, v{vPV}\ns_cbranch_vccz {k}'
    a(f's_cmp_lg_u32 s{sW}, 3\ns_cbranch_scc1 {d}\n{pre}\n{l}:\n{load}\ns_waitcnt vmcnt(0)\nv_cmp_gt_u32 vcc, {lim}, v{vPV}\ns_cbranch_vccz {k}\ns_sleep 2')
    spin_check(l); a(f'{k}:\n{post}\n{d}:'); a.hold-=1
def poll_b(va,vb,lim):
    w3poll(vb,f'buffer_load_dword v{vb}, v{va}, {S(rWS,4)}, s{sT+2} offen sc1',lim,
      f'''s_and_b32 s{sT+2}, s2, 15
      s_lshl_b32 s{sT+2}, s{sT+2}, 11
      s_add_u32 s{sT+2}, s{sT+2}, {CB}
      v_and_b32 v{va}, 15, v{vLANE}
      v_lshlrev_b32 v{va}, 7, v{va}''')
def p0():
    if opt['early']: a('s_memrealtime s[96:97]')
    vST=vW; vP=vW+1; vXB=vW+2; vXD=vW+3; vT0=vW+4; vPar=vW+8; vXR=vW+16
    a(f'''s_cmp_ge_u32 s2, 256
    s_cbranch_scc1 L_end
    s_load_dwordx16 s[4:19], s[0:1], 0
    s_load_dwordx8 s[20:27], s[0:1], 64
    s_load_dwordx2 s[28:29], s[0:1], 96
    s_getpc_b64 s[{sD0}:{sD0+1}]
    L_pc:
    s_lshr_b32 s{sT+1}, s2, 3
    s_mul_i32 s{sT}, s{sT+1}, {14*128}
    v_min_u32 v{vJ1}, 13, v0
    v_lshl_add_u32 v{vJ1}, v{vJ1}, 7, s{sT}
    v_min_u32 v{vJ1}, @CODEMAX@, v{vJ1}
    global_load_dword v{vJ0}, v{vJ1}, s[{sD0}:{sD0+1}]
    v_lshrrev_b32 v{vW}, 6, v0
    v_and_b32 v{vLANE}, 63, v0
    v_readfirstlane_b32 s{sW}, v{vW}
    s_getreg_b32 s{sXCC}, hwreg(HW_REG_XCC_ID, 0, 4)
    s_and_b32 s{sT}, s2, 7
    s_lshr_b32 s{sT+1}, s2, 3
    s_lshl_b32 s{sCP}, s{sT}, 5
    s_add_u32 s{sCP}, s{sCP}, s{sT+1}
    s_lshr_b32 s{sRB}, s{sCP}, 3
    s_and_b32 s{sJ}, s{sCP}, 7
    s_and_b32 s{sKH}, s{sW}, 1
    s_lshr_b32 s{sCH}, s{sW}, 1
    v_mov_b64 {V(vNEG,2)}, -1
    v_mov_b64 {V(vNEG+2,2)}, -1
    v_lshlrev_b32 v{vL16}, 4, v{vLANE}
    v_and_b32 v{vST}, 1, v{vLANE}
    v_lshlrev_b32 v{vST}, 5, v{vST}
    v_lshrrev_b32 v{vT0}, 5, v0
    v_lshl_add_u32 v{vST}, v{vT0}, 2, v{vST}
    v_lshlrev_b32 v{vP}, 1, v0
    v_lshlrev_b32 v{vXB}, 5, v0
    v_lshrrev_b32 v{vT0}, 4, v{vLANE}
    v_and_b32 v{vXD}, 15, v{vLANE}
    v_lshlrev_b32 v{vXD}, 4, v{vXD}
    v_lshl_add_u32 v{vXD}, v{vT0}, 10, v{vXD}
    v_lshlrev_b32 v{vTCH}, 7, v0
    s_lshl_b32 s{sT+3}, s2, 13
    s_lshl_b32 s{sT+13}, s{sW}, 11
    s_lshl_b32 s{sT+4}, s2, 14
    s_add_u32 s{sT+4}, s{sT+4}, s{sT+13}
    s_add_u32 s{sT+5}, s{sT+4}, 8192
    v_lshlrev_b32 v{vT0+2}, 1, v{vLANE}
    v_lshl_add_u32 v{vT0+2}, s{sW}, 8, v{vT0+2}
    s_lshl_b32 s{sT+6}, s{sCP}, 9
    v_add_u32 v{vP}, s{sT+6}, v{vP}
    s_lshl_b32 s{sT+6}, s{sCP}, 1
    s_add_u32 s{sT+6}, s{sT+6}, s{sCH}
    s_lshl_b32 s{sT+6}, s{sT+6}, 1
    v_mov_b32 v{vT0+1}, s{sT+6}
    s_lshl_b32 s{sT+7}, s{sCP}, 2
    s_add_u32 s{sT+8}, s{sT+7}, s{sW}
    s_lshl_b32 s{sT+8}, s{sT+8}, 2
    s_add_u32 s{sT+8}, s{sT+8}, {HF}
    s_lshl_b32 s{sT+9}, s{sCP}, 7
    s_add_u32 s{sT+9}, s{sT+9}, {XID}
    s_lshl_b32 s{sT+12}, s{sRB}, 7
    s_add_u32 s{sT+12}, s{sT+12}, {HF}
    s_lshl_b32 s{sT+17}, s{sJ}, 2
    s_add_u32 s{sT+17}, s{sT+17}, s{sW}
    s_cmp_eq_u32 s{sT+17}, 2
    s_cselect_b32 s{sT+9}, s{sT+12}, s{sT+9}
    s_cselect_b32 s{sT+15}, 0, s{sXCC}
    s_cselect_b32 s{sT+17}, 1, s{sW}
    s_lshl_b32 s{sT+16}, s2, 11
    s_add_u32 s{sT+16}, s{sT+16}, {CB}
    s_cmp_eq_u32 s{sW}, 3
    s_cselect_b32 s{sT+15}, 0, s{sT+15}
    v_mov_b32 v{vW+28}, s{sT+15}
    v_mov_b32 v{vW+28+1}, s{sT+15}
    v_mov_b32 v{vW+28+2}, s{sT+15}
    v_mov_b32 v{vW+28+3}, s{sT+15}
    s_lshl_b32 s{sT+10}, s{sW}, 8
    s_add_u32 s{sT+10}, s{sT+10}, s{sT+3}
    s_add_u32 s{sT+11}, s{sT+10}, 4096
    s_lshl_b32 s{sX1F}, s{sCP}, 13
    s_add_u32 s{sX1F}, s{sX1F}, s{sT+13}
    s_add_u32 s{sX1F}, s{sX1F}, {X1}
    s_lshl_b32 s{sT+22}, s{sT+1}, 15
    s_mul_i32 s{sT+23}, s{sT+1}, {88*128}
    s_add_u32 s{sT+23}, s{sT+23}, {8192*128}
    s_mov_b32 m0, s{sT+13}''')
    for r,n in ((rWS,WSZ),(rX,2*MB),(rW1,512*2752),(rW2,1376*1024),(rOUT,2*MB)):
        a(f's_mov_b32 s{r+2}, {n}\ns_mov_b32 s{r+3}, 0x20000')
    if TS: a(f'v_mov_b32 v{vTS}, 0')
    a('s_waitcnt lgkmcnt(0)')
    ts(0)
    for r,p in ((rWS,sWS),(rX,sX),(rW1,sW1),(rW2,sW2),(rOUT,sOUT)): a(f's_mov_b64 {S(r,2)}, {S(p,2)}')
    a(f's_mov_b32 s{sHF}, s{sT+8}')
    l=a.label('nosm')
    vm.tags['fill0']=len(vm.ops)
    a(f's_cmp_lg_u32 s{sT+17}, 1\ns_cbranch_scc1 {l}')
    exec_set(0xff,0)
    a(f'buffer_store_dwordx4 {V(vW+28,4)}, v{vL16}, {S(rWS,4)}, s{sT+9} offen sc1')
    exec_all(); a(f'{l}:')
    l=a.label('noz')
    a(f'''s_cmp_lg_u32 s{sW}, 3
    s_cbranch_scc1 {l}
    s_cmp_ge_u32 s2, 16
    s_cbranch_scc1 {l}
    buffer_store_dwordx4 {V(vW+28,4)}, v{vL16}, {S(rWS,4)}, s{sT+16} offen sc1
    buffer_store_dwordx4 {V(vW+28,4)}, v{vL16}, {S(rWS,4)}, s{sT+16} offen offset:1024 sc1
    {l}:''')
    vm.tags['zero']=len(vm.ops)
    vm.issue(f'buffer_load_dwordx4 v{vXD}, {S(rX,4)}, s{sT+10} offen lds')
    a('s_addk_i32 m0, 1024')
    vm.issue(f'buffer_load_dwordx4 v{vXD}, {S(rX,4)}, s{sT+11} offen lds','xs')
    vm.issue(f'buffer_load_dwordx4 {V(vXR,4)}, v{vXB}, {S(rX,4)}, s{sT+3} offen')
    vm.issue(f'buffer_load_dwordx4 {V(vXR+4,4)}, v{vXB}, {S(rX,4)}, s{sT+3} offen offset:16','xr')
    vm.issue(f'global_load_ushort v{vPar}, v{vT0+1}, {S(sLD,2)}')
    for k,p in enumerate((sLA,sAI,sCR,sCI)): vm.issue(f'global_load_ushort v{vPar+1+k}, v{vP}, {S(p,2)}','par')
    for cb in range(2): vm.issue(f'global_load_ushort v{vPar+6+cb}, v{vT0+2}, {S(sDS,2)} offset:{128*cb}','dsk')
    vm.issue(f'buffer_store_dwordx4 {V(vNEG,4)}, v{vL16}, {S(rWS,4)}, s{sX1F} offen sc1')
    vm.issue(f'buffer_store_dwordx4 {V(vNEG,4)}, v{vL16}, {S(rWS,4)}, s{sX1F} offen offset:1024 sc1','fill1')
    def malltouch():
        if opt['touch']:
            a(f's_mul_i32 s{sT+12}, s2, {43*128}')
            touch(rW1,f's{sT+12}',vJ0,43)(); touch(rW2,f's{sT+12}',vJ0,43)()
    if opt['tpos']==0: malltouch()
    ts(17)
    a(f'''s_mov_b32 s{sSPIN}, 0x40000
    s_lshr_b32 s{sOB}, s{sRB}, 3
    s_lshl_b32 s{sOB}, s{sOB}, 5
    s_and_b32 s{sT+2}, s{sRB}, 3
    s_lshl3_add_u32 s{sOB}, s{sT+2}, s{sOB}
    s_bfe_u32 s{sT+2}, s{sRB}, 0x10002
    s_add_u32 s{sOB}, s{sOB}, s{sT+2}
    s_lshl2_add_u32 s{sOB}, s{sKH}, s{sOB}
    s_mul_i32 s{sW1B}, s{sJ}, 344
    s_mul_i32 s{sT+2}, s{sW}, 96
    s_add_u32 s{sW1B}, s{sW1B}, s{sT+2}
    s_mul_i32 s{sW2B}, s{sW}, {344*1024}
    s_lshl_b32 s{sT+2}, s{sJ}, 7
    s_add_u32 s{sW2B}, s{sW2B}, s{sT+2}
    s_lshl4_add_u32 s{sA2S}, s{sOB}, s{sJ}
    s_lshl1_add_u32 s{sA2S}, s{sA2S}, s{sCH}
    s_lshl_b32 s{sA2S}, s{sA2S}, 9
    s_add_u32 s{sA2S}, s{sA2S}, {A2+A2S}
    s_lshl2_add_u32 s{sPS}, s{sRB}, s{sKH}
    s_lshl3_add_u32 s{sPS}, s{sPS}, s{sJ}
    s_lshl1_add_u32 s{sPS}, s{sPS}, s{sCH}
    s_lshl_b32 s{sPS}, s{sPS}, 7
    s_add_u32 s{sPS}, s{sPS}, {PS}
    s_lshl_b32 s{sXID}, s{sRB}, 10
    s_add_u32 s{sXID}, s{sXID}, {XID}
    v_mov_b32 v{vEPS}, {fhex(1e-5)}''')
    for sr,(b,st) in ((sR12,RG12),(sRX,RGX),(sR45,RG45)): a(f's_mul_i32 s{sr}, s{sW}, {st}\ns_add_u32 s{sr}, s{sr}, {b}')
    t0=vW+24
    a(f'''v_lshrrev_b32 v{t0}, 2, v{vLANE}
    v_and_b32 v{t0+1}, 3, v{vLANE}
    v_lshlrev_b32 v{t0+1}, 3, v{t0+1}
    v_lshl_add_u32 v{vXT}, v{t0}, 6, v{t0+1}
    v_lshl_add_u32 v{vXT+2}, v{t0}, 7, v{t0+1}
    v_bfe_u32 v{t0}, v{vLANE}, 4, 1
    v_lshl_add_u32 v{vXT}, v{t0}, 5, v{vXT}
    v_add_u32 v{vXT}, {XT}, v{vXT}
    v_xor_b32 v{vXT+1}, 32, v{vXT}
    s_andn2_b32 s{sT+2}, 2, s{sW}
    v_bfe_u32 v{t0}, v{vLANE}, 3, 2
    v_xor_b32 v{t0}, s{sT+2}, v{t0}
    v_lshl_add_u32 v{vXT+2}, v{t0}, 5, v{vXT+2}
    v_xor_b32 v{vXT+3}, 32, v{vXT+2}''')
    w1_addr(vV1,t0); swz_addr(vV2,10,t0); gather_addr(0)
    vIX=vW+72
    vK=vW+89
    vTA,vA,vB,vC1,vC2,vC3,vE1,vE2,vXTR=[vK+k for k in range(9)]
    a(f'''v_and_b32 v{t0+6}, 127, v0
    v_lshlrev_b32 v{t0}, 4, v{t0+6}
    v_sub_u32 v{t0}, 2032, v{t0}
    v_cvt_f32_i32 v{t0+1}, v{t0}
    s_mul_i32 s{sT+16}, s{sCH}, {KTCH}
    s_add_u32 s{sT+16}, s{sT+16}, {KT}
    v_lshrrev_b32 v{t0+2}, 16, v{t0+1}
    v_subrev_u32 v{t0+2}, 0x4280, v{t0+2}
    v_min_i32 v{t0+3}, 127, v{t0}
    v_max_i32 v{t0+2}, v{t0+2}, v{t0+3}
    v_or_b32 v{t0+2}, 0x4b000000, v{t0+2}
    v_and_b32 v{t0+1}, 0x7f800000, v{t0+1}
    v_max_u32 v{t0+1}, 0x43000000, v{t0+1}
    v_sub_u32 v{t0+1}, 0x82800000, v{t0+1}
    s_sub_u32 s{sT+15}, s{sT+16}, 0x96000000''')
    for k in range(16):
        a(f'v_fmamk_f32 v{t0+3}, v{t0+1}, {fhex(15-k)}, v{t0+2}\nv_lshl_add_u32 v{vIX+k}, v{t0+3}, 1, s{sT+15}')
    a(f'''s_add_u32 s{sT+15}, s{sT+16}, 1400
    v_mov_b32 v{t0+4}, s{sT+15}
    v_subrev_u32 v{vIX+16}, 2, v{vIX+15}
    v_cmp_lt_u32 vcc, 256, v{t0}
    v_cndmask_b32 v{vIX+16}, v{vIX+16}, v{vIX+15}, vcc
    v_cmp_eq_u32 vcc, 0, v{t0}
    v_cndmask_b32 v{vIX+16}, v{vIX+16}, v{t0+4}, vcc
    v_mov_b32 v{t0+5}, 0''')
    lg.issue(f'ds_write_b32 v{t0+4}, v{t0+5}')
    a(f'''s_mul_i32 s{sT+15}, s{sCH}, {UCH}
    v_lshl_add_u32 v{t0+4}, v{t0+6}, 2, s{sT+15}''')
    lg.issue(f'ds_write_b32 v{t0+4}, v{t0+5} offset:{U}')
    a(f'''s_mul_i32 s{sT+15}, s{sCH}, {TCH}
    s_add_u32 s{sT+15}, s{sT+15}, {TAB}
    s_lshl_b32 s{sT+14}, s{sKH}, 8
    s_add_u32 s{sT+14}, s{sT+14}, s{sT+15}
    v_and_b32 v{t0}, 15, v{vLANE}
    v_mul_u32_u24 v{vA}, {TROW}, v{t0}
    v_and_b32 v{vB}, 48, v{vLANE}
    v_add3_u32 v{vA}, v{vA}, v{vB}, s{sT+15}
    s_mul_i32 s{sT+15}, s{sKH}, {16*TROW}
    s_add_u32 s{sT+15}, s{sT+15}, {21*TROW}
    v_add_u32 v{vB}, s{sT+15}, v{vA}
    s_lshl_b32 s{sT+15}, s{sKH}, 4
    v_add_u32 v{t0}, s{sT+15}, v{t0}
    v_lshrrev_b32 v{t0+1}, 4, v{vLANE}
    v_lshlrev_b32 v{vC1}, 4, v{t0}
    v_lshl_add_u32 v{vC1}, v{t0+1}, 3, v{vC1}
    v_lshlrev_b32 v{t0+3}, 3, v{t0}
    v_add_u32 v{t0+3}, 512, v{t0+3}
    v_cmp_eq_u32 vcc, 2, v{t0+1}
    v_cndmask_b32 v{vC1}, v{vC1}, v{t0+3}, vcc
    v_add_u32 v{vC2}, 4, v{vC1}
    v_lshlrev_b32 v{t0+3}, 2, v{t0}
    v_add_u32 v{t0+5}, 768, v{t0+3}
    v_add_u32 v{t0+3}, 896, v{t0+3}
    v_cmp_eq_u32 vcc, 3, v{t0+1}
    v_cndmask_b32 v{vC1}, v{vC1}, v{t0+5}, vcc
    v_cndmask_b32 v{vC2}, v{vC2}, v{t0+3}, vcc
    v_add_u32 v{vC1}, s{sT+16}, v{vC1}
    v_add_u32 v{vC2}, s{sT+16}, v{vC2}
    v_lshlrev_b32 v{vC3}, 1, v{t0}
    v_lshl_add_u32 v{vC3}, v{t0+1}, 8, v{vC3}
    v_add_u32 v{vC3}, s{sT+16}, v{vC3}
    s_mul_i32 s{sT+15}, s{sCH}, {KCH}
    v_lshl_add_u32 v{vE1}, v{t0+6}, 5, s{sT+15}
    v_and_b32 v{vE2}, 7, v{vLANE}
    s_mul_i32 s{sT+15}, s{sW}, {KCP}
    v_lshl_add_u32 v{vE2}, v{vE2}, 3, s{sT+15}
    v_bfe_u32 v{vXTR}, v{vLANE}, 2, 2
    v_lshlrev_b32 v{vXTR}, 8, v{vXTR}
    v_lshl_add_u32 v{vXTR}, v{t0+1}, 5, v{vXTR}
    v_and_b32 v{t0+1}, 3, v{vLANE}
    v_lshl_add_u32 v{vXTR}, v{t0+1}, 3, v{vXTR}
    v_add_u32 v{vXTR}, s{sT+13}, v{vXTR}
    v_mov_b32 v{t0+1}, 0x3f803f80
    v_and_b32 v{t0+4}, 1, v{vLANE}
    v_cmp_eq_u32 vcc, 1, v{t0+4}''')
    l=a.label('noa')
    a(f'''s_cmp_lg_u32 s{sW}, 3
    s_cbranch_scc1 {l}
    s_cmp_ge_u32 s2, 16
    s_cbranch_scc1 {l}
    v_mov_b32 v{vW+2}, 0
    v_mov_b32 v{vW+3}, 1
    s_waitcnt vmcnt({len(vm.ops)-vm.tags['zero']})''')
    exec_set(1,0)
    a(f'global_atomic_add v{vW+2}, v{vW+3}, {S(sDBG,2)} sc1')
    exec_all(); a(f'{l}:')
    ts(20)
    if opt['warm']: a('@WARM@')
    ts(18)
    vm.wait('xs'); ts(1)
    xt=vW+32
    for cb in range(2):
        for hh in range(2): lg.issue(f'ds_read_b64_tr_b16 {V(xt+4*cb+2*hh,2)}, v{vXTR} offset:{cb*128+hh*1024}','xt')
    vm.wait('xr')
    sS,sQ=t0+2,t0+3
    for k in range(8):
        a(f'v_dot2_f32_bf16 v{sS}, v{vXR+k}, v{t0+1}, '+('0' if k==0 else f'v{sS}'))
        a(f'v_dot2_f32_bf16 v{sQ}, v{vXR+k}, v{vXR+k}, '+('0' if k==0 else f'v{sQ}'))
    lg.wait('xt')
    xf=vW+40; rq=vW+56; uf=vXR
    ups=[]
    for k in range(8): ups+=[f'v_lshlrev_b32 v{xf+2*k}, 16, v{xt+k}', f'v_and_b32 v{xf+2*k+1}, 0xffff0000, v{xt+k}']
    a(ups.pop()); a(ups.pop()); a(ups.pop())
    for sh in (8,4,2,1):
        for r in (sS,sQ): a(f'v_add_f32_dpp v{r}, v{r}, v{r} row_ror:{sh} row_mask:0xf bank_mask:0xf')
        a(ups.pop())
    for r in (sS,sQ): a(f'v_add_f32_dpp v{r}, v{r}, v{r} row_bcast:15 row_mask:0xa bank_mask:0xf')
    ln_final(sS,sQ)
    a(f'v_cndmask_b32 v{sS}, v{sQ}, v{sS}, vcc')
    exec_set('0xc0000000','0xc0000000')
    lg.issue(f'ds_write_b32 v{vST}, v{sS} offset:{STAT}')
    exec_all()
    for u_ in ups: a(u_)
    a(f'v_mov_b32 v{t0+4}, {STAT}')
    vm.wait('dsk'); lg.drain(); barrier()
    for k in range(4): lg.issue(f'ds_read_b128 {V(rq+4*k,4)}, v{t0+4} offset:{16*k}')
    a(f'v_lshlrev_b32 v{vPar+6}, 16, v{vPar+6}\nv_lshlrev_b32 v{vPar+7}, 16, v{vPar+7}')
    lg.drain()
    def early_poll():
        l=a.label('nop'); a(f'''s_cmp_lg_u32 s{sW}, 3
        s_cbranch_scc1 {l}
        v_mov_b32 v{vW}, 0
        global_load_dword v{vW+1}, v{vW}, {S(sDBG,2)} sc1
        {l}:''')
    for cb in range(2):
        for k in range(4): a(f'v_pk_fma_f32 {V(uf+2*k,2)}, {V(xf+8*cb+2*k,2)}, {V(rq+2*k,2)}, {V(rq+8+2*k,2)}')
        for k in range(4): a(f'v_cvt_pk_bf16_f32 v{xt+k}, v{uf+2*k}, v{uf+2*k+1}')
        for k in range(4): a(f'v_min_u32 v{xt+k}, -2, v{xt+k}')
        vm.issue(f'buffer_store_dwordx4 {V(xt,4)}, v{vL16}, {S(rWS,4)}, s{sT+4} offen offset:{1024*cb} sc1')
        for k in range(4): a(f'v_pk_fma_f32 {V(uf+2*k,2)}, {V(uf+2*k,2)}, {V(vPar+6,2)}, {V(xf+8*cb+2*k,2)} op_sel:[0,{cb},0] op_sel_hi:[1,{cb},1]')
        for k in range(4): a(f'v_cvt_pk_bf16_f32 v{xt+4+k}, v{uf+2*k}, v{uf+2*k+1}')
        for k in range(4): a(f'v_min_u32 v{xt+4+k}, -2, v{xt+4+k}')
        if cb==1: early_poll()
        vm.issue(f'buffer_store_dwordx4 {V(xt+4,4)}, v{vL16}, {S(rWS,4)}, s{sT+5} offen offset:{1024*cb} sc1','pub')
    if opt['tpos']==1: malltouch()
    if opt['htouch']==1: htouch()
    ts(2)
    dt,la,ai,cr,ci=[vPar+k for k in range(5)]
    vPO=vW; vPV=vW+1
    def arrive():
        vm.wait('pub'); barrier(); ts(19)
        w3poll(vPV,f'global_load_dword v{vPV}, v{vPO}, {S(sDBG,2)} sc1',16,None,arrive_b(vPO,vPV))
    items=issue_items(R1,'r1',vV1,vV2)
    a.sprinkle(items,opt['spr1'] if not opt['nor1'] else 10000)
    for k in range(5): a(f'v_lshlrev_b32 v{vPar+k}, 16, v{vPar+k}')
    a(f'''v_mul_f32 v{dt}, {fhex(LOG2E)}, v{dt}
    v_mul_f32 v{la}, {fhex(LOG2E)}, v{la}
    v_exp_f32 v{dt}, v{dt}
    v_exp_f32 v{la}, v{la}''')
    rbf(dt); rbf(la)
    E=vW+16
    e1,e8,e256,c2=E,E+2,E+4,E+6
    a(f'''v_mul_f32 v{la}, v{la}, v{dt}
    v_mul_f32 v{ai}, v{ai}, v{dt}
    v_mul_f32 v{cr}, v{cr}, v{dt}
    v_mul_f32 v{ci}, v{ci}, v{dt}
    v_mul_f32 v{la}, {fhex(-LOG2E)}, v{la}
    v_mul_f32 v{ai}, 0.15915494, v{ai}
    v_add_f32 v{c2}, v{cr}, v{cr}
    v_mul_f32 v{c2+1}, -2.0, v{ci}''')
    tm=E+8
    for k,(d,p) in enumerate(((e1,1.0),(e8,8.0),(e256,256.0))):
        a(f'v_mul_f32 v{tm+2*k}, {fhex(p)}, v{la}\nv_mul_f32 v{tm+2*k+1}, {fhex(p)}, v{ai}')
    for k in range(3): a(f'v_exp_f32 v{tm+2*k}, v{tm+2*k}\nv_fract_f32 v{tm+2*k+1}, v{tm+2*k+1}')
    for k,d in enumerate((e1,e8,e256)): a(f'v_cos_f32 v{d}, v{tm+2*k+1}\nv_sin_f32 v{d+1}, v{tm+2*k+1}')
    for k,d in enumerate((e1,e8,e256)): a(f'v_pk_mul_f32 {V(d,2)}, {V(d,2)}, {V(tm+2*k,2)} op_sel_hi:[1,0]'+(' neg_hi:[1,0]' if d==e8 else ''))
    pk=[vPar+1,vPar+2,vPar+3,vPar+4]; pi=[0]; seen=[-1]
    def tw(p,row):
        if seen[0]!=len(vm.ops): a(f's_mov_b32 m0, s{sT+14}\ns_nop 0'); seen[0]=len(vm.ops)
        lg.issue(f'ds_write_addtid_b32 v{p} offset:{row*TROW}')
    def put(row,r):
        p=pk[pi[0]%4]; pi[0]+=1
        a(f'v_cvt_pk_bf16_f32 v{p}, v{r}, v{r+1}')
        tw(p,row)
    e2,e3,e4,e5,e6,e7=[E+8+2*k for k in range(6)]
    e16,e32,b1,b2,b3=[E+20+2*k for k in range(5)]
    e512,e768,e1024,ta,tb,tc,td=[E+30+2*k for k in range(7)]
    a(f'v_mov_b32 v{pk[3]}, 0x3f80'); tw(pk[3],0)
    cmuls([(e2,e1,e1),(e16,e8,e8),(b1,c2,e8),(e512,e256,e256)])
    put(1,e1); put(8,e256); put(21,c2)
    cmuls([(e3,e2,e1),(e4,e2,e2),(e32,e16,e16),(b2,c2,e16),(b3,b1,e16),(e768,e512,e256),(e1024,e512,e512),(ta,e256,e2)])
    put(2,e2); put(22,b1); put(12,e512); put(9,ta)
    cmuls([(e5,e4,e1),(e6,e4,e2),(e7,e4,e3),(ta,e256,e4),(tb,e512,e4),(tc,e768,e4),(td,e1024,e256)])
    put(3,e3); put(4,e4); put(23,b2); put(24,b3); put(14,e768); put(16,e1024)
    put(10,ta); put(13,tb); put(15,tc); put(17,td)
    cmuls([(ta,e256,e6),(tb,e1024,e512),(tc,e1024,e768),(td,e1024,e1024)])
    put(5,e5); put(6,e6); put(7,e7)
    put(11,ta); put(18,tb); put(19,tc); put(20,td)
    a.hold+=1; arrive(); a.hold=0
    cur=[c2,b1,b2,b3]; alt=[e2,e3,e4,e5]
    for m in range(1,8):
        cmuls([(alt[k],cur[k],e32) for k in range(4)])
        cur,alt=alt,cur
        for k in range(4): put(21+4*m+k,cur[k])
    ts(3); a.flush()
    lg.drain(); barrier()
    acc=E
    mfs=[]
    for ks in range(8):
        for t in range(2):
            mfs.append((lambda r,ks=ks,t=t: f'{MF} {V(acc+4*t,4)}, {V(r[("A",t,ks)],4)}, {V(r[("B",0,ks)],4)}, '+('0' if ks==0 else V(acc+4*t,4)), [('A',t,ks),('B',0,ks)]))
    def ld(u,r):
        k,t,ks=u
        return [f'ds_read_b128 {V(r,4)}, v{vA if k=="A" else vB} offset:{ks*64+(t*16*TROW if k=="A" else 0)}']
    pipeline(mfs,ld,lg,[E+8+4*k for k in range(12)],16,pre=12)
    c1=consume_items(R1,'r1',vW+2)
    for k in range(17): c1.pop(0)[1]()
    for k in range(4): a(f'v_cvt_pk_bf16_f32 v{acc+2*k}, v{acc+2*k}, v{acc+2*k+1}')
    lg.issue(f'ds_write_b32 v{vC1}, v{acc}')
    lg.issue(f'ds_write_b32 v{vC2}, v{acc+2}')
    exec_set(-1,0)
    lg.issue(f'ds_write_b16 v{vC3}, v{acc+4} offset:1024')
    exec_set(0xffff,0)
    lg.issue(f'ds_write_b16_d16_hi v{vC3}, v{acc+4} offset:1088')
    lg.issue(f'ds_write_b16 v{vC3}, v{acc+6} offset:1152')
    lg.issue(f'ds_write_b16_d16_hi v{vC3}, v{acc+6} offset:1216','kt')
    exec_all()
    for k in range(14): c1.pop(0)[1]()
    lg.wait('kt'); barrier()
    g=E; o=E+20
    for k in range(17): lg.issue(f'ds_read_u16 v{g+k}, v{vIX+k}',('g',k))
    for k,f in c1: f()
    a(f'v_mov_b64 {V(o+16,2)}, 0')
    lg.wait(('c','r1')); ts(21)
    a.sprinkle(issue_items(R2,'r2',vV1,vV2,True),opt['spr2'])
    for k in range(16): a(f'v_lshl_or_b32 v{o+(k>>1)+8*(k&1)}, v{g+k+1}, 16, v{g+k}')
    for cpy in range(2):
        for h in range(2): lg.issue(f'ds_write_b128 v{vE1}, {V(o+8*cpy+4*h,4)} offset:{KC+cpy*KCP+16*h}')
    lg.issue(f'ds_write_b64 v{vE2}, {V(o+16,2)} offset:{KC+4096}')
    ts(4)
    def phase_in():
        a.flush(); poll_b(vPO,vPV,16)
        lg.drain(); barrier()
        for hf in range(2): gather_u(hf,lambda s: vm.issue(s,'gu'))
        a(f'v_and_b32 v{vPO}, 7, v{vLANE}\nv_lshlrev_b32 v{vPO}, 7, v{vPO}')
        vm.issue(f'buffer_load_dword v{vPV}, v{vPO}, {S(rWS,4)}, s{sXID} offen sc1','xid')
        ts(5)
    return vPV,phase_in

vXC=GB-9; vUC=GB-10; vMX=GB-11
def xdma(x,iss,v):
    if x%4==0: a(f's_add_u32 m0, s{xL}, {x*4096}')
    a(f's_add_u32 s{sT+4}, s{xG}, {(x&4)*262144+(x&3)*64512+(x>>3)*2048+2*MB*LAY[0]}')
    iss(f'buffer_load_dwordx4 v{v}, {S(rWS,4)}, s{sT+4} offen offset:{1024*(x&3)} sc1 lds')
XCH=[(0,opt['c0']),(opt['c0'],8),(8,12),(12,16)]
def xissue(x,v): return lambda: xdma(x,lambda s: vm.issue(s,('x',[c for c in range(4) if XCH[c][0]<=x<XCH[c][1]][0])),v)
def scal():
    a(f'''s_lshr_b32 s{sT+6}, s{sCP}, 5
    s_lshl_b32 s{sT+6}, s{sT+6}, 10
    s_bfe_u32 s{sT+7}, s{sCP}, 0x40001
    s_and_b32 s{hW}, s{sT+7}, 1
    s_mul_i32 s{sT+7}, s{sT+7}, {44*8192}
    s_add_u32 s{sT+7}, s{sT+7}, s{sT+6}
    s_and_b32 s{hO}, s{sJ}, 1
    s_lshl2_add_u32 s{hS}, s{hO}, s{sW}
    s_lshl_b32 s{hS}, s{hS}, 13
    s_add_u32 s{hS}, s{hS}, s{sT+7}
    s_cmp_eq_u32 s{sW}, 2
    s_cselect_b32 s{sT+8}, 2, s{hO}
    s_cselect_b32 s{hO}, s{hO}, s{sW}
    s_xor_b32 s{hW}, s{hW}, s{hO}
    s_lshl1_add_u32 s{hO}, s{sT+8}, s{hO}
    s_add_u32 s{hO}, s{hO}, 32
    s_lshl_b32 s{hO}, s{hO}, 13
    s_add_u32 s{hO}, s{hO}, s{sT+7}
    s_lshl2_add_u32 s{sT+7}, s{sRB}, s{sW}
    s_lshl_b32 s{gF}, s{sT+7}, 5
    s_add_u32 s{gF}, s{gF}, {HF}
    s_and_b32 s{sT+7}, s{sT+7}, 15
    s_mul_i32 s{sT+7}, s{sT+7}, {44*8192}
    s_add_u32 s{sT+7}, s{sT+7}, s{sT+6}
    s_add_u32 s{gO}, s{sT+7}, {32*8192}
    s_lshl_b32 s{sT+8}, s{sKH}, 16
    s_add_u32 s{gH+1}, s{sT+7}, s{sT+8}
    s_xor_b32 s{sT+8}, s{sT+8}, 0x10000
    s_add_u32 s{gH}, s{sT+7}, s{sT+8}
    s_mul_i32 s{gB}, s{sW}, 12288
    s_add_u32 s{gB}, s{gB}, {RED}
    s_lshl_b32 s{xG}, s{sW}, 12
    s_add_u32 s{xL}, s{xG}, {XT}
    s_add_u32 s{xG}, s{xG}, s{sRB}
    s_lshl_b32 s{xG}, s{xG}, 6
    s_add_u32 s{xG}, s{xG}, {X1}
    s_lshl1_add_u32 s{gX}, s{sJ}, s{sCH}
    s_lshl_b32 s{gU}, s{sOB}, 7
    s_add_u32 s{gU}, s{gU}, s{gX}
    s_lshl_b32 s{gU}, s{gU}, 6
    s_lshl_b32 s{gX}, s{gX}, 11
    s_andn2_b32 s{gP}, s{sPS}, 0x7ff''')
    for k,x in enumerate((3,1,2)): a(f's_xor_b32 s{sT+8}, s{sW}, {x}\ns_mul_i32 s{sT+8}, s{sT+8}, 12288\ns_add_u32 s{gI+k}, s{sT+8}, {RED+2048*k}')
    for k,r in enumerate(MK): a(f's_mov_b32 s{r}, {0x22222222<<k}\ns_mov_b32 s{r+1}, {0x22222222<<k}')
def retry(issue,regs,mx,lds=None):
    lr=a.label('re'); lb=a.label('bk')
    def c():
        a(f'{lr}:\ns_sub_u32 s{sSPIN}, s{sSPIN}, 1\ns_cbranch_scc1 L_bail'); a(f's_mov_b32 s{sD1}, m0\ns_mov_b32 s{sD1+1}, s{sT+4}'); issue(); a(f's_waitcnt vmcnt(0)\ns_mov_b32 m0, s{sD1}\ns_mov_b32 s{sT+4}, s{sD1+1}')
        if lds: lds(); a('s_waitcnt lgkmcnt(0)')
        maxchain(mx,regs); a(f'v_cmp_eq_u32 vcc, -1, v{mx}\ns_cbranch_vccnz {lr}\ns_branch {lb}')
    lay=LAY[0]
    def c2(): o=LAY[0]; LAY[0]=lay; c(); LAY[0]=o
    cold.append(c2)
    return lambda: a(f'v_cmp_eq_u32 vcc, -1, v{mx}\ns_cbranch_vccnz {lr}\n{lb}:')
def conv(lay,vXID,phase_in):
    acc=vW; vKA=vW+32; vUB=vW+36; vEX=vW+37; vXS=vW+38; vBR=vW+39; F=vW+40
    t=F+44
    a(f'''v_and_b32 v{t}, 15, v{vLANE}
    v_lshrrev_b32 v{t+1}, 4, v{vLANE}
    v_and_b32 v{t+2}, 1, v{vLANE}
    v_xor_b32 v{t+2}, 1, v{t+2}
    v_mul_u32_u24 v{t+3}, {KCP-2}, v{t+2}
    v_lshl_add_u32 v{t+4}, v{t+1}, 3, v{t}
    v_lshlrev_b32 v{t+4}, 1, v{t+4}
    v_sub_u32 v{t+3}, v{t+3}, v{t+4}
    s_mul_i32 s{sT+3}, s{sCH}, {KCH}
    s_lshl_b32 s{sT+4}, s{sKH}, 8
    s_sub_u32 s{sT+3}, s{sT+3}, s{sT+4}
    s_add_u32 s{sT+3}, s{sT+3}, {KC+4110-192-512}
    v_add_u32 v{vKA}, s{sT+3}, v{t+3}''')
    for m in range(1,4): a(f'v_subrev_u32 v{vKA+m}, {1024*m}, v{vKA}')
    a(f'''v_lshlrev_b32 v{vUB}, 5, v{t}
    v_lshlrev_b32 v{t+3}, 4, v{t+1}
    v_sub_u32 v{vUB}, v{vUB}, v{t+3}
    s_mul_i32 s{sT+3}, s{sCH}, {UCH}
    s_sub_u32 s{sT+3}, s{sT+3}, s{sT+4}
    s_add_u32 s{sT+3}, s{sT+3}, {U+528-192}
    v_add_u32 v{vUB}, s{sT+3}, v{vUB}
    s_lshl_b32 s{sT+3}, s{sCH}, 13
    s_add_u32 s{sT+3}, s{sT+3}, {EXCH}
    v_lshl_add_u32 v{vEX}, v{vLANE}, 4, s{sT+3}
    v_and_b32 v{t+2}, 1, v{t+1}
    v_mul_u32_u24 v{t+2}, 3, v{t+2}
    v_xor_b32 v{t+2}, s{sKH}, v{t+2}
    v_lshlrev_b32 v{t+2}, 9, v{t+2}
    v_lshrrev_b32 v{t+3}, 1, v{t+1}
    v_mul_u32_u24 v{t+4}, 3, v{t+3}
    v_xor_b32 v{t+4}, s{sKH}, v{t+4}
    v_lshlrev_b32 v{t+4}, 5, v{t+4}
    v_and_or_b32 v{t+4}, v{t+1}, 1, v{t+4}
    v_lshl_add_u32 v{t+2}, v{t+3}, 8, v{t+2}
    v_lshl_add_u32 v{vXS}, v{t}, 4, v{t+2}
    v_lshl_add_u32 v{vGB}, v{t}, 1, v{t+4}
    v_lshlrev_b32 v{vGB}, 14, v{vGB}
    v_lshl_add_u32 v{vUC}, v{vLANE}, 4, s{sT+19}
    v_lshlrev_b32 v{t+1}, 1, v{t+1}
    v_xor_b32 v{t+1}, v{t+1}, v{vLANE}
    v_and_b32 v{t+1}, 3, v{t+1}
    v_lshrrev_b32 v{vXC}, 2, v{vLANE}
    v_lshlrev_b32 v{vXC}, 12, v{vXC}
    v_lshl_add_u32 v{vXC}, v{t+1}, 4, v{vXC}
    s_add_u32 s{sT+18}, s{sT+20}, 8192
    s_lshl_b32 s{sT+5}, s{sCP}, 1
    s_add_u32 s{sT+5}, s{sT+5}, s{sCH}
    s_lshl_b32 s{sT+5}, s{sT+5}, 12
    s_add_u32 s{sT+5}, s{sT+5}, {X1+2*MB*lay}''')
    ID=GB-8
    def ident():
        a(f'''s_movk_i32 s{sT+17}, 0x3f80
        v_lshrrev_b32 v{t+4}, 4, v{vLANE}
        v_and_b32 v{t+5}, 15, v{vLANE}
        v_lshlrev_b32 v{t+4}, 3, v{t+4}
        v_sub_u32 v{t+5}, v{t+5}, v{t+4}
        v_and_b32 v{t+6}, 1, v{vLANE}
        v_lshlrev_b32 v{t+6}, 4, v{t+6}
        v_lshlrev_b32 v{t+6}, v{t+6}, s{sT+17}
        v_ashrrev_i32 v{t+7}, 1, v{t+5}''')
        for k in range(8): a(f'v_cmp_eq_u32 s[{sT+6+2*(k&3)}:{sT+7+2*(k&3)}], {k if k<4 else k-12}, v{t+7}'+(''.join(f'\nv_cndmask_b32 v{ID+k-3+e}, 0, v{t+6}, s[{sT+6+2*e}:{sT+7+2*e}]' for e in range(4)) if k&3==3 else ''))
    def ld(u,r):
        k,s,x=u[:3]
        if k=='B': return [f'ds_read_b128 {V(r,4)}, v{vUB} offset:{192-64*s+512*x}']
        o=(192-64*s+512*(1-(x&1)))//4
        return [f'ds_read2_b32 {V(r,2)}, v{vKA+(x>>1)} offset0:{o} offset1:{o+1}', f'ds_read2_b32 {V(r+2,2)}, v{vKA+(x>>1)} offset0:{o+2} offset1:{o+3}']
    def mx4(r): return FV(0,f'v_max3_u32 v{vMX}, v{r}, v{r+1}, v{r+2}\nv_max_u32 v{vMX}, v{vMX}, v{r+3}')
    def uchk(hf,r):
        rd=lambda iss: iss(f'ds_read_b128 {V(r,4)}, v{vUC} offset:{2048*hf}')
        return [('s',lambda: vm.wait(('gu',hf))),('M',lambda: rd(lambda s: lg.issue(s,'ck')))]+[('s',lambda: None)]*5+[('s',lambda: lg.wait('ck'))]+mx4(r)+[('v',retry(lambda: gather_u(hf,a),range(r,r+4),vMX,lambda: rd(a)))]
    def bchk(hf): g=GB+4*hf; return [('s',lambda: vm.wait(('gb',hf)))]+mx4(g)+[('v',retry(lambda: gather_b(hf,a),range(g,g+4),vMX))]
    ident()
    if lay==0: scal()
    phase_in()
    have={('A',s_,q,0):F+16*s_+4*q for s_ in range(3) for q in range(4) if 4*s_+q<11}
    if lay==0:
        for n in range(2): gather_b(n,lambda s: vm.issue(s,('gb',n)))
        if opt['htouch']==6: htouch()
        consume(R2,'r2',t+4)
    for u,r in have.items():
        for x in ld(u,r): lg.issue(x)
    if lay==1:
        for x in chain(0,uchk(0,t)): x[2]()
    else:
        vm.wait('xid')
        a(f'''v_cmp_ne_u32 vcc, s{sXCC}, v{vXID}
        s_nop 1
        s_cmp_eq_u64 vcc, 0
        s_cselect_b32 s{sLOC}, {0 if opt['forceglobal'] else 1}, 0''')
    ts(6)
    KEEP=[(0,3,4,7),(1,2,5,6)]
    lg.drain(); barrier(); ts(7)
    l1=a.label('tkh1'); l2=a.label('tkhj')
    a(f's_cmp_lg_u32 s{sKH}, 0\ns_cbranch_scc1 {l1}')
    sv=save()
    for kh in range(2):
        restore(sv)
        keep=KEEP[kh]; send=KEEP[1-kh]
        allp=[(q,b) for q in range(8) for b in range(8-q)]
        up=list(range(8)); dn=up[::-1]
        PE=[p for p in allp if sum(p)<4]; PM=[p for p in allp if sum(p)>3 and p[1]<4]; PL=[p for p in allp if p[1]>3]
        def ph(P,s_,ep,qs,fin=0):
            t_=[(s_,q,b,ep) for q,b in sorted(P,key=lambda p:(qs.index(p[0]),p[1]))]
            return [x for x in t_ if x[1]+x[2] in send]+[x for x in t_ if x[1]+x[2] in keep] if fin else t_
        seq=sum([ph(PE,s_,0,dn,s_==3) for s_ in range(4)],[])
        if lay==0: seq+=ph(PM+PL,3,0,[3,2,1,0,4,5,6,7])+ph(PM+PL,2,1,dn)+ph(PM+PL,1,1,dn)
        elif opt['nm']==3: seq+=ph(PM,3,0,up)+ph(PM,2,1,dn)+ph(PM,1,1,dn)+ph(PL,1,1,dn)+ph(PL,2,2,dn)+ph(PL,3,2,dn)
        else: seq+=ph(PM,3,0,up)+ph(PM,2,1,dn)+ph(PL,2,1,dn)+ph(PL,3,2,dn)+ph(PM+PL,1,1,dn)
        seq+=ph(PM+PL,0,1,dn,1)
        seen=set(); mfs=[]; gates={}
        for s_,q,b,ep in seq:
            G=q+b; us=[('A',s_,q,ep),('B',s_,b,ep)]; c=V(acc+4*G,4)
            if G not in seen: seen.add(G); c='0'
            if lay==1 and b>3: gates[us[1]]='ul'
            mfs.append((lambda r,us=us,G=G,c=c: f'{MF} {V(acc+4*G,4)}, {V(r[us[0]],4)}, {V(r[us[1]],4)}, {c}',us))
        bm=lambda n: (lambda r: f'{MF} {V(acc+4*keep[n],4)}, {V(ID+4*(n&1),4)}, {V(GB+4*(n>>1),4)}, {V(acc+4*keep[n],4)}',[])
        mfs=mfs[:40]+[bm(0),bm(1)]+mfs[40:]+[bm(2),bm(3)]
        ns=148-2-13
        def xch(p,i):
            o=[(i+2+2*(n&1),'M',lambda n=n: lg.issue(f'ds_write_b128 v{vEX}, {V(acc+4*send[n],4)} offset:{kh*4096+n*1024}','xw')) for n in (2*p,2*p+1)]
            o.append((i+7,'s',lambda: (lg.wait('xw'),barrier())[0]))
            return o+[(i+7,'M',lambda n=n: lg.issue(f'ds_read_b128 {V(acc+4*send[n],4)}, v{vEX} offset:{(1-kh)*4096+n*1024}',('ex',n))) for n in (2*p,2*p+1)]
        def outp(p):
            d=acc+4*send[2*p]; o=[('s',lambda: lg.wait(('ex',2*p+1)))]; tx=''
            for e in range(2):
                g=acc+4*keep[2*p+e]; r=acc+4*send[2*p+e]
                tx+=''.join(f'v_add_f32 v{r+k}, v{r+k}, v{g+k}\n' for k in range(4)) if p==0 else ''.join(f'v_pk_add_f32 {V(r+k,2)}, {V(r+k,2)}, {V(g+k,2)}\n' for k in (0,2))
                tx+=f'v_cvt_pk_bf16_f32 v{d+2*e}, v{r}, v{r+1}\nv_cvt_pk_bf16_f32 v{d+2*e+1}, v{r+2}, v{r+3}\n'
            tx+=''.join(f'v_min_u32 v{d+k}, -2, v{d+k}\n' for k in range(4))+f'v_permlane16_swap_b32 v{d}, v{d+2}\nv_permlane16_swap_b32 v{d+1}, v{d+3}'
            return o+FV(0,tx)+[('m',lambda: vm.issue(f'buffer_store_dwordx4 {V(d,4)}, v{vXS}, {S(rWS,4)}, s{sT+5} offen offset:{2048*p} sc1','x1st'))]
        ch=[xch(0,35),chain(48,outp(0),0.4,opt['xo']),xch(1,ns),chain(opt['xe'],[('M',xissue(x,vXC)) for x in range(8)],opt['xesp'])]
        if lay==0:
            ch.append([(36,'s',lambda: vm.wait(('gb',0)),39),(47,'s',lambda: vm.wait(('gb',1)))])
            ch.append(chain(opt['cv0'],[('M',f) for f in issue_items(R3,'r3',vV1,vV2,True)],opt['cvsp']))
            if opt['w2t']:
                def w2t(k): a(f's_and_b32 s{sT+6}, s{sCP}, 31\ns_lshl2_add_u32 s{sT+6}, s{sT+6}, s{sW}\ns_mul_i32 s{sT+6}, s{sT+6}, {86*128}\ns_addk_i32 s{sT+6}, {k*43*128}'); vm.issue(f'buffer_load_dword v{vJ0}, v{vTCH}, {S(rW2,4)}, s{sT+6} offen')
                ch.append(chain(opt['w2t'],FV(0,f'v_min_u32 v{vTCH}, 42, v{vLANE}\nv_lshlrev_b32 v{vTCH}, 7, v{vTCH}')+[('M',lambda: w2t(0))]+[('s',lambda: None)]*opt['w2s']+[('M',lambda: w2t(1))],1))
        else:
            ul=opt['ul']
            ch.append([(ul,'M',lambda: gather_u(1,lambda s: vm.issue(s,('gu',1)))),(opt['bl'],'M',lambda: gather_b(1,lambda s: vm.issue(s,('gb',1))))])
            ch.append(chain(26,bchk(0),1,39)+chain(opt['xe']-8,bchk(1),1,144))
            ch.append(chain(ul+opt['ulw'],uchk(1,GB)+[('s',lambda: (barrier(),'ul')[1])],1))
        late={acc+4*k:64 for k in range(4)}
        pipeline(mfs,ld,lg,[F+4*k for k in range(16)]+list(late),opt['cv_ahead'],fill=merge(*ch),gates=gates,pre=4,late=late,have=have,mark='cv')
        for x in chain(0,outp(1)): x[2]()
        if kh==0: a(f's_branch {l2}\n{l1}:')
    a(f'{l2}:'); lg.reset(); ts(8)

def loc_store(text):
    if LAY[0]==0 and not opt['htouch']: vm.issue(text+' sc1'); return
    lq=a.label('hs'); le=a.label('he')
    a(f's_cmp_eq_u32 s{sLOC}, 0\ns_cbranch_scc1 {lq}'); vm.issue(text); a(f'{le}:')
    cold.append(lambda: a(f'{lq}:\n{text} sc1\ns_branch {le}'))

vL=143; TV=vW+84
def hload(u,rg):
    if u[0]=='o':
        return [f's_add_u32 s{sT+14}, s{gO}, {u[1]*49152+(2*(u[2]-8)+e)*8192}\nbuffer_load_dwordx4 {V(rg+4*e,4)}, v{vL}, {S(rWS,4)}, s{sT+14} offen sc1' for e in range(2)]
    r,ks=u
    return [f's_add_u32 s{sT+14}, s{gH+(r&1)}, {(r>>1)*131072+ks*8192}\nbuffer_load_dwordx4 {V(rg,4)}, v{vL}, {S(rWS,4)}, s{sT+14} offen sc1']
def hflag(val,r):
    def f():
        exec_set(1,0); loc_store(f'buffer_store_dword v{r}, v{vL}, {S(rWS,4)}, s{sHF} offen'); exec_all()
    return FV(0,f'v_mov_b32 v{r}, {val}')+[('s',lambda: vm.wait('hst')),('m',f)]
def hpoll(val,r,gap,name):
    pl=f'buffer_load_dword v{r+1}, v{r}, {S(rWS,4)}, s{gF} offen sc1'
    lr=a.label('hr'); lb=a.label('hb'); tst=f'v_cmp_gt_u32 vcc, {val}, v{r+1}\ns_cbranch_vccnz {lr}'
    cold.append(lambda: a(f'{lr}:\ns_sub_u32 s{sSPIN}, s{sSPIN}, 1\ns_cbranch_scc1 L_bail\n{pl}\ns_waitcnt vmcnt(0)\n{tst}\ns_branch {lb}'))
    return FV(0,f'v_and_b32 v{r}, 7, v{vLANE}\nv_lshlrev_b32 v{r}, 2, v{r}')+[('m',lambda: vm.issue(pl,'hp'))]+[('s',lambda: None)]*gap+[('s',lambda: vm.wait('hp')),('v',lambda: (a(f'{tst}\n{lb}:'),name)[1])]
def g1(lay):
    acc=vW; F=vW+48; vXD=vW+80; vCK=vW+81; mx=vW+82; vM=vW+83; tv=TV; m=vW+116; vW2=vW+122
    a(f'''v_mov_b32 v{vXD}, v{vXC}
    v_lshlrev_b32 v{vL}, 4, v{vLANE}
    v_add_u32 v{vCK}, s{xL}, v{vL}
    v_lshlrev_b32 v{vM}, 2, v{vLANE}
    v_and_b32 v{vM}, 60, v{vM}
    v_add_u32 v{vM}, {STAT}, v{vM}''')
    def chk_items(c):
        x0,x1=XCH[c]; n=x1-x0
        rd=lambda k,iss: iss(f'ds_read_b128 {V(tv+4*k,4)}, v{vCK} offset:{x0*4096+k*1024}')
        tst=retry(lambda: [xdma(x,a,vXD) for x in range(x0,x1)],range(tv,tv+4*n),mx,lambda: [rd(k,a) for k in range(n)])
        it=[('s',lambda: vm.wait(('x',c)))]+[('m',lambda k=k: rd(k,lambda s: lg.issue(s,('ck',k)))) for k in range(n)]+[('s',lambda: None)]*max(0,8-n)
        for k in range(n):
            r=tv+4*k; it.append(('s',lambda k=k: lg.wait(('ck',k))))
            it+=FV(0,f'v_max3_u32 v{r}, v{r}, v{r+1}, v{r+2}\n'+(f'v_max_u32 v{mx}, v{r}, v{r+3}' if k==0 else f'v_max3_u32 v{mx}, v{mx}, v{r}, v{r+3}'))
        return it+[('v',lambda: (tst(),barrier(),f'c{c}')[2])]
    if lay==0:
        a(f'v_mov_b32 v{vW2}, v{vV2}')
        ng=tv+24; ad=tv+28
        late=FV(0,a2_vaddr(ad,ad+1)+f'\nv_bfe_u32 v{ad+1}, v{vLANE}, 3, 1\nv_and_b32 v{ad+2}, 0x70, v{vL}\nv_lshl_add_u32 v{ad+1}, v{ad+1}, 12, v{ad+2}\n'+'\n'.join(f'v_mov_b32 v{ng+k}, -1' for k in range(4)))
        st=lambda v,sb,off: (a(f's_add_u32 s{sT+8}, s{sb}, {off}'),vm.issue(f'buffer_store_dwordx4 {V(ng,4)}, v{v}, {S(rWS,4)}, s{sT+8} offen sc1'))
        for k in range(4): late.append(('m',lambda k=k: st(ad,sA2S,8192*(k&1)+MB*(k&2))))
        for p in range(2): late.append(('m',lambda p=p: st(vL,sX1F,2*MB+1024*p)))
        late.append(('m',lambda: (exec_set(0xffff,0),st(ad+1,sPS,0),exec_all())))
        for k in range(4): a(f'v_mov_b32 v{vW+k}, 0x3b003b00')
        cs=[(lambda r,ks=ks,t=t: f'{MF} {V(vCS+4*t,4)}, {W1R(t,ks)}, {V(vW,4)}, '+('0' if ks==0 else V(vCS+4*t,4)),[]) for ks in range(16) for t in range(3)]
        r4=issue_items(R4,'r4',0,vW2,True)
        fl=chain(1,consume_items(R3,'r3',m)+late[:opt['g1f']]+[('s',lambda: lg.wait(('c','r3')))],0,36)
        fl+=chain(36,FS(0,f's_andn2_b32 s{sRX}, 4, s{sJ}\ns_add_u32 s{sRX}, s{sRX}, s{sW}\ns_lshl_b32 s{sRX}, s{sRX}, 12\ns_add_u32 s{sRX}, s{sRX}, {XT}')+[('m',f) for f in r4[:opt['xpre']]]+late[opt['g1f']:])
        pipeline(cs,None,lg,[],0,fill=[(x[0],'v')+x[2:] for x in fl],pre=0)
    ts(9)
    for x in chain(0,chk_items(0)): x[2]()
    ts(10)
    assert opt['xpre']%4==0 and opt['r4a']+(16-opt['xpre'])*opt['g1sp']<=opt['xl0'] and opt['xl0']+8*opt['xlsp']<=opt['r5a'] and opt['cv0']+20*opt['cvsp']<=opt['xe']
    def ld(u,r):
        ks,lt=u
        return [f'ds_read_b64_tr_b16 {V(r+2*hh,2)}, v{vXT+(lt&1)} offset:{(lt>>1)*32768+ks*2048+hh*1024}' for hh in range(2)]
    l3=a.label('g1w3'); lj=a.label('g1j')
    a(f's_cmp_eq_u32 s{sW}, 3\ns_cbranch_scc1 {l3}')
    sv=save()
    for var in range(2):
        restore(sv)
        def mk(ks,lt,t):
            def f(r):
                x=V(r[(ks,lt)],4); A=x if (var==1 and t==2) else W1R(t,ks); d=V(acc+16*t+4*lt,4)
                return f'{MF} {d}, {A}, {x}, '+('0' if ks==0 else d)
            return (f,[(ks,lt)])
        mfs=[mk(ks,lt,t) for hf in range(2) for ks in range(16) for lt in (2*hf,2*hf+1) for t in range(3) if not(var==1 and t==2 and hf==1 and ks>=10)]
        if var==1: mfs+=[mk(ks,lt,2) for ks in range(10,16) for lt in (2,3)]
        gates={(2*(x&7)+e,2*(x>>3)+l):f'c{c}' for c in range(1,4) for x in range(*XCH[c]) for e in range(2) for l in range(2)}
        def means(hf,i):
            def pubS():
                exec_set(0,'0xffff0000')
                for lt in (2*hf,2*hf+1): lg.issue(f'ds_write_b32 v{vM}, v{acc+16+4*lt} offset:{64*lt}','sw')
                for k in range(4): a(f'v_mov_b64 {V(acc+16+8*hf+2*k,2)}, 0')
                if lay==0 and hf==0:
                    for k in range(2): a(f'v_mov_b64 {V(vCS+4+2*k,2)}, 0')
                exec_all()
            o=[(i,'m',pubS),(i+3,'s',lambda: (lg.wait('sw'),barrier())[0])] if var else [(i+3,'s',barrier)]
            return o+[(i+3,'m',lambda: lg.issue(f'ds_read2_b32 {V(m,2)}, v{vM} offset0:{32*hf} offset1:{32*hf+16}','m'))]
        def epi(hf):
            o=[('s',lambda: lg.wait('m'))]
            def cvt(tt,lt,p):
                r=acc+16*tt+4*lt; c=vCS+4*tt
                if hf: tx=''.join(f'v_pk_fma_f32 {V(r+h,2)}, {V(m,2)}, {V(c+h,2)}, {V(r+h,2)} op_sel:[{lt&1},0,0] op_sel_hi:[{lt&1},1,1] neg_lo:[1,0,0] neg_hi:[1,0,0]\n' for h in (0,2))
                else: tx=''.join(f'v_fma_f32 v{r+h}, -v{m+(lt&1)}, v{c+h}, v{r+h}\n' for h in range(4))
                tx+=''.join(f'v_cvt_pk_bf16_f32 v{p+h}, v{r+2*h}, v{r+2*h+1}\n' for h in range(2))+''.join(f'v_pk_max_i16 v{p+h}, v{p+h}, 0\n' for h in range(2))
                o.extend(FV(0,tx))
            def store(p,sb,off):
                def f(): a(f's_add_u32 s{sT+8}, s{sb}, {off}'); loc_store(f'buffer_store_dwordx4 {V(p,4)}, v{vL}, {S(rWS,4)}, s{sT+8} offen'); vm.tags['hst']=len(vm.ops)
                o.append(('m',f))
            for lt in (2*hf,2*hf+1):
                p=acc+4*lt; cvt(0,lt,p); cvt(1,lt,p+2); store(p,hS,lt*65536)
            q=acc+32+8*hf
            if var==0:
                cvt(2,2*hf,q); cvt(2,2*hf+1,q+2); l=a.label('nosw')
                o.append(('v',lambda: a(f's_cmp_eq_u32 s{hW}, 0\ns_cbranch_scc1 {l}\nv_swap_b32 v{q}, v{q+2}\nv_swap_b32 v{q+1}, v{q+3}\n{l}:')))
                store(q,hO,hf*49152)
            else:
                o.extend(FV(0,''.join(f'v_cndmask_b32 v{q+e}, v{q+e}, v{q+e+1+k}, {S(MK[k],2)}\n' for k in range(3) for e in (0,4))))
                def pubQ():
                    exec_set('0x00f0000f','0xf0000f00')
                    for e in range(2): lg.issue(f'ds_write_b32 v{vM}, v{q+4*e} offset:{256+128*hf+64*e}')
                    exec_all()
                o.append(('m',pubQ))
            return o
        pl=[('m',lambda ks=ks: vm.issue(hload((0,ks),tv+4*ks)[0],('f',(0,ks)))) for ks in range(8)]
        he=opt['he']; hp=opt['hp']; hf=opt['hf']
        ch=[chain(opt['ch1'],chk_items(1),0.7), chain(opt['xl0'],[('m',xissue(x,vXD)) for x in range(8,16)],opt['xlsp']),
            chain(opt['xl1'],chk_items(2),0.7), chain(opt['xl2'],chk_items(3),0.7,hf-1),
            means(0,he), chain(he+9,epi(0),0.4,hf-8), chain(hf,hflag(2*lay+1,mx),1), chain(hp,hpoll(2*lay+1,vCK,opt['hlw'],None),1),
            chain(hp+opt['hlw']+6,pl[:opt['npl']],3), means(1,181)]
        if lay==0:
            ch.append([(1,'m',lambda: vm.issue(f'buffer_load_dword v{ad}, v{ad+1}, {S(rWS,4)}, s{sPS} offen sc1'))])
            ch.append(chain(opt['r4a'],[('m',f) for f in r4[opt['xpre']:]],opt['g1sp']))
            ch.append(chain(opt['r4c'],[('M' if k=='m' else k,f) for k,f in consume_items(R4,'r4',m+1)]+[('s',lambda: lg.wait(('c','r4')))],1,opt['r5a']-1))
            ch.append(chain(opt['r5a'],[('m',f) for f in issue_items(R5[:4],'r5',0,vW2,True)],2)+chain(max(he+4,opt['r5a']+32),[('m',f) for f in issue_items(R5[4:],'r5',0,vW2,True)],2))
        xs={acc+16*t+4*l:hf-7 for t in range(3) for l in range(2)} if var else {}
        pipeline(mfs,ld,lg,[F+4*k for k in range(8)]+list(xs),opt['g1_ahead'],fill=[(x[0],'M' if x[1]=='m' else x[1])+x[2:] for x in merge(*ch)],gates=gates,pre=6,late=xs,mark='g1')
        ts(11)
        e1=epi(1); rest=pl[opt['npl']:]
        for n,x in enumerate(rest[::-1]): e1.insert(25-n*(24//len(rest)),x)
        for x in chain(0,e1): x[2]()
        if var==0: a(f's_branch {lj}\n{l3}:')
        elif lay==0: a(arrive_b(mx,vCK))
    a(f'{lj}:'); ts(12)

def g2(layer):
    acc=vW; vR=vW+32; vA=vW+33; vB=vW+34; vPS=vW+35; WA=vW+36; OD=vW+40; vO=140; vPL=141; tmp=142; DV=vXT+2
    SET=[(84,92,100,136),(OD,OD+8,OD+16,OD+20)]
    mfs=[]; fixed={}
    M=lambda t,tag=None: ('m',lambda: lg.issue(t,tag))
    W=lambda tag: ('s',lambda: lg.wait(tag))
    BAR=lambda tag: ('s',lambda: (lg.wait(tag),barrier())[0])
    NOP=lambda n: [('s',lambda: None)]*n
    seen=set(); pos={}; end={}
    for pr in range(2):
        n=opt['dfl' if pr else 'dfe']; A4=range(4)
        order=[(0,k,A4) for k in range(10)]+[(1,8,A4),(0,10,A4),(1,9,A4),(1,0,A4),(1,10,A4)]+[(1,k,A4) for k in range(1,8-n)]+[(1,k,d) for d in ((0,1),(2,3)) for k in range(8-n,8)]
        for e,ks,dts in order:
            r=2*pr+e; pos.setdefault((r,ks),len(mfs))
            if ks<8: u=(r,ks); off=0
            else: u=('o',pr,ks); off=2 if e==0 else 0
            for dt in dts:
                def f(rg,r=r,ks=ks,dt=dt,u=u,off=off,z=r not in seen):
                    h=V(rg[u]+off,4); w=W2R(ks,dt); d=V(acc+16*(r&1)+4*dt,4)
                    A,B=(h,w) if layer==0 else (w,h)
                    if layer==0 and r==0 and ks>=6: lg.wait(('c5',ks))
                    return f'{MF} {d}, {A}, {B}, '+('0' if z else d)
                mfs.append((f,[u])); end[(r,dt>>1)]=len(mfs)
            seen.add(r)
    for pr in range(2):
        for ks in (8,9,10): fixed[('o',pr,ks)]=(OD+8*(ks-8), 0 if pr==0 else pos[(1,ks)]+4)
    ch=[]
    for pr in range(2):
        for ks in (8,9,10):
            o=OD+8*(ks-8); ch.append(FV(pos[(2*pr,ks)]+4,f'v_mov_b32 v{o+2}, v{o+6}\nv_mov_b32 v{o+3}, v{o+7}',pos[(2*pr+1,ks)]-1))
    def put(pr,k): return FV(0,f'v_add_u32 v{vR}, s{gI+k}, v{vL}')+[M(f'ds_write_b128 v{vR}, {V(acc+8*k+4*d,4)} offset:{6144*pr+1024*d}','pw') for d in range(2)]
    def get(pr,k,r): return [M(f'ds_read_b128 {V(r+4*d,4)}, v{tmp} offset:{6144*pr+2048*k+1024*d}',('g',k)) for d in range(2)]
    def add(d,x,pk=0): return FV(0,''.join(f'v_pk_add_f32 {V(d+k,2)}, {V(d+k,2)}, {V(x+k,2)}\n' for k in range(0,8,2)) if pk else ''.join(f'v_add_f32 v{d+k}, v{d+k}, v{x+k}\n' for k in range(8)))
    if layer==0:
        t=f'''v_and_b32 v{vA}, 15, v{vLANE}
        v_lshlrev_b32 v{vO}, 1, v{vA}
        s_lshr_b32 s{sT+4}, s{gX}, 5
        v_add_u32 v{vO}, s{sT+4}, v{vO}
        v_bfe_u32 v{vB}, v{vLANE}, 2, 1
        v_xor_b32 v{vB}, s{sKH}, v{vB}
        v_lshlrev_b32 v{vB}, 5, v{vB}
        v_lshl_add_u32 v{vA}, v{vA}, 6, v{vB}
        v_lshrrev_b32 v{vB}, 4, v{vLANE}
        v_lshl_add_u32 v{vA}, v{vB}, 3, v{vA}
        v_lshlrev_b32 v{vB}, 4, v{vB}
        s_add_u32 s{sT+4}, s{gX}, {XT}
        v_add_u32 v{vA}, s{sT+4}, v{vA}
        v_and_b32 v{vPL}, 7, v{vLANE}
        v_lshlrev_b32 v{vPL}, 7, v{vPL}
        v_lshrrev_b32 v{vPS}, 3, v{vLANE}
        v_lshl_add_u32 v{vPL}, v{vPS}, 4, v{vPL}
        v_lshrrev_b32 v{vPS}, 2, v{vLANE}
        v_lshlrev_b32 v{vPS}, 3, v{vPS}'''
    else:
        t=f'''s_lshl_b32 s{sT+4}, s{sKH}, 5
        v_xor_b32 v{vA}, s{sT+4}, v{vXT}
        v_add_u32 v{vA}, s{gX}, v{vA}
        v_bfe_u32 v{vO}, v{vLANE}, 3, 1
        v_lshlrev_b32 v{vO}, 14, v{vO}
        v_and_b32 v{vB}, 7, v{vLANE}
        v_lshl_add_u32 v{vO}, v{vB}, 10, v{vO}
        v_bfe_u32 v{vB}, v{vLANE}, 4, 1
        v_lshl_add_u32 v{vO}, v{vB}, 5, v{vO}
        v_lshrrev_b32 v{vB}, 5, v{vLANE}
        v_lshl_add_u32 v{vO}, v{vB}, 4, v{vO}
        v_and_b32 v{vB}, 15, v{vLANE}
        v_lshlrev_b32 v{vB}, 2, v{vB}'''
    t+=f'\nv_lshl_add_u32 v{vB}, s{sKH}, 6, v{vB}\nv_add_u32 v{tmp}, s{gB}, v{vL}'
    nr=4 if layer==0 else 1; rw='b128' if layer==0 else 'b32'; tr="_tr_b16" if layer else ""
    def resid(hf):
        XF=SET[hf][1]
        o=[M(f'ds_read_b64{tr} {V(XF+4*d+2,2)}, v{vA} offset:{32768*hf+1024*d}','xr') for d in range(2)]+NOP(8)+[W('xr')]
        for x_ in (XF,XF+4): o+=FV(0,f'v_lshlrev_b32 v{x_}, 16, v{x_+2}\nv_and_b32 v{x_+1}, 0xffff0000, v{x_+2}\nv_lshlrev_b32 v{x_+2}, 16, v{x_+3}\nv_and_b32 v{x_+3}, 0xffff0000, v{x_+3}')
        return o
    def prep(hf):
        RS=(SET[0][2],WA)[hf]; Y=SET[0][3]
        o=[M(f'ds_read_{rw} {V(Y,nr)}, v{vB} offset:{STAT+128*hf}'),M(f'ds_read_{rw} {V(RS,nr)}, v{vB} offset:{STAT+256+128*hf}','st')]
        o+=NOP(8)+[W('st')]
        for f in (lambda i: f'v_mul_f32 v{Y+i}, {fhex(1/512)}, v{Y+i}\nv_fmamk_f32 v{RS+i}, v{RS+i}, {fhex(1/512)}, v{vEPS}', lambda i: f'v_fma_f32 v{RS+i}, -v{Y+i}, v{Y+i}, v{RS+i}',
                  lambda i: f'v_max_f32 v{RS+i}, v{RS+i}, v{vEPS}', lambda i: f'v_rsq_f32 v{RS+i}, v{RS+i}'):
            for i in range(nr): o+=FV(0,f(i))
        return o
    def out(src,d,srd,sb,off,sc,tag=None):
        tx=''.join(f'v_cvt_pk_bf16_f32 v{d+k}, v{src[2*k]}, v{src[2*k+1]}\n' for k in range(4))
        if layer==0: tx+=''.join(f'v_min_u32 v{d+k}, -2, v{d+k}\n' for k in range(4))
        tx+=f'v_permlane16_swap_b32 v{d}, v{d+2}\nv_permlane16_swap_b32 v{d+1}, v{d+3}'
        return FV(0,tx)+[('m',lambda: vm.issue(f's_add_u32 s{sT+4}, s{sb}, {off}\nbuffer_store_dwordx4 {V(d,4)}, v{vO}, {S(srd,4)}, s{sT+4} offen{sc}',tag))]
    D=lambda d,s,c,bm: f'v_add_f32_dpp v{d}, v{s}, v{s} {c} row_mask:0xf bank_mask:{bm}\n'
    def val(hf):
        P,x,RS,Y=SET[hf]; RS=(RS,WA)[hf]
        o=FV(0,''.join(f'v_fmac_f32 v{x+k}, v{P+k}, v{RS+(k&3)*(nr>1)}\n' for k in range(8)))
        if layer==1: return o+out(range(x,x+8),P,rOUT,gU,hf*MB,'')
        s_=P; q_=P+4; w=RS
        tx=''.join(f'v_add_f32 v{s_+i}, v{x+i}, v{x+4+i}\nv_mul_f32 v{q_+i}, v{x+i}, v{x+i}\n' for i in range(4))+''.join(f'v_fmac_f32 v{q_+i}, v{x+4+i}, v{x+4+i}\n' for i in range(4))
        tx+=''.join(D(r+i,r+i,'row_ror:8','0x3') for r in (s_,q_) for i in range(2))+''.join(D(r+i,r+i+2,'row_ror:8','0xc') for r in (s_,q_) for i in range(2))
        tx+=''.join(D(w+k,r,'row_half_mirror','0x5') for k,r in enumerate((s_,q_)))+''.join(D(w+k,r+1,'row_half_mirror','0xa') for k,r in enumerate((s_,q_)))
        tx+=''.join(D(w+k,w+k,c,'0xf') for c in ('quad_perm:[2,3,0,1]','quad_perm:[1,0,3,2]') for k in range(2))+''.join(f'v_min_u32 v{w+k}, -2, v{w+k}\n' for k in range(2))
        def st():
            a(f's_add_u32 s{sT+4}, s{sPS}, {4096*hf}'); exec_set('0x11111111','0x11111111')
            loc_store(f'buffer_store_dwordx2 {V(w,2)}, v{vPS}, {S(rWS,4)}, s{sT+4} offen'); exec_all(); vm.tags['pst']=len(vm.ops)
        return o+FV(0,tx)+[('m',st)]
    def psld(hf,iss,e): iss(f's_add_u32 s{sT+4}, s{gP}, {4096*hf}\nbuffer_load_dwordx4 {V(SET[hf][0]+4*e,4)}, v{vPL}, {S(rWS,4)}, s{sT+4} offen offset:{1024*e} sc1')
    def psget(hf): return [('m',lambda e=e: psld(hf,lambda s: vm.issue(s,'ps'),e)) for e in range(2)]
    def fin(hf):
        y,x,rr,Y=SET[hf]; qq=y+4
        tst=retry(lambda: [psld(hf,a,e) for e in range(2)],range(y,y+8),Y)
        o=[('s',lambda: vm.wait('ps'))]+FV(0,f'v_max3_u32 v{Y}, v{y}, v{y+1}, v{y+2}\nv_max3_u32 v{Y+1}, v{y+3}, v{y+4}, v{y+5}\nv_max3_u32 v{Y}, v{Y}, v{y+6}, v{y+7}\nv_max_u32 v{Y}, v{Y}, v{Y+1}')+[('v',tst)]
        tx=''.join(f'v_add_f32 v{y+k}, v{y+k}, v{y+4+k}\n' for k in range(4))
        tx+=''.join(D(y+k,y+k,c,'0xf') for c in ('quad_perm:[1,0,3,2]','quad_perm:[2,3,0,1]','row_half_mirror') for k in range(4))
        for f in (lambda e: f'v_mul_f32 v{y+2*e}, {fhex(-1/512)}, v{y+2*e}\nv_fmamk_f32 v{y+2*e+1}, v{y+2*e+1}, {fhex(1/512)}, v{vEPS}', lambda e: f'v_fma_f32 v{y+2*e+1}, -v{y+2*e}, v{y+2*e}, v{y+2*e+1}',
                  lambda e: f'v_max_f32 v{y+2*e+1}, v{y+2*e+1}, v{vEPS}', lambda e: f'v_rsq_f32 v{rr+e}, v{y+2*e+1}', lambda e: f'v_mul_f32 v{qq+e}, v{y+2*e}, v{rr+e}',
                  lambda e: f'v_mov_b32 v{rr+2+e}, v{rr+e}\nv_mov_b32 v{qq+2+e}, v{qq+e}'):
            tx+=f(0)+'\n'+f(1)+'\n'
        tx+=''.join(f'v_mov_b32_dpp v{r+e}, v{r+2+e} row_ror:8 row_mask:0xf bank_mask:0xc\n' for r in (rr,qq) for e in range(2))
        tx+=''.join(f'v_mov_b32_dpp v{r+2+e}, v{r+2+e} row_ror:8 row_mask:0xf bank_mask:0x3\n' for r in (rr,qq) for e in range(2))
        u=[y,y+1,y+2,y+3,Y,Y+1,Y+2,Y+3]
        tx+=''.join(f'v_fma_f32 v{u[k]}, v{x+k}, v{rr+(k&3)}, v{qq+(k&3)}\n' for k in range(8))
        o+=FV(0,tx)+out(u,qq,rWS,sA2S,2*MB*hf,' sc1','ust')
        return o+FV(0,''.join(f'v_fmac_f32 v{x+k}, v{u[k]}, v{DV+(k>>2)}\n' for k in range(8)))+out(range(x,x+8),x,rWS,sA2S,2*MB*hf+8192,' sc1')
    hl=opt['hl']; P0=SET[0][0]; P1=SET[1][0]
    ch.append(chain(1,FX(0,t),1.5,45))
    ch.append(chain(opt['hf2'],hflag(2*layer+2,vR),1)); ch.append(chain(hl,hpoll(2*layer+2,SET[0][3],opt['hlw'],'hl'),1,64))
    lim={84+4*k:60 for k in range(5)}; late={}
    if layer==0:
        c5=[('M' if k=='m' else k,f) for k,f in consume_items(R5,'r5',WA-1)]; k=0
        for ks in range(6,11):
            n=9+(4 if ks in (6,10) else 0); ch.append(chain(int(k*.7),c5[k:k+n]+[('s',lambda ks=ks: lg.tags.__setitem__(('c5',ks),lg.tags[('c','r5')]))],.65,pos[(0,ks)]-2)); k+=n
        k=pos[(0,10)]
        dv=[('m',lambda d=d: vm.issue(f'global_load_ushort v{DV+d}, v{vO}, {S(sDS,2)} offset:{32*d}','dv')) for d in range(2)]
        ch.append(chain(k+2,[('s',barrier)]+dv+FV(0,a2_vaddr(vO,WA)),0.5,end[(0,1)]+2))
    e0=end[(0,1)]+3; e1=end[(1,0)]+2; e2=end[(2,1)]+2; e3=end[(3,0)]+2
    ch.append(chain(e0,put(0,0)+put(0,1)+NOP(3)+[BAR('pw')]+NOP(max(0,52-e0))+get(0,0,P0)+get(0,1,acc)+NOP(5)+[W(('g',1))]+add(P0,acc),1,87))
    ch.append(chain(e0+14,prep(0)+resid(0),0.4)); ch.append(chain(opt['pr1'],prep(1),0.5,opt['psl']+opt['psw']-1))
    ch.append(chain(e1,put(0,2)+NOP(3)+[BAR('pw')]+get(0,2,acc+16)+NOP(max(0,end[(1,1)]-e1-7)),1)+chain(max(e1+9,end[(1,1)]+2),add(P0,acc+24)+[W(('g',2))]+add(P0,acc+16),0.5,pos[(3,8)]-1))
    ch.append(chain(max(e1+9,end[(1,1)]+2)+9,val(0),0.4))
    ch.append(chain(e2,put(1,0)+put(1,1)+NOP(3)+[BAR('pw')]+get(1,0,P1)+get(1,1,acc)+NOP(5)+[W(('g',1))]+add(P1,acc),1))
    ch.append(chain(pos[(3,9)]+5,resid(1),0.5))
    ch.append(chain(e3,put(1,2)+NOP(3)+[BAR('pw')]+get(1,2,acc+8),1,175))
    if layer==0:
        def pb():
            l=a.label('pb'); a(f'''s_cmp_lg_u32 s{sW}, 3
            s_cbranch_scc1 {l}
            s_and_b32 s{sT+2}, s2, 15
            s_lshl_b32 s{sT+2}, s{sT+2}, 11
            s_add_u32 s{sT+2}, s{sT+2}, {CB}
            v_and_b32 v{vA}, 15, v{vLANE}
            v_lshlrev_b32 v{vA}, 7, v{vA}
            buffer_load_dword v{vW+1}, v{vA}, {S(rWS,4)}, s{sT+2} offen sc1
            {l}:''')
        ch.append(chain(opt['psl'],[('s',lambda: vm.wait('pst'))][:opt.get('psd',1)]+psget(0)+FV(0,''.join(f'v_lshlrev_b32 v{DV+d}, 16, v{DV+d}\n' for d in range(2))),1))
        ch.append(chain(opt['psl']+opt['psw'],fin(0),0.3))
    gates={u:'hl' for f,us in mfs for u in us if (u[1] if u[0]=='o' else u[0]>>1)}
    slots=[TV+4*k for k in range(8)]+list(lim)+([144+4*k for k in range(8)] if layer else [])
    pipeline(mfs,hload,vm,slots,200,fill=[(x[0],'M' if x[1]=='m' else x[1])+x[2:] for x in merge(*ch)],fixed=fixed,limited=lim,late=late,gates=gates,pre=opt['g2pre'],pace=opt['g2pace'],have={(0,k):TV+4*k for k in range(8)},mark='g2',age=opt['age2'])
    ts(14)
    if layer==0: pb()
    for x in chain(0,add(P1,acc+24,1)+[W(('g',2))]+add(P1,acc+8,1)+val(1)): x[2]()
    ts(15)
    if layer==1: return
    a(f'v_mov_b32 v{vW}, v{vA}'); gather_addr(1)
    def pin1():
        vm.drain(); w3poll(vW+1,f'buffer_load_dword v{vW+1}, v{vW}, {S(rWS,4)}, s{sT+2} offen sc1',32,None)
        for x in psget(1): x[1]()
        barrier(); ts(22)
        f1=chain(0,fin(1)); n=6*opt['gaf']
        for x in f1[:n]: x[2]()
        gather_u(0,lambda s: vm.issue(s,('gu',0))); gather_b(0,lambda s: vm.issue(s,('gb',0)))
        for x in f1[n:]: x[2]()
        ts(5)
    return pin1

vx,pin=p0()
conv(0,vx,pin); stop('conv')
g1(0); stop('g1')
pin1=g2(0); stop('g2')
ts_park(); LAY[0]=1
conv(1,None,pin1); g1(1); g2(1)
ts_dump(256); ts_dump(0)
if opt['probe']>=0:
    if opt['only']>=0: a(f's_cmp_lg_u32 s2, {opt["only"]}\ns_cbranch_scc1 L_end')
    a('''s_add_u32 s101, s101, 10000
    L_probe:
    s_memrealtime s[96:97]
    s_waitcnt lgkmcnt(0)
    s_sub_u32 s96, s96, s101
    s_cmp_lt_i32 s96, 0
    s_cbranch_scc1 L_probe''')
a('L_end:\ns_endpgm\nL_cold:')
for c in cold: c()
a(f'''L_bail:
s_mov_b64 exec, -1
v_mov_b32 v{vW}, 32
v_mov_b32 v{vW+1}, 1
global_atomic_add v{vW}, v{vW+1}, {S(sDBG,2)} sc1
s_endpgm''')
lines=fix_hazards([l.replace('@CODEMAX@','L_cold-L_pc') for l in a.lines])
n=NAME+'_kernel'
def wrap(lines):
    hdr=open('cdna_kernels/'+NAME+'.s.ref').read().split('; Override')[0]
    return hdr+f'; @launch grid=(256,1,1) block=(256,1,1) lds={LDS_END}\n.amdgcn_target "amdgcn-amd-amdhsa--gfx950"\n.text\n'+khead(n)+'\n'.join(lines)+'\n.section .rodata,"a"\n'+kdesc(n,512,102,256)
lines=add_warm(lines,wrap,sW) if opt['warm'] else [l for l in lines if '@WARM@' not in l]
sys.stdout.write(wrap(lines))
```

```python
import sys, math
from asmlib import *
opt=dict(ts=0, stop='', warm=1, forceglobal=0, probe=-1, play=0, early=0, only=-1, cv_ahead=26, g1_ahead=18, nm=3, ch1=20, ch2=55, spr1=22, spr2=6, g2pre=2, g2pace=4, touch=3, htouch=6, cvsp=4, g1sp=3, nor1=0, xpre=4, now=0, basei=40, cv0=40, tpos=0, g1f=11, xl0=40, xlsp=3, xl1=80, xl2=118, he=98, hp=168, hl=46, hlw=14, dfe=0, dfl=7, psl=140, psw=24, r4a=2, r4c=30, r5a=74, xe=128, ul=38, ulw=38, cvm=1, psp=30, c0=4, st1=0, st2=5, wide=0, ep=0, r2s=0, osc=0, wb=0, fp=1, bl=64, npl=3, hf2=8, bud=2, age=9, age2=30, lag=6, w2t=0, w2s=10, xesp=2, xo=58, hf=146, rot=0, rot2=0, r5sp=5, f0=90, hv=0, nf=2, fp0=5, fsp=8, xe0=132, mix=0, gaf=1, pr1=124)
for s in sys.argv[1:]:
    k,v=s.split('='); opt[k]=int(v) if v.lstrip('-').isdigit() else v
TS=opt['ts']; STOP=opt['stop']
MB=1<<20
A2=0; A2S=6*MB; X1=10*MB; HB=0; PS=14*MB; HF=PS+262144; XID=HF+4096; CB=XID+32768; WSZ=15*MB; DUMP=20*MB
KC=0; KCH=8320; KCP=4160
U=16640; UCH=4608
STAT=25856
XT=27648; RED=XT+65536; LDS_END=163840
TAB=XT; TROW=528; TCH=53*TROW; KT=XT+2*TCH; KTCH=1408
EXCH=XT+32768
RG12=(XT+58880,19328); RGX=(XT+49152,4096); RG45=(RED,17664)
sX=4;sLA=6;sAI=8;sCR=10;sCI=12;sLD=14;sDS=16;sW1=20;sW2=22;sOUT=24;sDBG=26;sWS=28
rWS=32;rW1=36;rW2=40;rOUT=44
sW=48;sCP=49;sRB=50;sJ=51;sLAY=52;sLOC=53;sOB=54;sXCC=55;sSPIN=56;sKH=57;sD0=58;sD1=60
sR12=62;sRX=63;sR45=64;sW1B=65;sW2B=66;sCH=67
rX=68
gH=4;gO=6;gI=7;gB=10;gF=11;hS=12;hO=13;hW=14;xG=15;xL=20;gX=21;gU=22;gP=23;MK=(24,68,70)
T1=(94,95,100,101); T2=(87,88,98,99); TH=((94,95,100,4),(101,18,54,5)); xG1=52
sT=72
def S(n,k=1): return f's{n}' if k==1 else f's[{n}:{n+k-1}]'
def V(n,k=1): return f'v{n}' if k==1 else f'v[{n}:{n+k-1}]'
vTID=0;vLANE=1;vCS=2;vXT=14;vTS=18;vEPS=19;vW=20
def W1R(t,ks,k=4,o=0):
    i=(t*16+ks)*4+o
    return (f'a[{176+i}:{176+i+k-1}]' if k>1 else f'a{176+i}') if i<80 else V(144+i-80,k)
def W2R(ks,dt,k=4,o=0):
    i=(ks*4+dt)*4+o
    return f'a[{i}:{i+k-1}]'
MF='v_mfma_f32_16x16x32_bf16'
a=Asm(); vm=Ctr(a,'vmcnt',63); lg=Ctr(a,'lgkmcnt',15)
LAY=[0]
def ts(i):
    if opt['probe']>=0:
        if i==0 and opt['early']: a('s_mov_b32 s100, s96\ns_mov_b32 s101, s96')
        elif i==0: a('s_memrealtime s[96:97]\ns_waitcnt lgkmcnt(0)\ns_mov_b32 s100, s96\ns_mov_b32 s101, s96'); lg.reset()
        elif i==opt['probe']:
            l=a.label('pr')
            if LAY[0]==opt['play']: a('s_memrealtime s[96:97]\ns_waitcnt lgkmcnt(0)\ns_mov_b32 s101, s96')
    if TS==1 or (TS and (i==0 or (i==15 and LAY[0]))): a(f's_memrealtime s[96:97]\ns_waitcnt lgkmcnt(0)\nv_writelane_b32 v{vTS}, s96, {i}\nv_writelane_b32 v{vTS}, s{sSPIN}, {32+i}'); lg.reset()
def ts_park():
    if TS==1: a(f'v_lshlrev_b32 v143, 2, v0\nds_write_b32 v143, v{vTS} offset:{STAT+512}\ns_waitcnt lgkmcnt(0)')
def ts_dump(slot):
    if TS==1 or (TS and slot):
        if slot==0: a(f'v_lshlrev_b32 v143, 2, v0\nds_read_b32 v{vTS}, v143 offset:{STAT+512}\ns_waitcnt lgkmcnt(0)')
        a(f'''s_lshl_b32 s96, s2, 2
        s_add_u32 s96, s96, s{sW}
        s_mul_i32 s96, s96, 768
        s_add_u32 s96, s96, {slot}
        s_add_u32 s98, s{sWS}, {DUMP}
        s_addc_u32 s99, s{sWS+1}, 0
        v_lshl_add_u32 v143, v{vLANE}, 2, s96''')
        vm.issue(f'global_store_dword v143, v{vTS}, s[98:99]')
def exec_set(lo,hi):
    a.hold=100; a(f's_mov_b32 exec_lo, {lo}\ns_mov_b32 exec_hi, {hi}')
def exec_all():
    a('s_mov_b64 exec, -1'); a.hold=0
def spin_check(lbl):
    a(f's_sub_u32 s{sSPIN}, s{sSPIN}, 1\ns_cbranch_scc1 L_bail\ns_branch {lbl}')
def barrier(): a('s_barrier')
def stop(name):
    if STOP==name:
        ts_dump(0); a('s_waitcnt vmcnt(0) lgkmcnt(0)\ns_endpgm')

def w1_addr(vd,tmp):
    for k in range(3):
        a(f'''v_add_u32 v{tmp}, {64*k}, v{vLANE}
        v_mul_u32_u24 v{tmp+1}, 0xaaab, v{tmp}
        v_lshrrev_b32 v{tmp+1}, {20 if opt['wide'] else 18}, v{tmp+1}
        v_mul_u32_u24 v{tmp+2}, {24 if opt['wide'] else 6}, v{tmp+1}
        v_sub_u32 v{tmp}, v{tmp}, v{tmp+2}
        v_mul_u32_u24 v{tmp+1}, 2752, v{tmp+1}
        v_lshl_add_u32 v{vd+k}, v{tmp}, 4, v{tmp+1}'''+(f'\nv_subrev_u32 v{vd+k}, {1024*k}, v{vd+k}' if k else ''))
def swz_addr(vd,rowshift,tmp):
    a(f'''v_lshrrev_b32 v{tmp}, 3, v{vLANE}
    v_and_b32 v{vd}, 6, v{tmp}
    v_xor_b32 v{vd}, v{vd}, v{vLANE}
    v_and_b32 v{vd}, 7, v{vd}
    v_lshlrev_b32 v{vd}, 4, v{vd}
    v_lshl_add_u32 v{vd}, v{tmp}, {rowshift}, v{vd}''')
def w2_tiles(ks):
    if ks==10: return (16*8, 172+16*8)
    if ks>=8: return (172*(ks-8)+32, 172*(ks-8)+80)
    jj,k=divmod(ks,4); ta,tb=[(0,1),(3,4),(6,7),(9,10)][k]
    return (172*jj+16*ta,172*jj+16*tb)
def mkround(*parts):
    r=[]
    for sreg,items in parts:
        off=0
        for kind,ks in items:
            r.append((kind,ks,sreg,off)); off+=3072 if kind=='w1' else 4096
    return r
R1=mkround((sR12,[('w1',k) for k in range(0,6)])); R2=mkround((sR12,[('w1',k) for k in range(6,12)]))
R3=mkround((sR45,[('w1',k) for k in range(12,16)]+[('w2',0)]),(sRX,[('w2',1)]))
R4=mkround((sR45,[('w2',k) for k in range(2,6)])); R5=mkround((sR45,[('w2',k) for k in range(6,10)]),(sRX,[('w2',10)]))
def issue_items(R,tag,v1,v2,solo=False):
    L=[]
    if opt['now']: return L
    for kind,ks,sreg,off in R:
        for k in range(3 if kind=='w1' else 4):
            def f(kind=kind,ks=ks,sreg=sreg,off=off,k=k):
                if k==0 or not solo: a(f's_add_u32 m0, s{sreg}, {off}')
                if kind=='w1':
                    if k==0: a(f's_add_u32 s{sD0}, s{T1[ks>>2]}, {(ks&3)*88064}')
                    vm.issue(f'buffer_load_dwordx4 v{v1+k}, {S(rW1,4)}, s{sD0} offen offset:{1024*k} lds',(tag,kind,ks))
                else:
                    fa,fb=w2_tiles(ks); f0=(fa if k<2 else fb)+8*(k&1)
                    a(f's_add_u32 s{sD0}, s{sW2B}, {(f0-k)*1024}' if ks>7 else f's_add_u32 s{sD0}, s{T2[ks>>1]}, {(48*(ks&1)+7*k)*1024}')
                    vm.issue(f'buffer_load_dwordx4 v{v2}, {S(rW2,4)}, s{sD0} offen offset:{1024*k} lds',(tag,kind,ks))
            L.append(f)
    return L
def consume_items(R,tag,vt):
    L=[]; cur={}
    if opt['now']: return [('s',lambda: lg.tags.__setitem__(('c',tag),len(lg.ops)))]*60
    for kind,ks,sreg,off in R:
        if cur.get('reg')!=(kind,sreg):
            cur['reg']=(kind,sreg)
            if kind=='w1':
                t=f'''v_lshrrev_b32 v{vt}, 2, v{vLANE}
                v_mul_u32_u24 v{vt}, 96, v{vt}
                v_and_b32 v{vt+1}, 3, v{vLANE}
                v_lshl_add_u32 v{vt}, v{vt+1}, 3, v{vt}
                v_add_u32 v{vt}, s{sreg}, v{vt}
                v_mul_u32_u24 v{vt+4}, 96, v{vLANE}
                v_add_u32 v{vt+4}, s{sreg}, v{vt+4}
                v_mov_b32 v{vt+2}, 0x3f803f80
                v_mov_b32 v{vt+3}, 0x3f803f80'''
            else:
                t='\n'.join(f'v_xad_u32 v{vt+1+dt}, v{vXT+2+(dt&1)}, {32*(dt&2)}, s{sreg}' for dt in range(4))
            L+=[(x[1],x[2]) for x in FX(0,t)]
        L.append(('s',lambda kind=kind,ks=ks: vm.wait((tag,kind,ks|(kind=='w1')))))
        def ones(off=off):
            l=a.label('on'); a(f's_cmp_lg_u32 s{sW}, 3\ns_cbranch_scc1 {l}\nds_write_b64 v{vt+4}, {V(vt+2,2)} offset:{off+56}\n{l}:')
        if kind=='w1' and ks%2==0: L.append(('m',ones))
        if kind=='w1':
            for t in range(3):
                for hh in range(2): L.append(('m',lambda t=t,hh=hh,ks=ks,off=off: lg.issue(f'ds_read_b64_tr_b16 {W1R(t,ks,2,2*hh)}, v{vt} offset:{off+hh*1536+t*32}',('c',tag))))
        else:
            for dt in range(4):
                for hh in range(2): L.append(('m',lambda dt=dt,hh=hh,ks=ks,off=off: lg.issue(f'ds_read_b64_tr_b16 {W2R(ks,dt,2,2*hh)}, v{vt+1+dt} offset:{off+hh*2048}',('c',tag))))
    return L
def consume(R,tag,vt):
    for k,f in consume_items(R,tag,vt): f()
def pipeline(mfs, loadfn, ctr, slots, ahead, fill=None, gates=None, limited=None, fixed=None, pre=8, late=None, pace=1, have=None, mark='', age=None):
    age=age or opt['age']; SPL=('s_add_u32','s_addk_i32','s_mul_i32','s_and_b32','s_lshl_b32','s_lshr_b32','s_lshl3_add_u32','s_lshl2_add_u32')
    fill=list(fill or []); gates=gates or {}; limited=limited or {}; fixed=fixed or {}; late=late or {}
    first={};last={}
    for i,(f,us) in enumerate(mfs):
        for u in us: first.setdefault(u,i); last[u]=i
    order=sorted(first,key=lambda u:first[u]); free=list(slots); reg={}; opened=set()
    q=[]; nxt=[0]; nowait=set()
    for u,r in (have or {}).items(): reg[u]=r; order.remove(u); free.remove(r)
    def alloc(u,i):
        if u in fixed:
            r,e=fixed[u]
            return r if e<=i else None
        for r in sorted(free,key=lambda r:limited.get(r,1<<30)):
            if limited.get(r,1<<30)>=last[u] and late.get(r,0)<=i: free.remove(r); return r
        return None
    def one_load(i,force=False):
        if not q:
            if nxt[0]>=len(order): return False
            u=order[nxt[0]]
            if u in gates and gates[u] not in opened:
                if not force:
                    c=[x for x in order[nxt[0]:] if x not in gates and first[x]-i<=ahead]
                    if not c or len([r for r in free if late.get(r,0)<=i])<=4: return False
                    order.remove(c[0]); order.insert(nxt[0],c[0]); return one_load(i)
                while gates[u] not in opened: run_fill()
            if not force and first[u]-i>ahead: return False
            r=alloc(u,i)
            if r is None:
                assert not force,('no slot',i,u); return False
            reg[u]=r; q.extend((u,t) for t in loadfn(u,r)); nxt[0]+=1
            if not q: return one_load(i,force)
        u,t=q.pop(0); ctr.issue(t,('f',u) if 'wbl2' not in t else None); nowait.update([len(ctr.ops)] if 'wbl2' in t else []); return True
    skip=[0]; when={}
    def nl(k): return sum(1 for l in a.lines[k:] if not l.endswith(':'))
    def run_fill():
        k=len(a.lines); r=fill.pop(0)[2](); del a.lines[k:k+skip[0]]; skip[0]=0
        if isinstance(r,str): opened.add(r)
    def peek():
        st=save(); k=len(a.lines); nc=len(cold); h=a.hold; fill[0][2](); L=a.lines[k+skip[0]:]; del a.lines[k:]; del cold[nc:]; restore(st); a.hold=h
        return [l for l in L if not l.endswith(':')]
    def unissued(us): return any(u not in reg or any(x[0]==u for x in q) for u in us)
    def need(us):
        tg=[ctr.tags[('f',u)] for u in us if ('f',u) in ctr.tags]
        return max(tg) if tg and max(tg)>ctr.du else 0
    for i,(f,us) in enumerate(mfs):
        k0=len(a.lines); n0=len(ctr.ops)
        if i==0:
            for k in range(pre): one_load(0)
        else:
            room=lambda: opt['bud']-nl(k0)-(1 if need(us) else 0)
            nf=first[q[0][0]] if q else (first[order[nxt[0]]] if nxt[0]<len(order) else 1<<30)
            hot=fill and fill[0][0]<=i
            L=peek() if hot else []
            big=len(L)>1 and L[0].split()[0] not in SPL and nf-i>ahead//3
            if i%pace==1%pace and not(big and pace==1) and not(hot and i-fill[0][0]>opt['lag'] and nf-i>ahead//2): one_load(i)
            mem=0
            while fill and fill[0][0]<=i:
                L=peek(); ism=fill[0][1] in 'mM'
                if len(L)<=room() or (nl(k0)==0 and not(L[0].split()[0] in SPL)) or (room()>0 and i-fill[0][0]>opt['lag']):
                    if ism and mem: break
                    mem+=ism; run_fill()
                elif room()>0 and L[0].split()[0] in SPL: a(L[0]); skip[0]+=1
                else: break
            if pace==1 and room()>0 and len(ctr.ops)==n0: one_load(i)
        while any(len(x)>3 and x[3]<=i for x in fill): run_fill()
        while unissued(us): one_load(i,True)
        for k in range(n0,len(ctr.ops)): when[k+1]=i
        k=need(us)
        if k:
            while k<len(ctr.ops) and k+1 not in nowait and when.get(k+1,0)<=i-age: k+=1
            ctr.tags['_']=k; ctr.wait('_')
        a(f(reg))
        if mark and mark==opt.get('tsx') and i%24==23 and i<190: ts(24+i//24)
        for u in set(us):
            if last[u]==i and u not in fixed: free.append(reg[u])
    while fill: run_fill()
    return reg
def FV(i,text,dl=1<<30): return [(i,'v',(lambda t=t: a(t)),dl) for t in text.split('\n') if t.strip()]
def FS(i,text): return [(i,'s',(lambda t=t: a(t))) for t in text.split('\n') if t.strip()]
def FX(i,text): return [(i,'s' if t.strip().startswith('s_') else 'v',(lambda t=t: a(t))) for t in text.split('\n') if t.strip()]

def chain(i,items,step=0,dl=None):
    o=[]
    for n,x in enumerate(items):
        x=x if isinstance(x[0],str) else x[1:]
        o.append((i+int(n*step),)+tuple(x[:2])+((dl,) if dl is not None else tuple(x[2:])))
    return o
def merge(*ch): return sorted(sum(ch,[]),key=lambda x:x[0])
import copy
def save(): return [copy.copy(x) for x in (vm.ops,vm.dc,vm.du,vm.tags,lg.ops,lg.dc,lg.du,lg.tags)]
def restore(st): vm.ops,vm.dc,vm.du,vm.tags,lg.ops,lg.dc,lg.du,lg.tags=[copy.copy(x) for x in st]
def maxchain(dst,regs):
    regs=list(regs)
    a(f'v_max3_u32 v{dst}, v{regs[0]}, v{regs[1]}, v{regs[2]}'); regs=regs[3:]
    while len(regs)>=2: a(f'v_max3_u32 v{dst}, v{dst}, v{regs[0]}, v{regs[1]}'); regs=regs[2:]
    if regs: a(f'v_max_u32 v{dst}, v{dst}, v{regs[0]}')
def cmul(d,x,y):
    a(f'v_pk_mul_f32 {V(d,2)}, {V(x,2)}, {V(y,2)} op_sel:[0,0] op_sel_hi:[0,1]')
    return f'v_pk_fma_f32 {V(d,2)}, {V(x,2)}, {V(y,2)}, {V(d,2)} op_sel:[1,1,0] op_sel_hi:[1,0,1] neg_lo:[0,1,0]'
def cmuls(L):
    for t in [cmul(*x) for x in L]: a(t)
LOG2E=math.log2(math.e)
def rbf(v): a(f'v_cvt_pk_bf16_f32 v{v}, v{v}, v{v}\nv_lshlrev_b32 v{v}, 16, v{v}')
def ln_final(s,q):
    a(f'''v_mul_f32 v{s}, {fhex(-1/512)}, v{s}
    v_fmamk_f32 v{q}, v{q}, {fhex(1/512)}, v{vEPS}
    v_fma_f32 v{q}, -v{s}, v{s}, v{q}
    v_max_f32 v{q}, v{q}, v{vEPS}
    v_rsq_f32 v{q}, v{q}
    v_mul_f32 v{s}, v{s}, v{q}''')
def a2_vaddr(vd,tmp):
    return f'''v_lshrrev_b32 v{tmp}, 5, v{vLANE}
    v_and_b32 v{vd}, 31, v{vLANE}
    v_lshlrev_b32 v{vd}, 4, v{vd}
    v_lshl_add_u32 v{vd}, v{tmp}, 15, v{vd}'''
vV1=2; vV2=5; vNEG=6; vL16=10; vTCH=11; vJ0=12; vJ1=13
sA2S=30; sPS=31; sA2B=18; sHF=19; sX1F=3; sXID=sLAY
cold=[]
GB=vW+116; vGA=vW+104; vGB=vW+39
def gather_u(hf,iss):
    a(f's_add_u32 m0, s{sT+19}, {hf*2048}\ns_add_u32 s{sT+21}, s{sT+20}, {hf<<21}')
    iss(f'buffer_load_dwordx4 v{vGA}, {S(rWS,4)}, s{sT+21} offen sc1 lds')
def gather_b(n,iss):
    a(f's_add_u32 s{sT+21}, s{sT+18}, {n<<21}')
    iss(f'buffer_load_dwordx4 {V(GB+4*n,4)}, v{vGB}, {S(rWS,4)}, s{sT+21} offen sc1')
def gather_addr(lay):
    a(f'''v_and_b32 v{vGA}, 127, v0
    v_lshlrev_b32 v{vGA}, 14, v{vGA}
    s_lshl1_add_u32 s{sT+20}, s{sCP}, s{sCH}
    s_lshl_b32 s{sT+20}, s{sT+20}, 4
    s_add_u32 s{sT+20}, s{sT+20}, {A2+A2S*lay}
    s_mul_i32 s{sT+19}, s{sCH}, {UCH}
    s_lshl_b32 s{sT+21}, s{sKH}, 10
    s_add_u32 s{sT+19}, s{sT+19}, s{sT+21}
    s_add_u32 s{sT+19}, s{sT+19}, {U+512}''')
def touch(srd,soff,dst,nl):
    def f():
        if nl<256: a(f'v_min_u32 v{vJ1}, {(nl-1)*128}, v{vTCH}')
        vm.issue(f'buffer_load_dword v{dst}, v{vTCH if nl==256 else vJ1}, {S(srd,4)}, {soff} offen')
    return f
def htouch():
    a(f'''s_and_b32 s{sT+1}, s{sCP}, 31
    s_mul_i32 s{sT+1}, s{sT+1}, 6
    s_add_u32 s{sT+1}, s{sT+1}, 512
    s_lshl_b32 s{sT+1}, s{sT+1}, 3
    s_lshr_b32 s{sT}, s{sCP}, 5
    s_add_u32 s{sT+1}, s{sT+1}, s{sT}
    s_lshl_b32 s{sT+1}, s{sT+1}, 10
    v_min_u32 v{vJ1}, 47, v0
    v_lshrrev_b32 v{vTCH}, 3, v{vJ1}
    v_and_b32 v{vJ1}, 7, v{vJ1}
    v_lshlrev_b32 v{vJ1}, 7, v{vJ1}
    v_lshl_add_u32 v{vJ1}, v{vTCH}, 13, v{vJ1}''')
    vm.issue(f'buffer_load_dword v{vJ0}, v{vJ1}, {S(rWS,4)}, s{sT+1} offen')
def arrive_b(va,vb):
    return f'''s_and_b32 s{sT+1}, s2, 15
    s_lshl_b32 s{sT+1}, s{sT+1}, 7
    s_add_u32 s{sT+1}, s{sT+1}, {CB}
    v_lshlrev_b32 v{va}, 11, v{vLANE}
    v_mov_b32 v{vb}, 1
    s_mov_b64 exec, 0xffff
    buffer_atomic_add v{vb}, v{va}, {S(rWS,4)}, s{sT+1} offen sc1
    s_mov_b64 exec, -1'''
def w3poll(vPV,load,lim,pre='',post=''):
    d=a.label('pd'); l=a.label('pl'); k=a.label('pk'); a.hold+=1
    if pre in (None,'W'): pre=('s_waitcnt vmcnt(0)\n' if pre else '')+f'v_cmp_gt_u32 vcc, {lim}, v{vPV}\ns_cbranch_vccz {k}'
    a(f's_cmp_lg_u32 s{sW}, 3\ns_cbranch_scc1 {d}\n{pre}\n{l}:\n{load}\ns_waitcnt vmcnt(0)\nv_cmp_gt_u32 vcc, {lim}, v{vPV}\ns_cbranch_vccz {k}\ns_sleep 2')
    spin_check(l); a(f'{k}:\n{post}\n{d}:'); a.hold-=1
def poll_b(va,vb,lim):
    w3poll(vb,f'buffer_load_dword v{vb}, v{va}, {S(rWS,4)}, s{sT+2} offen sc1',lim,
      f'''s_and_b32 s{sT+2}, s2, 15
      s_lshl_b32 s{sT+2}, s{sT+2}, 11
      s_add_u32 s{sT+2}, s{sT+2}, {CB}
      v_and_b32 v{va}, 15, v{vLANE}
      v_lshlrev_b32 v{va}, 7, v{va}''')
def fill_addr(): return FV(0,a2_vaddr(vTCH,vJ1)+f'\nv_bfe_u32 v{vJ1}, v{vLANE}, 3, 1\nv_mul_u32_u24 v{vJ1}, {4096-128}, v{vJ1}\nv_add_u32 v{vJ1}, v{vJ1}, v{vL16}')
def fill_st():
    st=lambda v,sb,off: (a(f's_add_u32 s{sT+8}, s{sb}, {off}'),vm.issue(f'buffer_store_dwordx4 {V(vNEG,4)}, v{v}, {S(rWS,4)}, s{sT+8} offen sc1'))
    return [('M',lambda k=k: st(vTCH,sA2S,8192*(k&1)+MB*(k&2))) for k in range(4)]+[('M',lambda: (exec_set(0xffff,0),st(vJ1,sPS,0),exec_all()))]
def fills_at(n):
    if opt['fp0']==n and opt['nf']:
        h=a.hold; a.hold=1
        for x in chain(0,fill_addr()+fill_st()[:opt['nf']]): x[2]()
        a.hold=h
def p0():
    if opt['early']: a('s_memrealtime s[96:97]')
    vST=vW; vP=vW+1; vXB=vW+2; vXD=vW+3; vT0=vW+4; vPar=vW+8; vXR=vW+16
    a(f'''s_cmp_ge_u32 s2, 256
    s_cbranch_scc1 L_end
    s_load_dwordx16 s[4:19], s[0:1], 0
    s_load_dwordx8 s[20:27], s[0:1], 64
    s_load_dwordx2 s[28:29], s[0:1], 96
    s_getpc_b64 s[{sD0}:{sD0+1}]
    L_pc:
    s_lshr_b32 s{sT+1}, s2, 3
    s_mul_i32 s{sT}, s{sT+1}, {14*128}
    v_min_u32 v{vJ1}, 13, v0
    v_lshl_add_u32 v{vJ1}, v{vJ1}, 7, s{sT}
    v_min_u32 v{vJ1}, @CODEMAX@, v{vJ1}
    global_load_dword v{vJ0}, v{vJ1}, s[{sD0}:{sD0+1}]
    v_lshrrev_b32 v{vW}, 6, v0
    v_and_b32 v{vLANE}, 63, v0
    v_readfirstlane_b32 s{sW}, v{vW}
    s_getreg_b32 s{sXCC}, hwreg(HW_REG_XCC_ID, 0, 4)
    s_and_b32 s{sT}, s2, 7
    s_lshr_b32 s{sT+1}, s2, 3
    s_lshl_b32 s{sCP}, s{sT}, 5
    s_add_u32 s{sCP}, s{sCP}, s{sT+1}
    s_lshr_b32 s{sRB}, s{sCP}, 3
    s_and_b32 s{sJ}, s{sCP}, 7
    s_and_b32 s{sKH}, s{sW}, 1
    s_lshr_b32 s{sCH}, s{sW}, 1
    v_mov_b64 {V(vNEG,2)}, -1
    v_mov_b64 {V(vNEG+2,2)}, -1
    v_lshlrev_b32 v{vL16}, 4, v{vLANE}
    v_and_b32 v{vST}, 1, v{vLANE}
    v_lshlrev_b32 v{vST}, 5, v{vST}
    v_lshrrev_b32 v{vT0}, 5, v0
    v_lshl_add_u32 v{vST}, v{vT0}, 2, v{vST}
    v_lshlrev_b32 v{vP}, 1, v0
    v_lshlrev_b32 v{vXB}, 5, v0
    v_lshrrev_b32 v{vT0}, 4, v{vLANE}
    v_and_b32 v{vXD}, 15, v{vLANE}
    v_lshlrev_b32 v{vXD}, 4, v{vXD}
    v_lshl_add_u32 v{vXD}, v{vT0}, 10, v{vXD}
    v_lshlrev_b32 v{vTCH}, 7, v0
    s_lshl_b32 s{sT+3}, s2, 13
    s_lshl_b32 s{sT+13}, s{sW}, 11
    s_lshl_b32 s{sT+4}, s2, 14
    s_add_u32 s{sT+4}, s{sT+4}, s{sT+13}
    s_add_u32 s{sT+5}, s{sT+4}, 8192
    v_lshlrev_b32 v{vT0+2}, 1, v{vLANE}
    v_lshl_add_u32 v{vT0+2}, s{sW}, 8, v{vT0+2}
    s_lshl_b32 s{sT+6}, s{sCP}, 9
    v_add_u32 v{vP}, s{sT+6}, v{vP}
    s_lshl_b32 s{sT+6}, s{sCP}, 1
    s_add_u32 s{sT+6}, s{sT+6}, s{sCH}
    s_lshl_b32 s{sT+6}, s{sT+6}, 1
    v_mov_b32 v{vT0+1}, s{sT+6}
    s_lshl_b32 s{sT+7}, s{sCP}, 2
    s_add_u32 s{sT+8}, s{sT+7}, s{sW}
    s_lshl_b32 s{sT+8}, s{sT+8}, 2
    s_add_u32 s{sT+8}, s{sT+8}, {HF}
    s_lshl_b32 s{sT+9}, s{sCP}, 7
    s_add_u32 s{sT+9}, s{sT+9}, {XID}
    s_lshl_b32 s{sT+12}, s{sRB}, 7
    s_add_u32 s{sT+12}, s{sT+12}, {HF}
    s_lshl_b32 s{sT+17}, s{sJ}, 2
    s_add_u32 s{sT+17}, s{sT+17}, s{sW}
    s_cmp_eq_u32 s{sT+17}, 2
    s_cselect_b32 s{sT+9}, s{sT+12}, s{sT+9}
    s_cselect_b32 s{sT+15}, 0, s{sXCC}
    s_cselect_b32 s{sT+17}, 1, s{sW}
    s_lshl_b32 s{sT+16}, s2, 11
    s_add_u32 s{sT+16}, s{sT+16}, {CB}
    s_cmp_eq_u32 s{sW}, 3
    s_cselect_b32 s{sT+15}, 0, s{sT+15}
    v_mov_b32 v{vW+28}, s{sT+15}
    v_mov_b32 v{vW+28+1}, s{sT+15}
    v_mov_b32 v{vW+28+2}, s{sT+15}
    v_mov_b32 v{vW+28+3}, s{sT+15}
    s_lshl_b32 s{sT+10}, s{sW}, 8
    s_add_u32 s{sT+10}, s{sT+10}, s{sT+3}
    s_add_u32 s{sT+11}, s{sT+10}, 4096
    s_lshl_b32 s{sX1F}, s{sCP}, 13
    s_add_u32 s{sX1F}, s{sX1F}, s{sT+13}
    s_add_u32 s{sX1F}, s{sX1F}, {X1}
    s_mov_b32 m0, s{sT+13}''')
    for r,n in ((rWS,WSZ),(rX,2*MB),(rW1,512*2752),(rW2,1376*1024),(rOUT,2*MB)):
        a(f's_mov_b32 s{r+2}, {n}\ns_mov_b32 s{r+3}, 0x20000')
    if TS: a(f'v_mov_b32 v{vTS}, 0')
    a('s_waitcnt lgkmcnt(0)')
    ts(0)
    for r,p in ((rWS,sWS),(rX,sX),(rW1,sW1),(rW2,sW2),(rOUT,sOUT)): a(f's_mov_b64 {S(r,2)}, {S(p,2)}')
    a(f's_mov_b32 s{sHF}, s{sT+8}')
    l=a.label('nosm')
    vm.tags['fill0']=len(vm.ops)
    a(f's_cmp_lg_u32 s{sT+17}, 1\ns_cbranch_scc1 {l}')
    exec_set(0xff,0)
    a(f'buffer_store_dwordx4 {V(vW+28,4)}, v{vL16}, {S(rWS,4)}, s{sT+9} offen sc1')
    exec_all(); a(f'{l}:')
    l=a.label('noz')
    a(f'''s_cmp_lg_u32 s{sW}, 3
    s_cbranch_scc1 {l}
    s_cmp_ge_u32 s2, 16
    s_cbranch_scc1 {l}
    buffer_store_dwordx4 {V(vW+28,4)}, v{vL16}, {S(rWS,4)}, s{sT+16} offen sc1
    buffer_store_dwordx4 {V(vW+28,4)}, v{vL16}, {S(rWS,4)}, s{sT+16} offen offset:1024 sc1
    {l}:''')
    vm.tags['zero']=len(vm.ops)
    ST0=len(a.lines)
    vm.issue(f'buffer_load_dwordx4 v{vXD}, {S(rX,4)}, s{sT+10} offen lds')
    a('s_addk_i32 m0, 1024')
    vm.issue(f'buffer_load_dwordx4 v{vXD}, {S(rX,4)}, s{sT+11} offen lds','xs')
    vm.issue(f'buffer_load_dwordx4 {V(vXR,4)}, v{vXB}, {S(rX,4)}, s{sT+3} offen')
    vm.issue(f'buffer_load_dwordx4 {V(vXR+4,4)}, v{vXB}, {S(rX,4)}, s{sT+3} offen offset:16','xr')
    vm.issue(f'global_load_ushort v{vPar}, v{vT0+1}, {S(sLD,2)}')
    for k,p in enumerate((sLA,sAI,sCR,sCI)): vm.issue(f'global_load_ushort v{vPar+1+k}, v{vP}, {S(p,2)}','par')
    for cb in range(2): vm.issue(f'global_load_ushort v{vPar+6+cb}, v{vT0+2}, {S(sDS,2)} offset:{128*cb}','dsk')
    vm.issue(f'buffer_store_dwordx4 {V(vNEG,4)}, v{vL16}, {S(rWS,4)}, s{sX1F} offen sc1')
    vm.issue(f'buffer_store_dwordx4 {V(vNEG,4)}, v{vL16}, {S(rWS,4)}, s{sX1F} offen offset:1024 sc1','fill1')
    def malltouch():
        if opt['touch']==2:
            a(f's_mul_i32 s{sT+12}, s2, {43*128}')
            touch(rW1,f's{sT+12}',vJ0,43)(); touch(rW2,f's{sT+12}',vJ0,43)()
    def stouch(p):
        a.hold+=1
        a(f's_mul_i32 s98, s{sW}, 11\ns_min_u32 s98, s98, 32\ns_mul_i32 s99, s2, 43\ns_add_u32 s98, s98, s99\ns_lshl_b32 s98, s98, 7\nv_min_u32 v{vJ1}, 10, v{vLANE}\nv_lshlrev_b32 v{vJ1}, 7, v{vJ1}')
        vm.issue(f'buffer_load_dword v{vJ0}, v{vJ1}, {S(rW1 if p==sW1 else rW2,4)}, s98 offen'); a.hold-=1
    def st_at(n):
        if n: fills_at(n)
        if opt['touch']==3:
            if opt['st1']==n: stouch(sW1)
            if opt['st2']==n: stouch(sW2)
    if opt['tpos']==0: malltouch()
    st_at(0)
    ts(17)
    a(f'''s_mov_b32 s{sSPIN}, 0x40000
    s_lshr_b32 s{sOB}, s{sRB}, 3
    s_lshl_b32 s{sOB}, s{sOB}, 5
    s_and_b32 s{sT+2}, s{sRB}, 3
    s_lshl3_add_u32 s{sOB}, s{sT+2}, s{sOB}
    s_bfe_u32 s{sT+2}, s{sRB}, 0x10002
    s_add_u32 s{sOB}, s{sOB}, s{sT+2}
    s_lshl2_add_u32 s{sOB}, s{sKH}, s{sOB}
    s_mul_i32 s{sW1B}, s{sJ}, 344
    s_mul_i32 s{sT+2}, s{sW}, {8*2752 if opt['wide'] else 96}
    s_add_u32 s{sW1B}, s{sW1B}, s{sT+2}
    s_mul_i32 s{sW2B}, s{sW}, {344*1024}
    s_lshl_b32 s{sT+2}, s{sJ}, 7
    s_add_u32 s{sW2B}, s{sW2B}, s{sT+2}
    s_lshl4_add_u32 s{sA2S}, s{sOB}, s{sJ}
    s_lshl1_add_u32 s{sA2S}, s{sA2S}, s{sCH}
    s_lshl_b32 s{sA2S}, s{sA2S}, 9
    s_add_u32 s{sA2S}, s{sA2S}, {A2+A2S}
    s_lshl2_add_u32 s{sPS}, s{sRB}, s{sKH}
    s_lshl3_add_u32 s{sPS}, s{sPS}, s{sJ}
    s_lshl1_add_u32 s{sPS}, s{sPS}, s{sCH}
    s_lshl_b32 s{sPS}, s{sPS}, 7
    s_add_u32 s{sPS}, s{sPS}, {PS}
    s_lshl_b32 s{sXID}, s{sRB}, 10
    s_add_u32 s{sXID}, s{sXID}, {XID}
    v_mov_b32 v{vEPS}, {fhex(1e-5)}''')
    for k in range(4): a(f's_and_b32 s{T1[k]}, s{sRB}, {opt["rot"]}\ns_xor_b32 s{T1[k]}, s{T1[k]}, {k}\ns_mul_i32 s{T1[k]}, s{T1[k]}, {4*88064}\ns_add_u32 s{T1[k]}, s{T1[k]}, s{sW1B}')
    for sr,(b,st) in ((sR12,RG12),(sRX,RGX),(sR45,RG45)): a(f's_mul_i32 s{sr}, s{sW}, {st}\ns_add_u32 s{sr}, s{sr}, {b}')
    fills_at(0)
    t0=vW+24
    a(f'''v_lshrrev_b32 v{t0}, 2, v{vLANE}
    v_and_b32 v{t0+1}, 3, v{vLANE}
    v_lshlrev_b32 v{t0+1}, 3, v{t0+1}
    v_lshl_add_u32 v{vXT}, v{t0}, 6, v{t0+1}
    v_lshl_add_u32 v{vXT+2}, v{t0}, 7, v{t0+1}
    v_bfe_u32 v{t0}, v{vLANE}, 4, 1
    v_lshl_add_u32 v{vXT}, v{t0}, 5, v{vXT}
    v_add_u32 v{vXT}, {XT}, v{vXT}
    v_xor_b32 v{vXT+1}, 32, v{vXT}
    s_andn2_b32 s{sT+2}, 2, s{sW}
    v_bfe_u32 v{t0}, v{vLANE}, 3, 2
    v_xor_b32 v{t0}, s{sT+2}, v{t0}
    v_lshl_add_u32 v{vXT+2}, v{t0}, 5, v{vXT+2}
    v_xor_b32 v{vXT+3}, 32, v{vXT+2}''')
    w1_addr(vV1,t0); swz_addr(vV2,10,t0); gather_addr(0)
    vIX=vW+72
    vK=vW+89
    vTA,vA,vB,vC1,vC2,vC3,vE1,vE2,vXTR=[vK+k for k in range(9)]
    a(f'''v_and_b32 v{t0+6}, 127, v0
    v_lshlrev_b32 v{t0}, 4, v{t0+6}
    v_sub_u32 v{t0}, 2032, v{t0}
    v_cvt_f32_i32 v{t0+1}, v{t0}
    s_mul_i32 s{sT+16}, s{sCH}, {KTCH}
    s_add_u32 s{sT+16}, s{sT+16}, {KT}
    v_lshrrev_b32 v{t0+2}, 16, v{t0+1}
    v_subrev_u32 v{t0+2}, 0x4280, v{t0+2}
    v_min_i32 v{t0+3}, 127, v{t0}
    v_max_i32 v{t0+2}, v{t0+2}, v{t0+3}
    v_or_b32 v{t0+2}, 0x4b000000, v{t0+2}
    v_and_b32 v{t0+1}, 0x7f800000, v{t0+1}
    v_max_u32 v{t0+1}, 0x43000000, v{t0+1}
    v_sub_u32 v{t0+1}, 0x82800000, v{t0+1}
    s_sub_u32 s{sT+15}, s{sT+16}, 0x96000000''')
    for k in range(16):
        a(f'v_fmamk_f32 v{t0+3}, v{t0+1}, {fhex(15-k)}, v{t0+2}\nv_lshl_add_u32 v{vIX+k}, v{t0+3}, 1, s{sT+15}')
    a(f'''s_add_u32 s{sT+15}, s{sT+16}, 1400
    v_mov_b32 v{t0+4}, s{sT+15}
    v_subrev_u32 v{vIX+16}, 2, v{vIX+15}
    v_cmp_lt_u32 vcc, 256, v{t0}
    v_cndmask_b32 v{vIX+16}, v{vIX+16}, v{vIX+15}, vcc
    v_cmp_eq_u32 vcc, 0, v{t0}
    v_cndmask_b32 v{vIX+16}, v{vIX+16}, v{t0+4}, vcc
    v_mov_b32 v{t0+5}, 0''')
    lg.issue(f'ds_write_b32 v{t0+4}, v{t0+5}')
    a(f'''s_mul_i32 s{sT+15}, s{sCH}, {UCH}
    v_lshl_add_u32 v{t0+4}, v{t0+6}, 2, s{sT+15}''')
    lg.issue(f'ds_write_b32 v{t0+4}, v{t0+5} offset:{U}')
    a(f'''s_mul_i32 s{sT+15}, s{sCH}, {TCH}
    s_add_u32 s{sT+15}, s{sT+15}, {TAB}
    s_lshl_b32 s{sT+14}, s{sKH}, 8
    s_add_u32 s{sT+14}, s{sT+14}, s{sT+15}
    v_and_b32 v{t0}, 15, v{vLANE}
    v_mul_u32_u24 v{vA}, {TROW}, v{t0}
    v_and_b32 v{vB}, 48, v{vLANE}
    v_add3_u32 v{vA}, v{vA}, v{vB}, s{sT+15}
    s_mul_i32 s{sT+15}, s{sKH}, {16*TROW}
    s_add_u32 s{sT+15}, s{sT+15}, {21*TROW}
    v_add_u32 v{vB}, s{sT+15}, v{vA}
    s_lshl_b32 s{sT+15}, s{sKH}, 4
    v_add_u32 v{t0}, s{sT+15}, v{t0}
    v_lshrrev_b32 v{t0+1}, 4, v{vLANE}
    v_lshlrev_b32 v{vC1}, 4, v{t0}
    v_lshl_add_u32 v{vC1}, v{t0+1}, 3, v{vC1}
    v_lshlrev_b32 v{t0+3}, 3, v{t0}
    v_add_u32 v{t0+3}, 512, v{t0+3}
    v_cmp_eq_u32 vcc, 2, v{t0+1}
    v_cndmask_b32 v{vC1}, v{vC1}, v{t0+3}, vcc
    v_add_u32 v{vC2}, 4, v{vC1}
    v_lshlrev_b32 v{t0+3}, 2, v{t0}
    v_add_u32 v{t0+5}, 768, v{t0+3}
    v_add_u32 v{t0+3}, 896, v{t0+3}
    v_cmp_eq_u32 vcc, 3, v{t0+1}
    v_cndmask_b32 v{vC1}, v{vC1}, v{t0+5}, vcc
    v_cndmask_b32 v{vC2}, v{vC2}, v{t0+3}, vcc
    v_add_u32 v{vC1}, s{sT+16}, v{vC1}
    v_add_u32 v{vC2}, s{sT+16}, v{vC2}
    v_lshlrev_b32 v{vC3}, 1, v{t0}
    v_lshl_add_u32 v{vC3}, v{t0+1}, 8, v{vC3}
    v_add_u32 v{vC3}, s{sT+16}, v{vC3}
    s_mul_i32 s{sT+15}, s{sCH}, {KCH}
    v_lshl_add_u32 v{vE1}, v{t0+6}, 5, s{sT+15}
    v_and_b32 v{vE2}, 7, v{vLANE}
    s_mul_i32 s{sT+15}, s{sW}, {KCP}
    v_lshl_add_u32 v{vE2}, v{vE2}, 3, s{sT+15}
    v_bfe_u32 v{vXTR}, v{vLANE}, 2, 2
    v_lshlrev_b32 v{vXTR}, 8, v{vXTR}
    v_lshl_add_u32 v{vXTR}, v{t0+1}, 5, v{vXTR}
    v_and_b32 v{t0+1}, 3, v{vLANE}
    v_lshl_add_u32 v{vXTR}, v{t0+1}, 3, v{vXTR}
    v_add_u32 v{vXTR}, s{sT+13}, v{vXTR}
    v_mov_b32 v{t0+1}, 0x3f803f80
    v_and_b32 v{t0+4}, 1, v{vLANE}
    v_cmp_eq_u32 vcc, 1, v{t0+4}''')
    l=a.label('noa')
    a(f'''s_cmp_lg_u32 s{sW}, 3
    s_cbranch_scc1 {l}
    s_cmp_ge_u32 s2, 16
    s_cbranch_scc1 {l}
    v_mov_b32 v{vW+2}, 0
    v_mov_b32 v{vW+3}, 1
    s_waitcnt vmcnt({len(vm.ops)-vm.tags['zero']})''')
    exec_set(1,0)
    a(f'global_atomic_add v{vW+2}, v{vW+3}, {S(sDBG,2)} sc1')
    exec_all(); a(f'{l}:')
    ts(20)
    if opt['warm']: a('@WARM@')
    ts(18)
    vm.wait('xs'); ts(1)
    xt=vW+32
    for cb in range(2):
        for hh in range(2): lg.issue(f'ds_read_b64_tr_b16 {V(xt+4*cb+2*hh,2)}, v{vXTR} offset:{cb*128+hh*1024}','xt')
    vm.wait('xr')
    sS,sQ=t0+2,t0+3
    for k in range(8):
        a(f'v_dot2_f32_bf16 v{sS}, v{vXR+k}, v{t0+1}, '+('0' if k==0 else f'v{sS}'))
        a(f'v_dot2_f32_bf16 v{sQ}, v{vXR+k}, v{vXR+k}, '+('0' if k==0 else f'v{sQ}'))
    lg.wait('xt')
    xf=vW+40; rq=vW+56; uf=vXR
    ups=[]
    for k in range(8): ups+=[f'v_lshlrev_b32 v{xf+2*k}, 16, v{xt+k}', f'v_and_b32 v{xf+2*k+1}, 0xffff0000, v{xt+k}']
    a(ups.pop()); a(ups.pop()); a(ups.pop())
    for sh in (8,4,2,1):
        for r in (sS,sQ): a(f'v_add_f32_dpp v{r}, v{r}, v{r} row_ror:{sh} row_mask:0xf bank_mask:0xf')
        a(ups.pop())
    for r in (sS,sQ): a(f'v_add_f32_dpp v{r}, v{r}, v{r} row_bcast:15 row_mask:0xa bank_mask:0xf')
    ln_final(sS,sQ)
    a(f'v_cndmask_b32 v{sS}, v{sQ}, v{sS}, vcc')
    exec_set('0xc0000000','0xc0000000')
    lg.issue(f'ds_write_b32 v{vST}, v{sS} offset:{STAT}')
    exec_all()
    for u_ in ups: a(u_)
    a(f'v_mov_b32 v{t0+4}, {STAT}')
    vm.wait('dsk'); lg.drain(); barrier()
    for k in range(4): lg.issue(f'ds_read_b128 {V(rq+4*k,4)}, v{t0+4} offset:{16*k}')
    a(f'v_lshlrev_b32 v{vPar+6}, 16, v{vPar+6}\nv_lshlrev_b32 v{vPar+7}, 16, v{vPar+7}')
    lg.drain()
    st_at(1)
    def early_poll():
        l=a.label('nop'); a(f'''s_cmp_lg_u32 s{sW}, 3
        s_cbranch_scc1 {l}
        v_mov_b32 v{vW}, 0
        global_load_dword v{vW+1}, v{vW}, {S(sDBG,2)} sc1
        {l}:''')
    for cb in range(2):
        for k in range(4): a(f'v_pk_fma_f32 {V(uf+2*k,2)}, {V(xf+8*cb+2*k,2)}, {V(rq+2*k,2)}, {V(rq+8+2*k,2)}')
        for k in range(4): a(f'v_cvt_pk_bf16_f32 v{xt+k}, v{uf+2*k}, v{uf+2*k+1}')
        for k in range(4): a(f'v_min_u32 v{xt+k}, -2, v{xt+k}')
        vm.issue(f'buffer_store_dwordx4 {V(xt,4)}, v{vL16}, {S(rWS,4)}, s{sT+4} offen offset:{1024*cb} sc1')
        for k in range(4): a(f'v_pk_fma_f32 {V(uf+2*k,2)}, {V(uf+2*k,2)}, {V(vPar+6,2)}, {V(xf+8*cb+2*k,2)} op_sel:[0,{cb},0] op_sel_hi:[1,{cb},1]')
        for k in range(4): a(f'v_cvt_pk_bf16_f32 v{xt+4+k}, v{uf+2*k}, v{uf+2*k+1}')
        for k in range(4): a(f'v_min_u32 v{xt+4+k}, -2, v{xt+4+k}')
        if cb==1: early_poll()
        vm.issue(f'buffer_store_dwordx4 {V(xt+4,4)}, v{vL16}, {S(rWS,4)}, s{sT+5} offen offset:{1024*cb} sc1','pub')
    if opt['tpos']==1: malltouch()
    st_at(2)
    if opt['htouch']==1: htouch()
    ts(2)
    dt,la,ai,cr,ci=[vPar+k for k in range(5)]
    vPO=vW; vPV=vW+1
    def arrive():
        vm.wait('pub'); barrier(); ts(19)
        w3poll(vPV,f'global_load_dword v{vPV}, v{vPO}, {S(sDBG,2)} sc1',16,None,arrive_b(vPO,vPV))
    items=issue_items(R1,'r1',vV1,vV2)
    a.sprinkle(items,opt['spr1'] if not opt['nor1'] else 10000)
    for k in range(5): a(f'v_lshlrev_b32 v{vPar+k}, 16, v{vPar+k}')
    a(f'''v_mul_f32 v{dt}, {fhex(LOG2E)}, v{dt}
    v_mul_f32 v{la}, {fhex(LOG2E)}, v{la}
    v_exp_f32 v{dt}, v{dt}
    v_exp_f32 v{la}, v{la}''')
    rbf(dt); rbf(la)
    E=vW+16
    e1,e8,e256,c2=E,E+2,E+4,E+6
    a(f'''v_mul_f32 v{la}, v{la}, v{dt}
    v_mul_f32 v{ai}, v{ai}, v{dt}
    v_mul_f32 v{cr}, v{cr}, v{dt}
    v_mul_f32 v{ci}, v{ci}, v{dt}
    v_mul_f32 v{la}, {fhex(-LOG2E)}, v{la}
    v_mul_f32 v{ai}, 0.15915494, v{ai}
    v_add_f32 v{c2}, v{cr}, v{cr}
    v_mul_f32 v{c2+1}, -2.0, v{ci}''')
    tm=E+8
    for k,(d,p) in enumerate(((e1,1.0),(e8,8.0),(e256,256.0))):
        a(f'v_mul_f32 v{tm+2*k}, {fhex(p)}, v{la}\nv_mul_f32 v{tm+2*k+1}, {fhex(p)}, v{ai}')
    for k in range(3): a(f'v_exp_f32 v{tm+2*k}, v{tm+2*k}\nv_fract_f32 v{tm+2*k+1}, v{tm+2*k+1}')
    for k,d in enumerate((e1,e8,e256)): a(f'v_cos_f32 v{d}, v{tm+2*k+1}\nv_sin_f32 v{d+1}, v{tm+2*k+1}')
    for k,d in enumerate((e1,e8,e256)): a(f'v_pk_mul_f32 {V(d,2)}, {V(d,2)}, {V(tm+2*k,2)} op_sel_hi:[1,0]'+(' neg_hi:[1,0]' if d==e8 else ''))
    pk=[vPar+1,vPar+2,vPar+3,vPar+4]; pi=[0]; seen=[-1]
    def tw(p,row):
        if seen[0]!=len(vm.ops): a(f's_mov_b32 m0, s{sT+14}\ns_nop 0'); seen[0]=len(vm.ops)
        lg.issue(f'ds_write_addtid_b32 v{p} offset:{row*TROW}')
    def put(row,r):
        p=pk[pi[0]%4]; pi[0]+=1
        a(f'v_cvt_pk_bf16_f32 v{p}, v{r}, v{r+1}')
        tw(p,row)
    e2,e3,e4,e5,e6,e7=[E+8+2*k for k in range(6)]
    e16,e32,b1,b2,b3=[E+20+2*k for k in range(5)]
    e512,e768,e1024,ta,tb,tc,td=[E+30+2*k for k in range(7)]
    a(f'v_mov_b32 v{pk[3]}, 0x3f80'); tw(pk[3],0)
    cmuls([(e2,e1,e1),(e16,e8,e8),(b1,c2,e8),(e512,e256,e256)])
    put(1,e1); put(8,e256); put(21,c2)
    cmuls([(e3,e2,e1),(e4,e2,e2),(e32,e16,e16),(b2,c2,e16),(b3,b1,e16),(e768,e512,e256),(e1024,e512,e512),(ta,e256,e2)])
    put(2,e2); put(22,b1); put(12,e512); put(9,ta)
    cmuls([(e5,e4,e1),(e6,e4,e2),(e7,e4,e3),(ta,e256,e4),(tb,e512,e4),(tc,e768,e4),(td,e1024,e256)])
    put(3,e3); put(4,e4); put(23,b2); put(24,b3); put(14,e768); put(16,e1024)
    put(10,ta); put(13,tb); put(15,tc); put(17,td)
    cmuls([(ta,e256,e6),(tb,e1024,e512),(tc,e1024,e768),(td,e1024,e1024)])
    put(5,e5); put(6,e6); put(7,e7)
    put(11,ta); put(18,tb); put(19,tc); put(20,td)
    a.hold+=1; arrive()
    if opt['tpos']==2: malltouch()
    st_at(3)
    a.hold=0
    if opt['nor1']==2: a.every=opt['spr1']
    cur=[c2,b1,b2,b3]; alt=[e2,e3,e4,e5]
    for m in range(1,8):
        cmuls([(alt[k],cur[k],e32) for k in range(4)])
        cur,alt=alt,cur
        for k in range(4): put(21+4*m+k,cur[k])
    ts(3); a.flush()
    pld=f'buffer_load_dword v{vPV}, v{vPO}, {S(rWS,4)}, s{sT+2} offen sc1'
    def pb():
        l=a.label('pb'); a(f's_cmp_lg_u32 s{sW}, 3\ns_cbranch_scc1 {l}\ns_and_b32 s{sT+2}, s2, 15\ns_lshl_b32 s{sT+2}, s{sT+2}, 11\ns_add_u32 s{sT+2}, s{sT+2}, {CB}\nv_and_b32 v{vPO}, 15, v{vLANE}\nv_lshlrev_b32 v{vPO}, 7, v{vPO}\n{pld}\n{l}:')
    def gath():
        for hf in range(2): gather_u(hf,lambda s: vm.issue(s,'gu'))
        a(f'v_and_b32 v{vPO}, 7, v{vLANE}\nv_lshlrev_b32 v{vPO}, 7, v{vPO}')
        vm.issue(f'buffer_load_dword v{vPV}, v{vPO}, {S(rWS,4)}, s{sXID} offen sc1','xid')
    EP=opt['ep']
    lg.drain(); barrier()
    st_at(5)
    if EP==1: pb()
    acc=E
    mfs=[]
    for ks in range(8):
        for t in range(2):
            mfs.append((lambda r,ks=ks,t=t: f'{MF} {V(acc+4*t,4)}, {V(r[("A",t,ks)],4)}, {V(r[("B",0,ks)],4)}, '+('0' if ks==0 else V(acc+4*t,4)), [('A',t,ks),('B',0,ks)]))
    def ld(u,r):
        k,t,ks=u
        return [f'ds_read_b128 {V(r,4)}, v{vA if k=="A" else vB} offset:{ks*64+(t*16*TROW if k=="A" else 0)}']
    pipeline(mfs,ld,lg,[E+8+4*k for k in range(12)],16,pre=12)
    c1=consume_items(R1,'r1',vW+2)
    for k in range(17): c1.pop(0)[1]()
    for k in range(4): a(f'v_cvt_pk_bf16_f32 v{acc+2*k}, v{acc+2*k}, v{acc+2*k+1}')
    lg.issue(f'ds_write_b32 v{vC1}, v{acc}')
    lg.issue(f'ds_write_b32 v{vC2}, v{acc+2}')
    exec_set(-1,0)
    lg.issue(f'ds_write_b16 v{vC3}, v{acc+4} offset:1024')
    exec_set(0xffff,0)
    lg.issue(f'ds_write_b16_d16_hi v{vC3}, v{acc+4} offset:1088')
    lg.issue(f'ds_write_b16 v{vC3}, v{acc+6} offset:1152')
    lg.issue(f'ds_write_b16_d16_hi v{vC3}, v{acc+6} offset:1216','kt')
    exec_all()
    for k in range(14): c1.pop(0)[1]()
    if EP==1: w3poll(vPV,pld,16,'W')
    lg.wait('kt'); barrier()
    if EP==1: gath()
    if EP==2: pb()
    g=E; o=E+20
    for k in range(17): lg.issue(f'ds_read_u16 v{g+k}, v{vIX+k}',('g',k))
    for k,f in c1: f()
    a(f'v_mov_b64 {V(o+16,2)}, 0')
    lg.wait(('c','r1')); ts(21)
    if EP!=2: a.sprinkle(issue_items(R2,'r2',vV1,vV2,True),opt['spr2'])
    for k in range(16): a(f'v_lshl_or_b32 v{o+(k>>1)+8*(k&1)}, v{g+k+1}, 16, v{g+k}')
    for cpy in range(2):
        for h in range(2): lg.issue(f'ds_write_b128 v{vE1}, {V(o+8*cpy+4*h,4)} offset:{KC+cpy*KCP+16*h}')
    lg.issue(f'ds_write_b64 v{vE2}, {V(o+16,2)} offset:{KC+4096}')
    if EP==2: w3poll(vPV,pld,16,'W'); lg.drain(); barrier(); gath(); a.sprinkle(issue_items(R2,'r2',vV1,vV2,True),opt['spr2'])
    st_at(4); ts(4)
    def phase_in():
        a.flush()
        if EP==0: poll_b(vPO,vPV,16)
        if EP!=2: lg.drain(); barrier()
        if EP==0: gath()
        ts(5)
    return vPV,phase_in

vXC=GB-9; vUC=GB-10; vMX=GB-11
def xdma(x,iss,v):
    if x%4==0 or (opt['mix'] and LAY[0]==0 and x>7): a(f's_add_u32 m0, s{xL}, {(x&12)*4096}')
    a(f's_add_u32 s{sT+4}, s{xG1 if x&4 else xG}, {(x&3)*64512+(x>>3)*2048}')
    iss(f'buffer_load_dwordx4 v{v}, {S(rWS,4)}, s{sT+4} offen offset:{1024*(x&3)} sc1 lds')
XCH=[(0,opt['c0']),(opt['c0'],8),(8,12),(12,16)]
def xissue(x,v): return lambda: xdma(x,lambda s: vm.issue(s,('x',[c for c in range(4) if XCH[c][0]<=x<XCH[c][1]][0])),v)
def scal():
    a(f'''s_lshr_b32 s{sT+6}, s{sCP}, 5
    s_lshl_b32 s{sT+6}, s{sT+6}, 10
    s_bfe_u32 s{sT+7}, s{sCP}, 0x40001
    s_and_b32 s{hW}, s{sT+7}, 1
    s_mul_i32 s{sT+7}, s{sT+7}, {44*8192}
    s_add_u32 s{sT+7}, s{sT+7}, s{sT+6}
    s_and_b32 s{hO}, s{sJ}, 1
    s_lshl2_add_u32 s{hS}, s{hO}, s{sW}
    s_lshl_b32 s{hS}, s{hS}, 13
    s_add_u32 s{hS}, s{hS}, s{sT+7}
    s_cmp_eq_u32 s{sW}, 2
    s_cselect_b32 s{sT+8}, 2, s{hO}
    s_cselect_b32 s{hO}, s{hO}, s{sW}
    s_xor_b32 s{hW}, s{hW}, s{hO}
    s_lshl1_add_u32 s{hO}, s{sT+8}, s{hO}
    s_add_u32 s{hO}, s{hO}, 32
    s_lshl_b32 s{hO}, s{hO}, 13
    s_add_u32 s{hO}, s{hO}, s{sT+7}
    s_lshl2_add_u32 s{sT+7}, s{sRB}, s{sW}
    s_lshl_b32 s{gF}, s{sT+7}, 5
    s_add_u32 s{gF}, s{gF}, {HF}
    s_and_b32 s{sT+7}, s{sT+7}, 15
    s_mul_i32 s{sT+7}, s{sT+7}, {44*8192}
    s_add_u32 s{sT+7}, s{sT+7}, s{sT+6}
    s_add_u32 s{gO}, s{sT+7}, {32*8192}
    s_lshl_b32 s{sT+8}, s{sKH}, 16
    s_add_u32 s{gH+1}, s{sT+7}, s{sT+8}
    s_xor_b32 s{sT+8}, s{sT+8}, 0x10000
    s_add_u32 s{gH}, s{sT+7}, s{sT+8}
    s_mul_i32 s{gB}, s{sW}, 12288
    s_add_u32 s{gB}, s{gB}, {RED}
    s_lshl_b32 s{xG}, s{sW}, 12
    s_add_u32 s{xL}, s{xG}, {XT}
    s_and_b32 s{sW1B}, s{sRB}, {opt['rot']}
    s_lshl_b32 s{sW1B}, s{sW1B}, 13
    s_xor_b32 s{xG}, s{xG}, s{sW1B}
    s_add_u32 s{xG}, s{xG}, s{sRB}
    s_lshl_b32 s{xG}, s{xG}, 6
    s_add_u32 s{xG}, s{xG}, {X1}
    s_lshl1_add_u32 s{gX}, s{sJ}, s{sCH}
    s_lshl_b32 s{gU}, s{sOB}, 7
    s_add_u32 s{gU}, s{gU}, s{gX}
    s_lshl_b32 s{gU}, s{gU}, 6
    s_lshl_b32 s{gX}, s{gX}, 11
    s_xor_b32 s{gX}, s{gX}, s{sW1B}
    s_andn2_b32 s{gP}, s{sPS}, 0x7ff''')
    for k,x in enumerate((3,1,2)): a(f's_xor_b32 s{sT+8}, s{sW}, {x}\ns_mul_i32 s{sT+8}, s{sT+8}, 12288\ns_add_u32 s{gI+k}, s{sT+8}, {RED+2048*k}')
    for k in range(4): a(f's_and_b32 s{sT+8}, s{sRB}, {opt["rot2"]}\ns_xor_b32 s{sT+8}, s{sT+8}, {k}\ns_mul_i32 s{T2[k]}, s{sT+8}, {96*1024}\ns_lshr_b32 s{sT+8}, s{sT+8}, 1\ns_mul_i32 s{sT+8}, s{sT+8}, {20*1024}\ns_sub_u32 s{T2[k]}, s{T2[k]}, s{sT+8}\ns_add_u32 s{T2[k]}, s{T2[k]}, s{sW2B}')
    for k,r in enumerate(MK): a(f's_mov_b32 s{r}, {0x22222222<<k}\ns_mov_b32 s{r+1}, {0x22222222<<k}')
def retry(issue,regs,mx,lds=None,red=None):
    lr=a.label('re'); lb=a.label('bk')
    def c():
        a(f'{lr}:\ns_sub_u32 s{sSPIN}, s{sSPIN}, 1\ns_cbranch_scc1 L_bail'); a(f's_mov_b32 s{sD1}, m0\ns_mov_b32 s{sD1+1}, s{sT+4}'); issue(); a(f's_waitcnt vmcnt(0)\ns_mov_b32 m0, s{sD1}\ns_mov_b32 s{sT+4}, s{sD1+1}')
        if lds: lds(); a('s_waitcnt lgkmcnt(0)')
        a(red) if red else maxchain(mx,regs)
        a(f'v_cmp_eq_u32 vcc, -1, v{mx}\ns_cbranch_vccnz {lr}\ns_branch {lb}')
    lay=LAY[0]
    def c2(): o=LAY[0]; LAY[0]=lay; c(); LAY[0]=o
    cold.append(c2)
    return lambda: a(f'v_cmp_eq_u32 vcc, -1, v{mx}\ns_cbranch_vccnz {lr}\n{lb}:')
def conv(lay,vXID,phase_in):
    acc=vW; vKA=vW+32; vUB=vW+36; vEX=vW+37; vXS=vW+38; vBR=vW+39; F=vW+40
    t=F+44
    a(f'''v_and_b32 v{t}, 15, v{vLANE}
    v_lshrrev_b32 v{t+1}, 4, v{vLANE}
    v_and_b32 v{t+2}, 1, v{vLANE}
    v_xor_b32 v{t+2}, 1, v{t+2}
    v_mul_u32_u24 v{t+3}, {KCP-2}, v{t+2}
    v_lshl_add_u32 v{t+4}, v{t+1}, 3, v{t}
    v_lshlrev_b32 v{t+4}, 1, v{t+4}
    v_sub_u32 v{t+3}, v{t+3}, v{t+4}
    s_mul_i32 s{sT+3}, s{sCH}, {KCH}
    s_lshl_b32 s{sT+4}, s{sKH}, 8
    s_sub_u32 s{sT+3}, s{sT+3}, s{sT+4}
    s_add_u32 s{sT+3}, s{sT+3}, {KC+4110-192-512}
    v_add_u32 v{vKA}, s{sT+3}, v{t+3}''')
    for m in range(1,4): a(f'v_subrev_u32 v{vKA+m}, {1024*m}, v{vKA}')
    a(f'''v_lshlrev_b32 v{vUB}, 5, v{t}
    v_lshlrev_b32 v{t+3}, 4, v{t+1}
    v_sub_u32 v{vUB}, v{vUB}, v{t+3}
    s_mul_i32 s{sT+3}, s{sCH}, {UCH}
    s_sub_u32 s{sT+3}, s{sT+3}, s{sT+4}
    s_add_u32 s{sT+3}, s{sT+3}, {U+528-192}
    v_add_u32 v{vUB}, s{sT+3}, v{vUB}
    s_lshl_b32 s{sT+3}, s{sCH}, 13
    s_add_u32 s{sT+3}, s{sT+3}, {EXCH}
    v_lshl_add_u32 v{vEX}, v{vLANE}, 4, s{sT+3}
    v_and_b32 v{t+2}, 1, v{t+1}
    v_mul_u32_u24 v{t+2}, 3, v{t+2}
    v_xor_b32 v{t+2}, s{sKH}, v{t+2}
    v_lshlrev_b32 v{t+2}, 9, v{t+2}
    v_lshrrev_b32 v{t+3}, 1, v{t+1}
    v_mul_u32_u24 v{t+4}, 3, v{t+3}
    v_xor_b32 v{t+4}, s{sKH}, v{t+4}
    v_lshlrev_b32 v{t+4}, 5, v{t+4}
    v_and_or_b32 v{t+4}, v{t+1}, 1, v{t+4}
    v_lshl_add_u32 v{t+2}, v{t+3}, 8, v{t+2}
    v_lshl_add_u32 v{vXS}, v{t}, 4, v{t+2}
    v_lshl_add_u32 v{vGB}, v{t}, 1, v{t+4}
    v_lshlrev_b32 v{vGB}, 14, v{vGB}
    v_lshl_add_u32 v{vUC}, v{vLANE}, 4, s{sT+19}
    v_lshlrev_b32 v{t+1}, 1, v{t+1}
    v_xor_b32 v{t+1}, v{t+1}, v{vLANE}
    v_and_b32 v{t+1}, 3, v{t+1}
    v_lshrrev_b32 v{vXC}, 2, v{vLANE}
    v_lshlrev_b32 v{vXC}, 12, v{vXC}
    v_lshl_add_u32 v{vXC}, v{t+1}, 4, v{vXC}
    s_add_u32 s{sT+18}, s{sT+20}, 8192
    s_lshl_b32 s{sT+5}, s{sCP}, 1
    s_add_u32 s{sT+5}, s{sT+5}, s{sCH}
    s_lshl_b32 s{sT+5}, s{sT+5}, 12
    s_add_u32 s{sT+5}, s{sT+5}, {X1}''')
    ID=GB-8
    def ident():
        a(f'''s_movk_i32 s{sT+17}, 0x3f80
        v_lshrrev_b32 v{t+4}, 4, v{vLANE}
        v_and_b32 v{t+5}, 15, v{vLANE}
        v_lshlrev_b32 v{t+4}, 3, v{t+4}
        v_sub_u32 v{t+5}, v{t+5}, v{t+4}
        v_and_b32 v{t+6}, 1, v{vLANE}
        v_lshlrev_b32 v{t+6}, 4, v{t+6}
        v_lshlrev_b32 v{t+6}, v{t+6}, s{sT+17}
        v_ashrrev_i32 v{t+7}, 1, v{t+5}''')
        for k in range(8): a(f'v_cmp_eq_u32 s[{sT+6+2*(k&3)}:{sT+7+2*(k&3)}], {k if k<4 else k-12}, v{t+7}'+(''.join(f'\nv_cndmask_b32 v{ID+k-3+e}, 0, v{t+6}, s[{sT+6+2*e}:{sT+7+2*e}]' for e in range(4)) if k&3==3 else ''))
    def ld(u,r):
        k,s,x=u[:3]
        if k=='B': return [f'ds_read_b128 {V(r,4)}, v{vUB} offset:{192-64*s+512*x}']
        o=(192-64*s+512*(1-(x&1)))//4
        return [f'ds_read2_b32 {V(r,2)}, v{vKA+(x>>1)} offset0:{o} offset1:{o+1}', f'ds_read2_b32 {V(r+2,2)}, v{vKA+(x>>1)} offset0:{o+2} offset1:{o+3}']
    def mx4(r): return FV(0,f'v_max3_u32 v{vMX}, v{r}, v{r+1}, v{r+2}\nv_max_u32 v{vMX}, v{vMX}, v{r+3}')
    def uchk(hf,r):
        rd=lambda iss: iss(f'ds_read_b128 {V(r,4)}, v{vUC} offset:{2048*hf}')
        return [('s',lambda: vm.wait(('gu',hf))),('M',lambda: rd(lambda s: lg.issue(s,'ck')))]+[('s',lambda: None)]*5+[('s',lambda: lg.wait('ck'))]+mx4(r)+[('v',retry(lambda: gather_u(hf,a),range(r,r+4),vMX,lambda: rd(a)))]
    def bchk(hf): g=GB+4*hf; return [('s',lambda: vm.wait(('gb',hf)))]+mx4(g)+[('v',retry(lambda: gather_b(hf,a),range(g,g+4),vMX))]
    ident()
    if lay==0: scal()
    have={('A',s_,q,0):F+16*s_+4*q for s_ in range(3) for q in range(4) if 4*s_+q<11}
    if lay==1 and opt['hv']:
        rs=[84,88,92,96,100,112,116,120,60,64,68]; have=dict(zip(have,rs))
        for u,r in have.items():
            if r>83:
                for x in ld(u,r): lg.issue(x)
    phase_in()
    if lay==0:
        for n in range(2): gather_b(n,lambda s: vm.issue(s,('gb',n)))
        if opt['htouch']==6: htouch()
        if not opt['r2s']: consume(R2,'r2',t+4)
    for u,r in have.items():
        if not(lay==1 and opt['hv'] and r>83):
            for x in ld(u,r): lg.issue(x)
    if lay==1:
        for x in chain(0,uchk(0,t)): x[2]()
    else:
        vm.wait('xid')
        a(f'''v_cmp_ne_u32 vcc, s{sXCC}, v{vXID}
        s_nop 1
        s_cmp_eq_u64 vcc, 0
        s_cselect_b32 s{sLOC}, {0 if opt['forceglobal'] else 1}, 0
        s_xor_b32 s{xG1}, s{xG}, {MB}''')
    ts(6)
    KEEP=[(0,3,4,7),(1,2,5,6)]
    lg.drain(); barrier(); ts(7)
    l1=a.label('tkh1'); l2=a.label('tkhj')
    a(f's_cmp_lg_u32 s{sKH}, 0\ns_cbranch_scc1 {l1}')
    sv=save()
    for kh in range(2):
        restore(sv)
        keep=KEEP[kh]; send=KEEP[1-kh]
        allp=[(q,b) for q in range(8) for b in range(8-q)]
        up=list(range(8)); dn=up[::-1]
        PE=[p for p in allp if sum(p)<4]; PM=[p for p in allp if sum(p)>3 and p[1]<4]; PL=[p for p in allp if p[1]>3]
        def ph(P,s_,ep,qs,fin=0):
            t_=[(s_,q,b,ep) for q,b in sorted(P,key=lambda p:(qs.index(p[0]),p[1]))]
            return [x for x in t_ if x[1]+x[2] in send]+[x for x in t_ if x[1]+x[2] in keep] if fin else t_
        seq=sum([ph(PE,s_,0,dn,s_==3) for s_ in range(4)],[])
        if lay==0: seq+=ph(PM+PL,3,0,[3,2,1,0,4,5,6,7])+ph(PM+PL,2,1,dn)+ph(PM+PL,1,1,dn)
        elif opt['nm']==3: seq+=ph(PM,3,0,up)+ph(PM,2,1,dn)+ph(PM,1,1,dn)+ph(PL,1,1,dn)+ph(PL,2,2,dn)+ph(PL,3,2,dn)
        else: seq+=ph(PM,3,0,up)+ph(PM,2,1,dn)+ph(PL,2,1,dn)+ph(PL,3,2,dn)+ph(PM+PL,1,1,dn)
        seq+=ph(PM+PL,0,1,dn,1)
        seen=set(); mfs=[]; gates={}
        for s_,q,b,ep in seq:
            G=q+b; us=[('A',s_,q,ep),('B',s_,b,ep)]; c=V(acc+4*G,4)
            if G not in seen: seen.add(G); c='0'
            if lay==1 and b>3: gates[us[1]]='ul'
            mfs.append((lambda r,us=us,G=G,c=c: f'{MF} {V(acc+4*G,4)}, {V(r[us[0]],4)}, {V(r[us[1]],4)}, {c}',us))
        bm=lambda n: (lambda r: f'{MF} {V(acc+4*keep[n],4)}, {V(ID+4*(n&1),4)}, {V(GB+4*(n>>1),4)}, {V(acc+4*keep[n],4)}',[])
        mfs=mfs[:40]+[bm(0),bm(1)]+mfs[40:]+[bm(2),bm(3)]
        ns=148-2-13
        def xch(p,i):
            o=[(i+2+2*(n&1),'M',lambda n=n: lg.issue(f'ds_write_b128 v{vEX}, {V(acc+4*send[n],4)} offset:{kh*4096+n*1024}','xw')) for n in (2*p,2*p+1)]
            o.append((i+7,'s',lambda: (lg.wait('xw'),barrier())[0]))
            return o+[(i+7,'M',lambda n=n: lg.issue(f'ds_read_b128 {V(acc+4*send[n],4)}, v{vEX} offset:{(1-kh)*4096+n*1024}',('ex',n))) for n in (2*p,2*p+1)]
        def outp(p):
            d=acc+4*send[2*p]; o=[('s',lambda: lg.wait(('ex',2*p+1)))]; tx=''
            for e in range(2):
                g=acc+4*keep[2*p+e]; r=acc+4*send[2*p+e]
                tx+=''.join(f'v_add_f32 v{r+k}, v{r+k}, v{g+k}\n' for k in range(4)) if p==0 else ''.join(f'v_pk_add_f32 {V(r+k,2)}, {V(r+k,2)}, {V(g+k,2)}\n' for k in (0,2))
                tx+=f'v_cvt_pk_bf16_f32 v{d+2*e}, v{r}, v{r+1}\nv_cvt_pk_bf16_f32 v{d+2*e+1}, v{r+2}, v{r+3}\n'
            tx+=f'v_permlane16_swap_b32 v{d}, v{d+2}\nv_permlane16_swap_b32 v{d+1}, v{d+3}\n'+(f'v_or_b32 v{d}, 1, v{d}' if lay else f'v_and_b32 v{d}, -2, v{d}')
            return o+FV(0,tx)+[('m',lambda: vm.issue(f'buffer_store_dwordx4 {V(d,4)}, v{vXS}, {S(rWS,4)}, s{sT+5} offen offset:{2048*p} sc1','x1st'))]
        ch=[xch(0,35),chain(48,outp(0),0.4,opt['xo']),xch(1,ns),chain(opt['xe' if lay else 'xe0'],[('M',xissue(x,vXC)) for x in range(8)],opt['xesp'])]
        if lay==0:
            ch.append([(36,'s',lambda: vm.wait(('gb',0)),39),(47,'s',lambda: vm.wait(('gb',1)))])
            ch.append(chain(opt['cv0'],[('M',f) for f in issue_items(R3,'r3',vV1,vV2,True)],opt['cvsp']))
            if opt['r2s']:
                assert opt['cv0']>43
                ch.append(chain(opt['r2s'],[('M' if k=='m' else k,f) for k,f in consume_items(R2,'r2',vNEG)],(36-opt['r2s'])/56,37))
            if opt['f0'] and opt['nf']<5: ch.append(chain(1,fill_addr(),1)+chain(opt['f0'],fill_st()[opt['nf']:],opt['fsp']))
            if opt['w2t']:
                def w2t(k): a(f's_and_b32 s{sT+6}, s{sCP}, 31\ns_lshl2_add_u32 s{sT+6}, s{sT+6}, s{sW}\ns_mul_i32 s{sT+6}, s{sT+6}, {86*128}\ns_addk_i32 s{sT+6}, {k*43*128}'); vm.issue(f'buffer_load_dword v{vJ0}, v{vTCH}, {S(rW2,4)}, s{sT+6} offen')
                ch.append(chain(opt['w2t'],FV(0,f'v_min_u32 v{vTCH}, 42, v{vLANE}\nv_lshlrev_b32 v{vTCH}, 7, v{vTCH}')+[('M',lambda: w2t(0))]+[('s',lambda: None)]*opt['w2s']+[('M',lambda: w2t(1))],1))
        else:
            ul=opt['ul']
            ch.append([(ul,'M',lambda: gather_u(1,lambda s: vm.issue(s,('gu',1)))),(opt['bl'],'M',lambda: gather_b(1,lambda s: vm.issue(s,('gb',1))))])
            ch.append(chain(26,bchk(0),1,39)+chain(opt['xe']-8,bchk(1),1,144))
            ch.append(chain(ul+opt['ulw'],uchk(1,GB)+[('s',lambda: (barrier(),'ul')[1])],1))
        late={acc+4*k:64 for k in range(4)}
        pipeline(mfs,ld,lg,[F+4*k for k in range(16)]+list(late),opt['cv_ahead'],fill=merge(*ch),gates=gates,pre=4,late=late,have=have,mark='cv')
        for x in chain(0,outp(1)): x[2]()
        if kh==0: a(f's_branch {l2}\n{l1}:')
    a(f'{l2}:'); lg.reset(); ts(8)

def loc_store(text):
    if LAY[0]==0 and not opt['htouch']: vm.issue(text+' sc1'); return
    lq=a.label('hs'); le=a.label('he')
    a(f's_cmp_eq_u32 s{sLOC}, 0\ns_cbranch_scc1 {lq}'); vm.issue(text); a(f'{le}:')
    cold.append(lambda: a(f'{lq}:\n{text} sc1\ns_branch {le}'))

vL=143; TV=vW+84
def hload(u,rg):
    if u[0]=='o':
        return [f's_add_u32 s{sT+14}, s{gO}, {u[1]*49152+(2*(u[2]-8)+e)*8192}\nbuffer_load_dwordx4 {V(rg+4*e,4)}, v{vL}, {S(rWS,4)}, s{sT+14} offen sc1' for e in range(2)]
    r,ks=u
    return [f's_add_u32 s{sT+14}, s{TH[r&1][ks>>1]}, {(r>>1)*131072+(ks&1)*8192}\nbuffer_load_dwordx4 {V(rg,4)}, v{vL}, {S(rWS,4)}, s{sT+14} offen sc1']
def hflag(val,r):
    def f():
        exec_set(1,0); loc_store(f'buffer_store_dword v{r}, v{vL}, {S(rWS,4)}, s{sHF} offen'); exec_all()
    return FV(0,f'v_mov_b32 v{r}, {val}')+[('s',lambda: vm.wait('hst')),('m',f)]
def hpoll(val,r,gap,name):
    pl=f'buffer_load_dword v{r+1}, v{r}, {S(rWS,4)}, s{gF} offen sc1'
    lr=a.label('hr'); lb=a.label('hb'); tst=f'v_cmp_gt_u32 vcc, {val}, v{r+1}\ns_cbranch_vccnz {lr}'
    cold.append(lambda: a(f'{lr}:\ns_sub_u32 s{sSPIN}, s{sSPIN}, 1\ns_cbranch_scc1 L_bail\n{pl}\ns_waitcnt vmcnt(0)\n{tst}\ns_branch {lb}'))
    return FV(0,f'v_and_b32 v{r}, 7, v{vLANE}\nv_lshlrev_b32 v{r}, 2, v{r}')+[('m',lambda: vm.issue(pl,'hp'))]+[('s',lambda: None)]*gap+[('s',lambda: vm.wait('hp')),('v',lambda: (a(f'{tst}\n{lb}:'),name)[1])]
def g1(lay):
    acc=vW; F=vW+48; vXD=vW+80; vCK=vW+81; mx=vW+82; vM=vW+83; tv=TV; m=vW+116; vW2=vW+122
    a(f'''v_mov_b32 v{vXD}, v{vXC}
    v_lshlrev_b32 v{vL}, 4, v{vLANE}
    v_add_u32 v{vCK}, s{xL}, v{vL}
    v_lshlrev_b32 v{vM}, 2, v{vLANE}
    v_and_b32 v{vM}, 60, v{vM}
    v_add_u32 v{vM}, {STAT}, v{vM}''')
    def chk_items(c):
        x0,x1=XCH[c]; n=x1-x0
        rd=lambda k,iss: iss(f'ds_read2st64_b32 {V(tv+2*k,2)}, v{vCK} offset0:{x0*16+8*k} offset1:{x0*16+8*k+4}')
        if lay: red=f'v_and_b32 v{tv}, v{tv}, v{tv+1}\nv_bitop3_b32 v{mx}, v{tv}, v{tv+2}, v{tv+3} bitop3:0x7f\nv_or_b32 v{mx}, -2, v{mx}'
        else: red=f'v_or3_b32 v{tv}, v{tv}, v{tv+1}, -2\nv_or3_b32 v{mx}, v{tv}, v{tv+2}, v{tv+3}'
        tst=retry(lambda: [xdma(x,a,vXD) for x in range(x0,x1)],None,mx,lambda: [rd(k,a) for k in range(2)],red)
        it=[('s',lambda: vm.wait(('x',c)))]+[('m',lambda k=k: rd(k,lambda s: lg.issue(s,'ck'))) for k in range(2)]+[('s',lambda: None)]*9+[('s',lambda: lg.wait('ck'))]+FV(0,red)
        return it+[('v',lambda: (tst(),barrier(),f'c{c}')[2])]
    if lay==0:
        a(f'v_mov_b32 v{vW2}, v{vV2}')
        ng=tv+24; ad=tv+28
        late=FV(0,a2_vaddr(ad,ad+1)+f'\nv_bfe_u32 v{ad+1}, v{vLANE}, 3, 1\nv_and_b32 v{ad+2}, 0x70, v{vL}\nv_lshl_add_u32 v{ad+1}, v{ad+1}, 12, v{ad+2}\n'+'\n'.join(f'v_mov_b32 v{ng+k}, -1' for k in range(4)))
        st=lambda v,sb,off: (a(f's_add_u32 s{sT+8}, s{sb}, {off}'),vm.issue(f'buffer_store_dwordx4 {V(ng,4)}, v{v}, {S(rWS,4)}, s{sT+8} offen sc1'))
        for k in range(4): late.append(('m',lambda k=k: st(ad,sA2S,8192*(k&1)+MB*(k&2))))
        for p in range(2): late.append(('m',lambda p=p: st(vL,sX1F,2*MB+1024*p)))
        late.append(('m',lambda: (exec_set(0xffff,0),st(ad+1,sPS,0),exec_all())))
        if opt['f0']: late=late[4:7]
        for k in range(4): a(f'v_mov_b32 v{vW+k}, 0x3b003b00')
        cs=[(lambda r,ks=ks,t=t: f'{MF} {V(vCS+4*t,4)}, {W1R(t,ks)}, {V(vW,4)}, '+('0' if ks==0 else V(vCS+4*t,4)),[]) for ks in range(16) for t in range(3)]
        r4=issue_items(R4,'r4',0,vW2,not opt['mix'])
        fl=chain(1,consume_items(R3,'r3',m)+late[:opt['g1f']]+[('s',lambda: lg.wait(('c','r3')))],0,36)
        fl+=chain(36,FS(0,f's_andn2_b32 s{sRX}, 0x4000, s{gX}\ns_add_u32 s{sRX}, s{sRX}, s{xL}')+[('m',f) for f in r4[:opt['xpre']]]+late[opt['g1f']:])
        for k in range(4): fl+=FS(36,f's_and_b32 s{sT+3}, s{sRB}, {opt["rot2"]}\ns_xor_b32 s{sT+3}, s{sT+3}, {k}\ns_lshl_b32 s{sT+3}, s{sT+3}, 14\ns_add_u32 s{TH[0][k]}, s{gH}, s{sT+3}\ns_add_u32 s{TH[1][k]}, s{gH+1}, s{sT+3}')
        pipeline(cs,None,lg,[],0,fill=[(x[0],'v')+x[2:] for x in fl],pre=0)
    ts(9)
    for x in chain(0,chk_items(0)): x[2]()
    ts(10)
    assert opt['xpre']%4==0 and (opt['mix'] or opt['r4a']+(16-opt['xpre'])*opt['g1sp']<=opt['xl0']) and opt['xl0']+8*opt['xlsp']<=opt['r5a'] and opt['cv0']+20*opt['cvsp']<=opt['xe0']
    def ld(u,r):
        ks,lt=u
        return [f'ds_read_b64_tr_b16 {V(r+2*hh,2)}, v{vXT+(lt&1)} offset:{(lt>>1)*32768+ks*2048+hh*1024}' for hh in range(2)]
    l3=a.label('g1w3'); lj=a.label('g1j')
    a(f's_cmp_eq_u32 s{sW}, 3\ns_cbranch_scc1 {l3}')
    sv=save()
    for var in range(2):
        restore(sv)
        def mk(ks,lt,t):
            def f(r):
                x=V(r[(ks,lt)],4); A=x if (var==1 and t==2) else W1R(t,ks); d=V(acc+16*t+4*lt,4)
                return f'{MF} {d}, {A}, {x}, '+('0' if ks==0 else d)
            return (f,[(ks,lt)])
        mfs=[mk(ks,lt,t) for hf in range(2) for ks in range(16) for lt in (2*hf,2*hf+1) for t in range(3) if not(var==1 and t==2 and hf==1 and ks>=10)]
        if var==1: mfs+=[mk(ks,lt,2) for ks in range(10,16) for lt in (2,3)]
        gates={(2*(x&7)+e,2*(x>>3)+l):f'c{c}' for c in range(1,4) for x in range(*XCH[c]) for e in range(2) for l in range(2)}
        def means(hf,i):
            def pubS():
                exec_set(0,'0xffff0000')
                for lt in (2*hf,2*hf+1): lg.issue(f'ds_write_b32 v{vM}, v{acc+16+4*lt} offset:{64*lt}','sw')
                for k in range(4): a(f'v_mov_b64 {V(acc+16+8*hf+2*k,2)}, 0')
                if lay==0 and hf==0:
                    for k in range(2): a(f'v_mov_b64 {V(vCS+4+2*k,2)}, 0')
                exec_all()
            o=[(i,'m',pubS),(i+3,'s',lambda: (lg.wait('sw'),barrier())[0])] if var else [(i+3,'s',barrier)]
            return o+[(i+3,'m',lambda: lg.issue(f'ds_read2_b32 {V(m,2)}, v{vM} offset0:{32*hf} offset1:{32*hf+16}','m'))]
        def epi(hf):
            o=[('s',lambda: lg.wait('m'))]
            def cvt(tt,lt,p):
                r=acc+16*tt+4*lt; c=vCS+4*tt
                if hf: tx=''.join(f'v_pk_fma_f32 {V(r+h,2)}, {V(m,2)}, {V(c+h,2)}, {V(r+h,2)} op_sel:[{lt&1},0,0] op_sel_hi:[{lt&1},1,1] neg_lo:[1,0,0] neg_hi:[1,0,0]\n' for h in (0,2))
                else: tx=''.join(f'v_fma_f32 v{r+h}, -v{m+(lt&1)}, v{c+h}, v{r+h}\n' for h in range(4))
                tx+=''.join(f'v_cvt_pk_bf16_f32 v{p+h}, v{r+2*h}, v{r+2*h+1}\n' for h in range(2))+''.join(f'v_pk_max_i16 v{p+h}, v{p+h}, 0\n' for h in range(2))
                o.extend(FV(0,tx))
            def store(p,sb,off):
                def f(): a(f's_add_u32 s{sT+8}, s{sb}, {off}'); loc_store(f'buffer_store_dwordx4 {V(p,4)}, v{vL}, {S(rWS,4)}, s{sT+8} offen'); vm.tags['hst']=len(vm.ops)
                o.append(('m',f))
            for lt in (2*hf,2*hf+1):
                p=acc+4*lt; cvt(0,lt,p); cvt(1,lt,p+2); store(p,hS,lt*65536)
            q=acc+32+8*hf
            if var==0:
                cvt(2,2*hf,q); cvt(2,2*hf+1,q+2); l=a.label('nosw')
                o.append(('v',lambda: a(f's_cmp_eq_u32 s{hW}, 0\ns_cbranch_scc1 {l}\nv_swap_b32 v{q}, v{q+2}\nv_swap_b32 v{q+1}, v{q+3}\n{l}:')))
                store(q,hO,hf*49152)
            else:
                o.extend(FV(0,''.join(f'v_cndmask_b32 v{q+e}, v{q+e}, v{q+e+1+k}, {S(MK[k],2)}\n' for k in range(3) for e in (0,4))))
                def pubQ():
                    exec_set('0x00f0000f','0xf0000f00')
                    for e in range(2): lg.issue(f'ds_write_b32 v{vM}, v{q+4*e} offset:{256+128*hf+64*e}')
                    exec_all()
                o.append(('m',pubQ))
            return o
        pl=[('m',lambda ks=ks: vm.issue(hload((0,ks),tv+4*ks)[0],('f',(0,ks)))) for ks in range(8)]
        he=opt['he']; hp=opt['hp']; hf=opt['hf']
        ch=[chain(opt['ch1'],chk_items(1),0.7), chain(opt['xl0'],[('m',xissue(x,vXD)) for x in range(8,16)],opt['xlsp']),
            chain(opt['xl1'],chk_items(2),0.7), chain(opt['xl2'],chk_items(3),0.7,hf-1),
            means(0,he), chain(he+9,epi(0),0.4,hf-8), chain(hf,hflag(2*lay+1,mx),1), chain(hp,hpoll(2*lay+1,vCK,opt['hlw'],None),1),
            chain(hp+opt['hlw']+6,pl[:opt['npl']],3), means(1,181)]
        if lay==0:
            ch.append([(1,'m',lambda: vm.issue(f'buffer_load_dword v{ad}, v{ad+1}, {S(rWS,4)}, s{sPS} offen sc1'))])
            ch.append(chain(opt['r4a'],[('m',f) for f in r4[opt['xpre']:]],opt['g1sp']))
            ch.append(chain(opt['r4c'],[('M' if k=='m' else k,f) for k,f in consume_items(R4,'r4',m+1)]+[('s',lambda: lg.wait(('c','r4')))],1,opt['r5a']-1))
            ch.append(chain(opt['r5a'],[('m',f) for f in issue_items(R5[:4],'r5',0,vW2,True)],opt['r5sp'])+chain(max(he+4,opt['r5a']+16*opt['r5sp']),[('m',f) for f in issue_items(R5[4:],'r5',0,vW2,True)],opt['r5sp']))
        xs={acc+16*t+4*l:hf-7 for t in range(3) for l in range(2)} if var else {}
        pipeline(mfs,ld,lg,[F+4*k for k in range(8)]+list(xs),opt['g1_ahead'],fill=[(x[0],'M' if x[1]=='m' else x[1])+x[2:] for x in merge(*ch)],gates=gates,pre=6,late=xs,mark='g1')
        ts(11)
        e1=epi(1); rest=pl[opt['npl']:]
        for n,x in enumerate(rest[::-1]): e1.insert(25-n*(24//len(rest)),x)
        for x in chain(0,e1): x[2]()
        if var==0: a(f's_branch {lj}\n{l3}:')
        elif lay==0: a(arrive_b(mx,vCK))
    a(f'{lj}:'); ts(12)

def g2(layer,fast=0):
    acc=vW; vR=vW+32; vA=vW+33; vB=vW+34; vPS=vW+35; WA=vW+36; OD=vW+40; vO=140; vPL=141; tmp=142; DV=vXT+2
    SET=[(84,92,100,136),(OD,OD+8,OD+16,OD+20)]
    mfs=[]; fixed={}
    M=lambda t,tag=None: ('m',lambda: lg.issue(t,tag))
    W=lambda tag: ('s',lambda: lg.wait(tag))
    BAR=lambda tag: ('s',lambda: (lg.wait(tag),barrier())[0])
    NOP=lambda n: [('s',lambda: None)]*n
    seen=set(); pos={}; end={}
    for pr in range(2):
        n=opt['dfl' if pr else 'dfe']; A4=range(4)
        order=[(0,k,A4) for k in range(10)]+[(1,8,A4),(0,10,A4),(1,9,A4),(1,0,A4),(1,10,A4)]+[(1,k,A4) for k in range(1,8-n)]+[(1,k,d) for d in ((0,1),(2,3)) for k in range(8-n,8)]
        for e,ks,dts in order:
            r=2*pr+e; pos.setdefault((r,ks),len(mfs))
            if ks<8: u=(r,ks); off=0
            else: u=('o',pr,ks); off=2 if e==0 else 0
            for dt in dts:
                def f(rg,r=r,ks=ks,dt=dt,u=u,off=off,z=r not in seen):
                    h=V(rg[u]+off,4); w=W2R(ks,dt); d=V(acc+16*(r&1)+4*dt,4)
                    A,B=(h,w) if layer==0 else (w,h)
                    if layer==0 and r==0 and ks>=6: lg.wait(('c5',ks))
                    return f'{MF} {d}, {A}, {B}, '+('0' if z else d)
                mfs.append((f,[u])); end[(r,dt>>1)]=len(mfs)
            seen.add(r)
    for pr in range(2):
        for ks in (8,9,10): fixed[('o',pr,ks)]=(OD+8*(ks-8), 0 if pr==0 else pos[(1,ks)]+4)
    ch=[]
    for pr in range(2):
        for ks in (8,9,10):
            o=(216 if fast and pr else OD)+8*(ks-8); ch.append(FV(pos[(2*pr,ks)]+4,f'v_mov_b32 v{o+2}, v{o+6}\nv_mov_b32 v{o+3}, v{o+7}',pos[(2*pr+1,ks)]-1))
    def put(pr,k): return FV(0,f'v_add_u32 v{vR}, s{gI+k}, v{vL}')+[M(f'ds_write_b128 v{vR}, {V(acc+8*k+4*d,4)} offset:{6144*pr+1024*d}','pw') for d in range(2)]
    def get(pr,k,r): return [M(f'ds_read_b128 {V(r+4*d,4)}, v{tmp} offset:{6144*pr+2048*k+1024*d}',('g',k)) for d in range(2)]
    def add(d,x,pk=0): return FV(0,''.join(f'v_pk_add_f32 {V(d+k,2)}, {V(d+k,2)}, {V(x+k,2)}\n' for k in range(0,8,2)) if pk else ''.join(f'v_add_f32 v{d+k}, v{d+k}, v{x+k}\n' for k in range(8)))
    if layer==0:
        t=f'''v_and_b32 v{vA}, 15, v{vLANE}
        v_lshlrev_b32 v{vO}, 1, v{vA}
        s_and_b32 s{sT+4}, s{gU}, 0x3c0
        v_add_u32 v{vO}, s{sT+4}, v{vO}
        v_bfe_u32 v{vB}, v{vLANE}, 2, 1
        v_xor_b32 v{vB}, s{sKH}, v{vB}
        v_lshlrev_b32 v{vB}, 5, v{vB}
        v_lshl_add_u32 v{vA}, v{vA}, 6, v{vB}
        v_lshrrev_b32 v{vB}, 4, v{vLANE}
        v_lshl_add_u32 v{vA}, v{vB}, 3, v{vA}
        v_lshlrev_b32 v{vB}, 4, v{vB}
        s_add_u32 s{sT+4}, s{gX}, {XT}
        v_add_u32 v{vA}, s{sT+4}, v{vA}
        v_and_b32 v{vPL}, 7, v{vLANE}
        v_lshlrev_b32 v{vPL}, 7, v{vPL}
        v_lshrrev_b32 v{vPS}, 3, v{vLANE}
        v_lshl_add_u32 v{vPL}, v{vPS}, 4, v{vPL}
        v_lshrrev_b32 v{vPS}, 2, v{vLANE}
        v_lshlrev_b32 v{vPS}, 3, v{vPS}'''
    else:
        t=f'''s_lshl_b32 s{sT+4}, s{sKH}, 5
        v_xor_b32 v{vA}, s{sT+4}, v{vXT}
        v_add_u32 v{vA}, s{gX}, v{vA}
        v_bfe_u32 v{vO}, v{vLANE}, 3, 1
        v_lshlrev_b32 v{vO}, 14, v{vO}
        v_and_b32 v{vB}, 7, v{vLANE}
        v_lshl_add_u32 v{vO}, v{vB}, 10, v{vO}
        v_bfe_u32 v{vB}, v{vLANE}, 4, 1
        v_lshl_add_u32 v{vO}, v{vB}, 5, v{vO}
        v_lshrrev_b32 v{vB}, 5, v{vLANE}
        v_lshl_add_u32 v{vO}, v{vB}, 4, v{vO}
        v_and_b32 v{vB}, 15, v{vLANE}
        v_lshlrev_b32 v{vB}, 2, v{vB}'''
    t+=f'\nv_lshl_add_u32 v{vB}, s{sKH}, 6, v{vB}\nv_add_u32 v{tmp}, s{gB}, v{vL}'
    nr=4 if layer==0 else 1; rw='b128' if layer==0 else 'b32'; tr="_tr_b16" if layer else ""
    def resid(hf):
        XF=SET[hf][1]
        o=[M(f'ds_read_b64{tr} {V(XF+4*d+2,2)}, v{vA} offset:{32768*hf+1024*d}','xr') for d in range(2)]+NOP(8)+[W('xr')]
        for x_ in (XF,XF+4): o+=FV(0,f'v_lshlrev_b32 v{x_}, 16, v{x_+2}\nv_and_b32 v{x_+1}, 0xffff0000, v{x_+2}\nv_lshlrev_b32 v{x_+2}, 16, v{x_+3}\nv_and_b32 v{x_+3}, 0xffff0000, v{x_+3}')
        return o
    def prep(hf):
        RS=(SET[0][2],WA)[hf]; Y=SET[0][3]
        o=[M(f'ds_read_{rw} {V(Y,nr)}, v{vB} offset:{STAT+128*hf}'),M(f'ds_read_{rw} {V(RS,nr)}, v{vB} offset:{STAT+256+128*hf}','st')]
        o+=NOP(8)+[W('st')]
        for f in (lambda i: f'v_mul_f32 v{Y+i}, {fhex(1/512)}, v{Y+i}\nv_fmamk_f32 v{RS+i}, v{RS+i}, {fhex(1/512)}, v{vEPS}', lambda i: f'v_fma_f32 v{RS+i}, -v{Y+i}, v{Y+i}, v{RS+i}',
                  lambda i: f'v_max_f32 v{RS+i}, v{RS+i}, v{vEPS}', lambda i: f'v_rsq_f32 v{RS+i}, v{RS+i}'):
            for i in range(nr): o+=FV(0,f(i))
        return o
    def out(src,d,srd,sb,off,sc,tag=None):
        tx=''.join(f'v_cvt_pk_bf16_f32 v{d+k}, v{src[2*k]}, v{src[2*k+1]}\n' for k in range(4))
        if layer==0: tx+=''.join(f'v_min_u32 v{d+k}, -2, v{d+k}\n' for k in range(4))
        tx+=f'v_permlane16_swap_b32 v{d}, v{d+2}\nv_permlane16_swap_b32 v{d+1}, v{d+3}'
        return FV(0,tx)+[('m',lambda: vm.issue(f's_add_u32 s{sT+4}, s{sb}, {off}\nbuffer_store_dwordx4 {V(d,4)}, v{vO}, {S(srd,4)}, s{sT+4} offen{sc}',tag))]
    D=lambda d,s,c,bm: f'v_add_f32_dpp v{d}, v{s}, v{s} {c} row_mask:0xf bank_mask:{bm}\n'
    def val(hf):
        P,x,RS,Y=SET[hf]; RS=(RS,WA)[hf]
        o=FV(0,''.join(f'v_fmac_f32 v{x+k}, v{P+k}, v{RS+(k&3)*(nr>1)}\n' for k in range(8)))
        if layer==1: return o+out(range(x,x+8),P,rOUT,gU,hf*MB,['',' sc1',' nt',' sc0 sc1'][opt['osc']])
        s_=P; q_=P+4; w=RS
        tx=''.join(f'v_add_f32 v{s_+i}, v{x+i}, v{x+4+i}\nv_mul_f32 v{q_+i}, v{x+i}, v{x+i}\n' for i in range(4))+''.join(f'v_fmac_f32 v{q_+i}, v{x+4+i}, v{x+4+i}\n' for i in range(4))
        tx+=''.join(D(r+i,r+i,'row_ror:8','0x3') for r in (s_,q_) for i in range(2))+''.join(D(r+i,r+i+2,'row_ror:8','0xc') for r in (s_,q_) for i in range(2))
        tx+=''.join(D(w+k,r,'row_half_mirror','0x5') for k,r in enumerate((s_,q_)))+''.join(D(w+k,r+1,'row_half_mirror','0xa') for k,r in enumerate((s_,q_)))
        tx+=''.join(D(w+k,w+k,c,'0xf') for c in ('quad_perm:[2,3,0,1]','quad_perm:[1,0,3,2]') for k in range(2))+''.join(f'v_min_u32 v{w+k}, -2, v{w+k}\n' for k in range(2))
        def st():
            a(f's_add_u32 s{sT+4}, s{sPS}, {4096*hf}'); exec_set('0x11111111','0x11111111')
            loc_store(f'buffer_store_dwordx2 {V(w,2)}, v{vPS}, {S(rWS,4)}, s{sT+4} offen'); exec_all(); vm.tags['pst']=len(vm.ops)
        return o+FV(0,tx)+[('m',st)]
    def psld(hf,iss,e): iss(f's_add_u32 s{sT+4}, s{gP}, {4096*hf}\nbuffer_load_dwordx4 {V(SET[hf][0]+4*e,4)}, v{vPL}, {S(rWS,4)}, s{sT+4} offen offset:{1024*e} sc1')
    def psget(hf): return [('m',lambda e=e: psld(hf,lambda s: vm.issue(s,'ps'),e)) for e in range(2)]
    def fin(hf):
        y,x,rr,Y=SET[hf]; qq=y+4
        tst=retry(lambda: [psld(hf,a,e) for e in range(2)],range(y,y+8),Y)
        o=[('s',lambda: vm.wait('ps'))]+FV(0,f'v_max3_u32 v{Y}, v{y}, v{y+1}, v{y+2}\nv_max3_u32 v{Y+1}, v{y+3}, v{y+4}, v{y+5}\nv_max3_u32 v{Y}, v{Y}, v{y+6}, v{y+7}\nv_max_u32 v{Y}, v{Y}, v{Y+1}')+[('v',tst)]
        tx=''.join(f'v_add_f32 v{y+k}, v{y+k}, v{y+4+k}\n' for k in range(4))
        tx+=''.join(D(y+k,y+k,c,'0xf') for c in ('quad_perm:[1,0,3,2]','quad_perm:[2,3,0,1]','row_half_mirror') for k in range(4))
        for f in (lambda e: f'v_mul_f32 v{y+2*e}, {fhex(-1/512)}, v{y+2*e}\nv_fmamk_f32 v{y+2*e+1}, v{y+2*e+1}, {fhex(1/512)}, v{vEPS}', lambda e: f'v_fma_f32 v{y+2*e+1}, -v{y+2*e}, v{y+2*e}, v{y+2*e+1}',
                  lambda e: f'v_max_f32 v{y+2*e+1}, v{y+2*e+1}, v{vEPS}', lambda e: f'v_rsq_f32 v{rr+e}, v{y+2*e+1}', lambda e: f'v_mul_f32 v{qq+e}, v{y+2*e}, v{rr+e}',
                  lambda e: f'v_mov_b32 v{rr+2+e}, v{rr+e}\nv_mov_b32 v{qq+2+e}, v{qq+e}'):
            tx+=f(0)+'\n'+f(1)+'\n'
        tx+=''.join(f'v_mov_b32_dpp v{r+e}, v{r+2+e} row_ror:8 row_mask:0xf bank_mask:0xc\n' for r in (rr,qq) for e in range(2))
        tx+=''.join(f'v_mov_b32_dpp v{r+2+e}, v{r+2+e} row_ror:8 row_mask:0xf bank_mask:0x3\n' for r in (rr,qq) for e in range(2))
        u=[y,y+1,y+2,y+3,Y,Y+1,Y+2,Y+3]
        tx+=''.join(f'v_fma_f32 v{u[k]}, v{x+k}, v{rr+(k&3)}, v{qq+(k&3)}\n' for k in range(8))
        o+=FV(0,tx)+out(u,qq,rWS,sA2S,2*MB*hf,' sc1','ust')
        return o+FV(0,''.join(f'v_fmac_f32 v{x+k}, v{u[k]}, v{DV+(k>>2)}\n' for k in range(8)))+out(range(x,x+8),x,rWS,sA2S,2*MB*hf+8192,' sc1')
    hl=opt['hl']; P0=SET[0][0]; P1=SET[1][0]
    ch.append(chain(1,FX(0,t),1.5,45))
    ch.append(chain(opt['hf2'],hflag(2*layer+2,vR),1)); ch.append(chain(hl,hpoll(2*layer+2,SET[0][3],opt['hlw'],'hl'),1,64))
    lim={84+4*k:60 for k in range(5)}; late={}
    if layer==0:
        c5=[('M' if k=='m' else k,f) for k,f in consume_items(R5,'r5',WA-1)]; k=0
        for ks in range(6,11):
            n=9+(4 if ks in (6,10) else 0); ch.append(chain(int(k*.7),c5[k:k+n]+[('s',lambda ks=ks: lg.tags.__setitem__(('c5',ks),lg.tags[('c','r5')]))],.65,pos[(0,ks)]-2)); k+=n
        k=pos[(0,10)]
        dv=[('m',lambda d=d: vm.issue(f'global_load_ushort v{DV+d}, v{vO}, {S(sDS,2)} offset:{32*d}','dv')) for d in range(2)]
        ch.append(chain(k+2,[('s',barrier)]+dv+FV(0,a2_vaddr(vO,WA)),0.5,end[(0,1)]+2))
    e0=end[(0,1)]+3; e1=end[(1,0)]+2; e2=end[(2,1)]+2; e3=end[(3,0)]+2
    ch.append(chain(e0,put(0,0)+put(0,1)+NOP(3)+[BAR('pw')]+NOP(max(0,52-e0))+get(0,0,P0)+get(0,1,acc)+NOP(5)+[W(('g',1))]+add(P0,acc),1,87))
    ch.append(chain(e0+14,prep(0)+resid(0),0.4)); ch.append(chain(opt['pr1'],prep(1),0.5,opt['psl']+opt['psw']-1))
    ch.append(chain(e1,put(0,2)+NOP(3)+[BAR('pw')]+get(0,2,acc+16)+NOP(max(0,end[(1,1)]-e1-7)),1)+chain(max(e1+9,end[(1,1)]+2),add(P0,acc+24)+[W(('g',2))]+add(P0,acc+16),0.5,pos[(3,8)]-1))
    ch.append(chain(max(e1+9,end[(1,1)]+2)+9,val(0),0.4))
    ch.append(chain(e2,put(1,0)+put(1,1)+NOP(3)+[BAR('pw')]+get(1,0,P1)+get(1,1,acc)+NOP(5)+[W(('g',1))]+add(P1,acc),1))
    ch.append(chain(pos[(3,9)]+5,resid(1),0.5))
    ch.append(chain(e3,put(1,2)+NOP(3)+[BAR('pw')]+get(1,2,acc+8),1,175))
    if layer==0:
        def pb():
            l=a.label('pb'); a(f'''s_cmp_lg_u32 s{sW}, 3
            s_cbranch_scc1 {l}
            s_and_b32 s{sT+2}, s2, 15
            s_lshl_b32 s{sT+2}, s{sT+2}, 11
            s_add_u32 s{sT+2}, s{sT+2}, {CB}
            v_and_b32 v{vA}, 15, v{vLANE}
            v_lshlrev_b32 v{vA}, 7, v{vA}
            buffer_load_dword v{vW+1}, v{vA}, {S(rWS,4)}, s{sT+2} offen sc1
            {l}:''')
        ch.append(chain(opt['psl'],[('s',lambda: vm.wait('pst'))][:opt.get('psd',1)]+psget(0)+FV(0,''.join(f'v_lshlrev_b32 v{DV+d}, 16, v{DV+d}\n' for d in range(2))),1))
        ch.append(chain(opt['psl']+opt['psw'],fin(0),0.3))
    gates={u:'hl' for f,us in mfs for u in us if (u[1] if u[0]=='o' else u[0]>>1)}
    slots=[TV+4*k for k in range(8)]+list(lim)+([144+4*k for k in range(8+10*fast)] if layer else [])
    lastu=[u for f,us in mfs for u in us][-1]
    def hl2(u,r):
        L=hload(u,r)
        if fast and u==lastu:
            l=a.label('wb'); e=a.label('we')
            L.append(f's_and_b32 s{sT+4}, s{sCP}, 31\ns_cbranch_scc1 {l}\nbuffer_wbl2 sc1\ns_branch {e}\n{l}:\nbuffer_load_dword v255, v{vL}, {S(rWS,4)}, s{gF} offen\n{e}:')
        return L
    if fast:
        for ks in (8,9,10): fixed[('o',1,ks)]=(216+8*(ks-8),0)
    pipeline(mfs,hl2,vm,slots,200,fill=[(x[0],'M' if x[1]=='m' else x[1])+x[2:] for x in merge(*ch)],fixed=fixed,limited=lim,late=late,gates=gates,pre=opt['g2pre'],pace=opt['fp'] if fast else opt['g2pace'],have={(0,k):TV+4*k for k in range(8)},mark='g2',age=opt['age2'])
    ts(14)
    if layer==0: pb()
    for x in chain(0,add(P1,acc+24,1)+[W(('g',2))]+add(P1,acc+8,1)+val(1)): x[2]()
    ts(15)
    if layer==1: return
    a(f'v_mov_b32 v{vW}, v{vA}'); gather_addr(1)
    def pin1():
        vm.drain(); w3poll(vW+1,f'buffer_load_dword v{vW+1}, v{vW}, {S(rWS,4)}, s{sT+2} offen sc1',32,None)
        for x in psget(1): x[1]()
        barrier(); ts(22)
        f1=chain(0,fin(1)); n=6*opt['gaf']
        for x in f1[:n]: x[2]()
        gather_u(0,lambda s: vm.issue(s,('gu',0))); gather_b(0,lambda s: vm.issue(s,('gb',0)))
        for x in f1[n:]: x[2]()
        ts(5)
    return pin1

vx,pin=p0()
conv(0,vx,pin); stop('conv')
g1(0); stop('g1')
pin1=g2(0); stop('g2')
ts_park(); LAY[0]=1
conv(1,None,pin1); g1(1)
if opt['wb']:
    a(f's_cmp_eq_u32 s{sW}, 0\ns_cbranch_scc1 L_fast'); sv=save(); g2(1); a('s_branch L_fj\nL_fast:'); restore(sv); g2(1,1); a('L_fj:')
else: g2(1)
ts_dump(256); ts_dump(0)
if opt['probe']>=0:
    if opt['only']>=0: a(f's_cmp_lg_u32 s2, {opt["only"]}\ns_cbranch_scc1 L_end')
    a('''s_add_u32 s101, s101, 10000
    L_probe:
    s_memrealtime s[96:97]
    s_waitcnt lgkmcnt(0)
    s_sub_u32 s96, s96, s101
    s_cmp_lt_i32 s96, 0
    s_cbranch_scc1 L_probe''')
a('L_end:\ns_endpgm\nL_cold:')
for c in cold: c()
a(f'''L_bail:
s_mov_b64 exec, -1
v_mov_b32 v{vW}, 32
v_mov_b32 v{vW+1}, 1
global_atomic_add v{vW}, v{vW+1}, {S(sDBG,2)} sc1
s_endpgm''')
lines=fix_hazards([l.replace('@CODEMAX@','L_cold-L_pc') for l in a.lines])
n=NAME+'_kernel'
def wrap(lines):
    hdr=open('cdna_kernels/'+NAME+'.s.ref').read().split('; Override')[0]
    return hdr+f'; @launch grid=(256,1,1) block=(256,1,1) lds={LDS_END}\n.amdgcn_target "amdgcn-amd-amdhsa--gfx950"\n.text\n'+khead(n)+'\n'.join(lines)+'\n.section .rodata,"a"\n'+kdesc(n,512,102,256)
lines=add_warm(lines,wrap,sW) if opt['warm'] else [l for l in lines if '@WARM@' not in l]
sys.stdout.write(wrap(lines))
```

```python
import sys, math
from asmlib import *
opt=dict(ts=0, stop='', warm=1, forceglobal=0, probe=-1, play=0, early=0, only=-1, cv_ahead=26, g1_ahead=18, nm=3, ch1=20, ch2=55, spr1=22, spr2=6, g2pre=2, g2pace=4, touch=3, htouch=6, cvsp=4, g1sp=3, nor1=0, xpre=4, now=0, basei=40, cv0=40, tpos=0, g1f=11, xl0=40, xlsp=3, xl1=80, xl2=118, he=98, hp=168, hl=46, hlw=14, dfe=0, dfl=7, psl=140, psw=24, r4a=2, r4c=30, r5a=74, xe=128, ul=38, ulw=38, cvm=1, psp=30, c0=4, st1=0, st2=5, wide=0, ep=0, r2s=0, osc=0, wb=0, fp=1, bl=64, npl=3, hf2=8, bud=2, age=9, age2=30, lag=6, w2t=0, w2s=10, xesp=2, xo=58, hf=146, rot=0, rot2=0, r5sp=5, f0=90, slp=0, w3x=1, hv=0, nf=2, fp0=5, fsp=8, xe0=138, mix=0, gaf=1, pr1=124)
for s in sys.argv[1:]:
    k,v=s.split('='); opt[k]=int(v) if v.lstrip('-').isdigit() else v
TS=opt['ts']; STOP=opt['stop']
MB=1<<20
A2=0; A2S=6*MB; X1=10*MB; HB=0; PS=14*MB; HF=PS+262144; XID=HF+4096; CB=XID+32768; WSZ=15*MB; DUMP=20*MB
KC=0; KCH=8320; KCP=4160
U=16640; UCH=4608
STAT=25856
XT=27648; RED=XT+65536; LDS_END=163840
TAB=XT; TROW=528; TCH=53*TROW; KT=XT+2*TCH; KTCH=1408
EXCH=XT+32768
RG12=(XT+58880,19328); RGX=(XT+49152,4096); RG45=(RED,17664)
sX=4;sLA=6;sAI=8;sCR=10;sCI=12;sLD=14;sDS=16;sW1=20;sW2=22;sOUT=24;sDBG=26;sWS=28
rWS=32;rW1=36;rW2=40;rOUT=44
sW=48;sCP=49;sRB=50;sJ=51;sLAY=52;sLOC=53;sOB=54;sXCC=55;sSPIN=56;sKH=57;sD0=58;sD1=60
sR12=62;sRX=63;sR45=64;sW1B=65;sW2B=66;sCH=67
rX=68
gH=4;gO=6;gI=7;gB=10;gF=11;hS=12;hO=13;hW=14;xG=15;xL=20;gX=21;gU=22;gP=23;MK=(24,68,70)
T1=(94,95,100,101); T2=(87,88,98,99); TH=((94,95,100,4),(101,18,54,5)); xG1=52
sT=72
def S(n,k=1): return f's{n}' if k==1 else f's[{n}:{n+k-1}]'
def V(n,k=1): return f'v{n}' if k==1 else f'v[{n}:{n+k-1}]'
vTID=0;vLANE=1;vCS=2;vXT=14;vTS=18;vEPS=19;vW=20
def W1R(t,ks,k=4,o=0):
    i=(t*16+ks)*4+o
    return (f'a[{176+i}:{176+i+k-1}]' if k>1 else f'a{176+i}') if i<80 else V(144+i-80,k)
def W2R(ks,dt,k=4,o=0):
    i=(ks*4+dt)*4+o
    return f'a[{i}:{i+k-1}]'
MF='v_mfma_f32_16x16x32_bf16'
a=Asm(); vm=Ctr(a,'vmcnt',63); lg=Ctr(a,'lgkmcnt',15)
LAY=[0]
def ts(i):
    if opt['probe']>=0:
        if i==0 and opt['early']: a('s_mov_b32 s100, s96\ns_mov_b32 s101, s96')
        elif i==0: a('s_memrealtime s[96:97]\ns_waitcnt lgkmcnt(0)\ns_mov_b32 s100, s96\ns_mov_b32 s101, s96'); lg.reset()
        elif i==opt['probe']:
            l=a.label('pr')
            if LAY[0]==opt['play']: a('s_memrealtime s[96:97]\ns_waitcnt lgkmcnt(0)\ns_mov_b32 s101, s96')
    if TS==1 or (TS and (i==0 or (i==15 and LAY[0]))): a(f's_memrealtime s[96:97]\ns_waitcnt lgkmcnt(0)\nv_writelane_b32 v{vTS}, s96, {i}\nv_writelane_b32 v{vTS}, s{sSPIN}, {32+i}'); lg.reset()
def ts_park():
    if TS==1: a(f'v_lshlrev_b32 v143, 2, v0\nds_write_b32 v143, v{vTS} offset:{STAT+512}\ns_waitcnt lgkmcnt(0)')
def ts_dump(slot):
    if TS==1 or (TS and slot):
        if slot==0: a(f'v_lshlrev_b32 v143, 2, v0\nds_read_b32 v{vTS}, v143 offset:{STAT+512}\ns_waitcnt lgkmcnt(0)')
        a(f'''s_lshl_b32 s96, s2, 2
        s_add_u32 s96, s96, s{sW}
        s_mul_i32 s96, s96, 768
        s_add_u32 s96, s96, {slot}
        s_add_u32 s98, s{sWS}, {DUMP}
        s_addc_u32 s99, s{sWS+1}, 0
        v_lshl_add_u32 v143, v{vLANE}, 2, s96''')
        vm.issue(f'global_store_dword v143, v{vTS}, s[98:99]')
def exec_set(lo,hi):
    a.hold=100; a(f's_mov_b32 exec_lo, {lo}\ns_mov_b32 exec_hi, {hi}')
def exec_all():
    a('s_mov_b64 exec, -1'); a.hold=0
def spin_check(lbl):
    a(f's_sub_u32 s{sSPIN}, s{sSPIN}, 1\ns_cbranch_scc1 L_bail\ns_branch {lbl}')
def barrier(): a('s_barrier')
def stop(name):
    if STOP==name:
        ts_dump(0); a('s_waitcnt vmcnt(0) lgkmcnt(0)\ns_endpgm')

def w1_addr(vd,tmp):
    a(f's_cmp_eq_u32 s{sW}, 3\ns_cselect_b32 s{sT+2}, {3 if opt["w3x"] else 5}, 5')
    for k in range(3):
        a(f'''v_add_u32 v{tmp}, {64*k}, v{vLANE}
        v_mul_u32_u24 v{tmp+1}, 0xaaab, v{tmp}
        v_lshrrev_b32 v{tmp+1}, {20 if opt['wide'] else 18}, v{tmp+1}
        v_mul_u32_u24 v{tmp+2}, {24 if opt['wide'] else 6}, v{tmp+1}
        v_sub_u32 v{tmp}, v{tmp}, v{tmp+2}
        v_min_u32 v{tmp}, s{sT+2}, v{tmp}
        v_mul_u32_u24 v{tmp+1}, 2752, v{tmp+1}
        v_lshl_add_u32 v{vd+k}, v{tmp}, 4, v{tmp+1}'''+(f'\nv_subrev_u32 v{vd+k}, {1024*k}, v{vd+k}' if k else ''))
def swz_addr(vd,rowshift,tmp):
    a(f'''v_lshrrev_b32 v{tmp}, 3, v{vLANE}
    v_and_b32 v{vd}, 6, v{tmp}
    v_xor_b32 v{vd}, v{vd}, v{vLANE}
    v_and_b32 v{vd}, 7, v{vd}
    v_lshlrev_b32 v{vd}, 4, v{vd}
    v_lshl_add_u32 v{vd}, v{tmp}, {rowshift}, v{vd}''')
def w2_tiles(ks):
    if ks==10: return (16*8, 172+16*8)
    if ks>=8: return (172*(ks-8)+32, 172*(ks-8)+80)
    jj,k=divmod(ks,4); ta,tb=[(0,1),(3,4),(6,7),(9,10)][k]
    return (172*jj+16*ta,172*jj+16*tb)
def mkround(*parts):
    r=[]
    for sreg,items in parts:
        off=0
        for kind,ks in items:
            r.append((kind,ks,sreg,off)); off+=3072 if kind=='w1' else 4096
    return r
R1=mkround((sR12,[('w1',k) for k in range(0,6)])); R2=mkround((sR12,[('w1',k) for k in range(6,12)]))
R3=mkround((sR45,[('w1',k) for k in range(12,16)]+[('w2',0)]),(sRX,[('w2',1)]))
R4=mkround((sR45,[('w2',k) for k in range(2,6)])); R5=mkround((sR45,[('w2',k) for k in range(6,10)]),(sRX,[('w2',10)]))
def issue_items(R,tag,v1,v2,solo=False):
    L=[]
    if opt['now']: return L
    for kind,ks,sreg,off in R:
        for k in range(3 if kind=='w1' else 4):
            def f(kind=kind,ks=ks,sreg=sreg,off=off,k=k):
                if k==0 or not solo: a(f's_add_u32 m0, s{sreg}, {off}')
                if kind=='w1':
                    if k==0: a(f's_add_u32 s{sD0}, s{T1[ks>>2]}, {(ks&3)*88064}')
                    vm.issue(f'buffer_load_dwordx4 v{v1+k}, {S(rW1,4)}, s{sD0} offen offset:{1024*k} lds',(tag,kind,ks))
                else:
                    fa,fb=w2_tiles(ks); f0=(fa if k<2 else fb)+8*(k&1)
                    a(f's_add_u32 s{sD0}, s{sW2B}, {(f0-k)*1024}' if ks>7 else f's_add_u32 s{sD0}, s{T2[ks>>1]}, {(48*(ks&1)+7*k)*1024}')
                    vm.issue(f'buffer_load_dwordx4 v{v2}, {S(rW2,4)}, s{sD0} offen offset:{1024*k} lds',(tag,kind,ks))
            L.append(f)
    return L
def consume_items(R,tag,vt):
    L=[]; cur={}
    if opt['now']: return [('s',lambda: lg.tags.__setitem__(('c',tag),len(lg.ops)))]*60
    for kind,ks,sreg,off in R:
        if cur.get('reg')!=(kind,sreg):
            cur['reg']=(kind,sreg)
            if kind=='w1':
                t=f'''v_lshrrev_b32 v{vt}, 2, v{vLANE}
                v_mul_u32_u24 v{vt}, 96, v{vt}
                v_and_b32 v{vt+1}, 3, v{vLANE}
                v_lshl_add_u32 v{vt}, v{vt+1}, 3, v{vt}
                v_add_u32 v{vt}, s{sreg}, v{vt}
                v_mul_u32_u24 v{vt+4}, 96, v{vLANE}
                v_add_u32 v{vt+4}, s{sreg}, v{vt+4}
                v_mov_b32 v{vt+2}, 0x3f803f80
                v_mov_b32 v{vt+3}, 0x3f803f80'''
            else:
                t='\n'.join(f'v_xad_u32 v{vt+1+dt}, v{vXT+2+(dt&1)}, {32*(dt&2)}, s{sreg}' for dt in range(4))
            L+=[(x[1],x[2]) for x in FX(0,t)]
        L.append(('s',lambda kind=kind,ks=ks: vm.wait((tag,kind,ks|(kind=='w1')))))
        def ones(off=off):
            l=a.label('on'); a(f's_cmp_lg_u32 s{sW}, 3\ns_cbranch_scc1 {l}\nds_write_b64 v{vt+4}, {V(vt+2,2)} offset:{off+56}\n{l}:')
        if kind=='w1' and ks%2==0: L.append(('m',ones))
        if kind=='w1':
            for t in range(3):
                for hh in range(2): L.append(('m',lambda t=t,hh=hh,ks=ks,off=off: lg.issue(f'ds_read_b64_tr_b16 {W1R(t,ks,2,2*hh)}, v{vt} offset:{off+hh*1536+t*32}',('c',tag))))
        else:
            for dt in range(4):
                for hh in range(2): L.append(('m',lambda dt=dt,hh=hh,ks=ks,off=off: lg.issue(f'ds_read_b64_tr_b16 {W2R(ks,dt,2,2*hh)}, v{vt+1+dt} offset:{off+hh*2048}',('c',tag))))
    return L
def consume(R,tag,vt):
    for k,f in consume_items(R,tag,vt): f()
def pipeline(mfs, loadfn, ctr, slots, ahead, fill=None, gates=None, limited=None, fixed=None, pre=8, late=None, pace=1, have=None, mark='', age=None):
    age=age or opt['age']; SPL=('s_add_u32','s_addk_i32','s_mul_i32','s_and_b32','s_lshl_b32','s_lshr_b32','s_lshl3_add_u32','s_lshl2_add_u32')
    fill=list(fill or []); gates=gates or {}; limited=limited or {}; fixed=fixed or {}; late=late or {}
    first={};last={}
    for i,(f,us) in enumerate(mfs):
        for u in us: first.setdefault(u,i); last[u]=i
    order=sorted(first,key=lambda u:first[u]); free=list(slots); reg={}; opened=set()
    q=[]; nxt=[0]; nowait=set()
    for u,r in (have or {}).items(): reg[u]=r; order.remove(u); free.remove(r)
    def alloc(u,i):
        if u in fixed:
            r,e=fixed[u]
            return r if e<=i else None
        for r in sorted(free,key=lambda r:limited.get(r,1<<30)):
            if limited.get(r,1<<30)>=last[u] and late.get(r,0)<=i: free.remove(r); return r
        return None
    def one_load(i,force=False):
        if not q:
            if nxt[0]>=len(order): return False
            u=order[nxt[0]]
            if u in gates and gates[u] not in opened:
                if not force:
                    c=[x for x in order[nxt[0]:] if x not in gates and first[x]-i<=ahead]
                    if not c or len([r for r in free if late.get(r,0)<=i])<=4: return False
                    order.remove(c[0]); order.insert(nxt[0],c[0]); return one_load(i)
                while gates[u] not in opened: run_fill()
            if not force and first[u]-i>ahead: return False
            r=alloc(u,i)
            if r is None:
                assert not force,('no slot',i,u); return False
            reg[u]=r; q.extend((u,t) for t in loadfn(u,r)); nxt[0]+=1
            if not q: return one_load(i,force)
        u,t=q.pop(0); ctr.issue(t,('f',u) if 'wbl2' not in t else None); nowait.update([len(ctr.ops)] if 'wbl2' in t else []); return True
    skip=[0]; when={}
    def nl(k): return sum(1 for l in a.lines[k:] if not l.endswith(':'))
    def run_fill():
        k=len(a.lines); r=fill.pop(0)[2](); del a.lines[k:k+skip[0]]; skip[0]=0
        if isinstance(r,str): opened.add(r)
    def peek():
        st=save(); k=len(a.lines); nc=len(cold); h=a.hold; fill[0][2](); L=a.lines[k+skip[0]:]; del a.lines[k:]; del cold[nc:]; restore(st); a.hold=h
        return [l for l in L if not l.endswith(':')]
    def unissued(us): return any(u not in reg or any(x[0]==u for x in q) for u in us)
    def need(us):
        tg=[ctr.tags[('f',u)] for u in us if ('f',u) in ctr.tags]
        return max(tg) if tg and max(tg)>ctr.du else 0
    for i,(f,us) in enumerate(mfs):
        k0=len(a.lines); n0=len(ctr.ops)
        if i==0:
            for k in range(pre): one_load(0)
        else:
            room=lambda: opt['bud']-nl(k0)-(1 if need(us) else 0)
            nf=first[q[0][0]] if q else (first[order[nxt[0]]] if nxt[0]<len(order) else 1<<30)
            hot=fill and fill[0][0]<=i
            L=peek() if hot else []
            big=len(L)>1 and L[0].split()[0] not in SPL and nf-i>ahead//3
            if i%pace==1%pace and not(big and pace==1) and not(hot and i-fill[0][0]>opt['lag'] and nf-i>ahead//2): one_load(i)
            mem=0
            while fill and fill[0][0]<=i:
                L=peek(); ism=fill[0][1] in 'mM'
                if len(L)<=room() or (nl(k0)==0 and not(L[0].split()[0] in SPL)) or (room()>0 and i-fill[0][0]>opt['lag']):
                    if ism and mem: break
                    mem+=ism; run_fill()
                elif room()>0 and L[0].split()[0] in SPL: a(L[0]); skip[0]+=1
                else: break
            if pace==1 and room()>0 and len(ctr.ops)==n0: one_load(i)
        while any(len(x)>3 and x[3]<=i for x in fill): run_fill()
        while unissued(us): one_load(i,True)
        for k in range(n0,len(ctr.ops)): when[k+1]=i
        k=need(us)
        if k:
            while k<len(ctr.ops) and k+1 not in nowait and when.get(k+1,0)<=i-age: k+=1
            ctr.tags['_']=k; ctr.wait('_')
        a(f(reg))
        if mark and mark==opt.get('tsx') and i%24==23 and i<190: ts(24+i//24)
        for u in set(us):
            if last[u]==i and u not in fixed: free.append(reg[u])
    while fill: run_fill()
    return reg
def FV(i,text,dl=1<<30): return [(i,'v',(lambda t=t: a(t)),dl) for t in text.split('\n') if t.strip()]
def FS(i,text): return [(i,'s',(lambda t=t: a(t))) for t in text.split('\n') if t.strip()]
def FX(i,text): return [(i,'s' if t.strip().startswith('s_') else 'v',(lambda t=t: a(t))) for t in text.split('\n') if t.strip()]

def chain(i,items,step=0,dl=None):
    o=[]
    for n,x in enumerate(items):
        x=x if isinstance(x[0],str) else x[1:]
        o.append((i+int(n*step),)+tuple(x[:2])+((dl,) if dl is not None else tuple(x[2:])))
    return o
def merge(*ch): return sorted(sum(ch,[]),key=lambda x:x[0])
import copy
def save(): return [copy.copy(x) for x in (vm.ops,vm.dc,vm.du,vm.tags,lg.ops,lg.dc,lg.du,lg.tags)]
def restore(st): vm.ops,vm.dc,vm.du,vm.tags,lg.ops,lg.dc,lg.du,lg.tags=[copy.copy(x) for x in st]
def maxchain(dst,regs):
    regs=list(regs)
    a(f'v_max3_u32 v{dst}, v{regs[0]}, v{regs[1]}, v{regs[2]}'); regs=regs[3:]
    while len(regs)>=2: a(f'v_max3_u32 v{dst}, v{dst}, v{regs[0]}, v{regs[1]}'); regs=regs[2:]
    if regs: a(f'v_max_u32 v{dst}, v{dst}, v{regs[0]}')
def cmul(d,x,y):
    a(f'v_pk_mul_f32 {V(d,2)}, {V(x,2)}, {V(y,2)} op_sel:[0,0] op_sel_hi:[0,1]')
    return f'v_pk_fma_f32 {V(d,2)}, {V(x,2)}, {V(y,2)}, {V(d,2)} op_sel:[1,1,0] op_sel_hi:[1,0,1] neg_lo:[0,1,0]'
def cmuls(L):
    for t in [cmul(*x) for x in L]: a(t)
LOG2E=math.log2(math.e)
def rbf(v): a(f'v_cvt_pk_bf16_f32 v{v}, v{v}, v{v}\nv_lshlrev_b32 v{v}, 16, v{v}')
def ln_final(s,q):
    a(f'''v_mul_f32 v{s}, {fhex(-1/512)}, v{s}
    v_fmamk_f32 v{q}, v{q}, {fhex(1/512)}, v{vEPS}
    v_fma_f32 v{q}, -v{s}, v{s}, v{q}
    v_max_f32 v{q}, v{q}, v{vEPS}
    v_rsq_f32 v{q}, v{q}
    v_mul_f32 v{s}, v{s}, v{q}''')
def a2_vaddr(vd,tmp):
    return f'''v_lshrrev_b32 v{tmp}, 5, v{vLANE}
    v_and_b32 v{vd}, 31, v{vLANE}
    v_lshlrev_b32 v{vd}, 4, v{vd}
    v_lshl_add_u32 v{vd}, v{tmp}, 15, v{vd}'''
vV1=2; vV2=5; vNEG=6; vL16=10; vTCH=11; vJ0=12; vJ1=13
sA2S=30; sPS=31; sA2B=18; sHF=19; sX1F=3; sXID=sLAY
cold=[]
GB=vW+116; vGA=vW+104; vGB=vW+39
def gather_u(hf,iss):
    a(f's_add_u32 m0, s{sT+19}, {hf*2048}\ns_add_u32 s{sT+21}, s{sT+20}, {hf<<21}')
    iss(f'buffer_load_dwordx4 v{vGA}, {S(rWS,4)}, s{sT+21} offen sc1 lds')
def gather_b(n,iss):
    a(f's_add_u32 s{sT+21}, s{sT+18}, {n<<21}')
    iss(f'buffer_load_dwordx4 {V(GB+4*n,4)}, v{vGB}, {S(rWS,4)}, s{sT+21} offen sc1')
def gather_addr(lay):
    a(f'''v_and_b32 v{vGA}, 127, v0
    v_lshlrev_b32 v{vGA}, 14, v{vGA}
    s_lshl1_add_u32 s{sT+20}, s{sCP}, s{sCH}
    s_lshl_b32 s{sT+20}, s{sT+20}, 4
    s_add_u32 s{sT+20}, s{sT+20}, {A2+A2S*lay}
    s_mul_i32 s{sT+19}, s{sCH}, {UCH}
    s_lshl_b32 s{sT+21}, s{sKH}, 10
    s_add_u32 s{sT+19}, s{sT+19}, s{sT+21}
    s_add_u32 s{sT+19}, s{sT+19}, {U+512}''')
def touch(srd,soff,dst,nl):
    def f():
        if nl<256: a(f'v_min_u32 v{vJ1}, {(nl-1)*128}, v{vTCH}')
        vm.issue(f'buffer_load_dword v{dst}, v{vTCH if nl==256 else vJ1}, {S(srd,4)}, {soff} offen')
    return f
def htouch():
    a(f'''s_and_b32 s{sT+1}, s{sCP}, 31
    s_mul_i32 s{sT+1}, s{sT+1}, 6
    s_add_u32 s{sT+1}, s{sT+1}, 512
    s_lshl_b32 s{sT+1}, s{sT+1}, 3
    s_lshr_b32 s{sT}, s{sCP}, 5
    s_add_u32 s{sT+1}, s{sT+1}, s{sT}
    s_lshl_b32 s{sT+1}, s{sT+1}, 10
    v_min_u32 v{vJ1}, 47, v0
    v_lshrrev_b32 v{vTCH}, 3, v{vJ1}
    v_and_b32 v{vJ1}, 7, v{vJ1}
    v_lshlrev_b32 v{vJ1}, 7, v{vJ1}
    v_lshl_add_u32 v{vJ1}, v{vTCH}, 13, v{vJ1}''')
    vm.issue(f'buffer_load_dword v{vJ0}, v{vJ1}, {S(rWS,4)}, s{sT+1} offen')
def arrive_b(va,vb):
    return f'''s_and_b32 s{sT+1}, s2, 15
    s_lshl_b32 s{sT+1}, s{sT+1}, 7
    s_add_u32 s{sT+1}, s{sT+1}, {CB}
    v_lshlrev_b32 v{va}, 11, v{vLANE}
    v_mov_b32 v{vb}, 1
    s_mov_b64 exec, 0xffff
    buffer_atomic_add v{vb}, v{va}, {S(rWS,4)}, s{sT+1} offen sc1
    s_mov_b64 exec, -1'''
def w3poll(vPV,load,lim,pre='',post=''):
    d=a.label('pd'); l=a.label('pl'); k=a.label('pk'); a.hold+=1
    if pre in (None,'W'): pre=('s_waitcnt vmcnt(0)\n' if pre else '')+f'v_cmp_gt_u32 vcc, {lim}, v{vPV}\ns_cbranch_vccz {k}'
    a(f's_cmp_lg_u32 s{sW}, 3\ns_cbranch_scc1 {d}\n{pre}\n{l}:\n{load}\ns_waitcnt vmcnt(0)\nv_cmp_gt_u32 vcc, {lim}, v{vPV}\ns_cbranch_vccz {k}'+('\ns_sleep 2' if opt['slp'] else ''))
    spin_check(l); a(f'{k}:\n{post}\n{d}:'); a.hold-=1
def poll_b(va,vb,lim):
    w3poll(vb,f'buffer_load_dword v{vb}, v{va}, {S(rWS,4)}, s{sT+2} offen sc1',lim,
      f'''s_and_b32 s{sT+2}, s2, 15
      s_lshl_b32 s{sT+2}, s{sT+2}, 11
      s_add_u32 s{sT+2}, s{sT+2}, {CB}
      v_and_b32 v{va}, 15, v{vLANE}
      v_lshlrev_b32 v{va}, 7, v{va}''')
def fill_addr(): return FV(0,a2_vaddr(vTCH,vJ1)+f'\nv_bfe_u32 v{vJ1}, v{vLANE}, 3, 1\nv_mul_u32_u24 v{vJ1}, {4096-128}, v{vJ1}\nv_add_u32 v{vJ1}, v{vJ1}, v{vL16}')
def fill_st():
    st=lambda v,sb,off: (a(f's_add_u32 s{sT+8}, s{sb}, {off}'),vm.issue(f'buffer_store_dwordx4 {V(vNEG,4)}, v{v}, {S(rWS,4)}, s{sT+8} offen sc1'))
    return [('M',lambda k=k: st(vTCH,sA2S,8192*(k&1)+MB*(k&2))) for k in range(4)]+[('M',lambda: (exec_set(0xffff,0),st(vJ1,sPS,0),exec_all()))]
def fills_at(n):
    if opt['fp0']==n and opt['nf']:
        h=a.hold; a.hold=1
        for x in chain(0,fill_addr()+fill_st()[:opt['nf']]): x[2]()
        a.hold=h
def p0():
    if opt['early']: a('s_memrealtime s[96:97]')
    vST=vW; vP=vW+1; vXB=vW+2; vXD=vW+3; vT0=vW+4; vPar=vW+8; vXR=vW+16
    a(f'''s_cmp_ge_u32 s2, 256
    s_cbranch_scc1 L_end
    s_load_dwordx16 s[4:19], s[0:1], 0
    s_load_dwordx8 s[20:27], s[0:1], 64
    s_load_dwordx2 s[28:29], s[0:1], 96
    s_getpc_b64 s[{sD0}:{sD0+1}]
    L_pc:
    s_lshr_b32 s{sT+1}, s2, 3
    s_mul_i32 s{sT}, s{sT+1}, {14*128}
    v_min_u32 v{vJ1}, 13, v0
    v_lshl_add_u32 v{vJ1}, v{vJ1}, 7, s{sT}
    v_min_u32 v{vJ1}, @CODEMAX@, v{vJ1}
    global_load_dword v{vJ0}, v{vJ1}, s[{sD0}:{sD0+1}]
    v_lshrrev_b32 v{vW}, 6, v0
    v_and_b32 v{vLANE}, 63, v0
    v_readfirstlane_b32 s{sW}, v{vW}
    s_getreg_b32 s{sXCC}, hwreg(HW_REG_XCC_ID, 0, 4)
    s_and_b32 s{sT}, s2, 7
    s_lshr_b32 s{sT+1}, s2, 3
    s_lshl_b32 s{sCP}, s{sT}, 5
    s_add_u32 s{sCP}, s{sCP}, s{sT+1}
    s_lshr_b32 s{sRB}, s{sCP}, 3
    s_and_b32 s{sJ}, s{sCP}, 7
    s_and_b32 s{sKH}, s{sW}, 1
    s_lshr_b32 s{sCH}, s{sW}, 1
    v_mov_b64 {V(vNEG,2)}, -1
    v_mov_b64 {V(vNEG+2,2)}, -1
    v_lshlrev_b32 v{vL16}, 4, v{vLANE}
    v_and_b32 v{vST}, 1, v{vLANE}
    v_lshlrev_b32 v{vST}, 5, v{vST}
    v_lshrrev_b32 v{vT0}, 5, v0
    v_lshl_add_u32 v{vST}, v{vT0}, 2, v{vST}
    v_lshlrev_b32 v{vP}, 1, v0
    v_lshlrev_b32 v{vXB}, 5, v0
    v_lshrrev_b32 v{vT0}, 4, v{vLANE}
    v_and_b32 v{vXD}, 15, v{vLANE}
    v_lshlrev_b32 v{vXD}, 4, v{vXD}
    v_lshl_add_u32 v{vXD}, v{vT0}, 10, v{vXD}
    v_lshlrev_b32 v{vTCH}, 7, v0
    s_lshl_b32 s{sT+3}, s2, 13
    s_lshl_b32 s{sT+13}, s{sW}, 11
    s_lshl_b32 s{sT+4}, s2, 14
    s_add_u32 s{sT+4}, s{sT+4}, s{sT+13}
    s_add_u32 s{sT+5}, s{sT+4}, 8192
    v_lshlrev_b32 v{vT0+2}, 1, v{vLANE}
    v_lshl_add_u32 v{vT0+2}, s{sW}, 8, v{vT0+2}
    s_lshl_b32 s{sT+6}, s{sCP}, 9
    v_add_u32 v{vP}, s{sT+6}, v{vP}
    s_lshl_b32 s{sT+6}, s{sCP}, 1
    s_add_u32 s{sT+6}, s{sT+6}, s{sCH}
    s_lshl_b32 s{sT+6}, s{sT+6}, 1
    v_mov_b32 v{vT0+1}, s{sT+6}
    s_lshl_b32 s{sT+7}, s{sCP}, 2
    s_add_u32 s{sT+8}, s{sT+7}, s{sW}
    s_lshl_b32 s{sT+8}, s{sT+8}, 2
    s_add_u32 s{sT+8}, s{sT+8}, {HF}
    s_lshl_b32 s{sT+9}, s{sCP}, 7
    s_add_u32 s{sT+9}, s{sT+9}, {XID}
    s_lshl_b32 s{sT+12}, s{sRB}, 7
    s_add_u32 s{sT+12}, s{sT+12}, {HF}
    s_lshl_b32 s{sT+17}, s{sJ}, 2
    s_add_u32 s{sT+17}, s{sT+17}, s{sW}
    s_cmp_eq_u32 s{sT+17}, 2
    s_cselect_b32 s{sT+9}, s{sT+12}, s{sT+9}
    s_cselect_b32 s{sT+15}, 0, s{sXCC}
    s_cselect_b32 s{sT+17}, 1, s{sW}
    s_lshl_b32 s{sT+16}, s2, 11
    s_add_u32 s{sT+16}, s{sT+16}, {CB}
    s_cmp_eq_u32 s{sW}, 3
    s_cselect_b32 s{sT+15}, 0, s{sT+15}
    v_mov_b32 v{vW+28}, s{sT+15}
    v_mov_b32 v{vW+28+1}, s{sT+15}
    v_mov_b32 v{vW+28+2}, s{sT+15}
    v_mov_b32 v{vW+28+3}, s{sT+15}
    s_lshl_b32 s{sT+10}, s{sW}, 8
    s_add_u32 s{sT+10}, s{sT+10}, s{sT+3}
    s_add_u32 s{sT+11}, s{sT+10}, 4096
    s_lshl_b32 s{sX1F}, s{sCP}, 13
    s_add_u32 s{sX1F}, s{sX1F}, s{sT+13}
    s_add_u32 s{sX1F}, s{sX1F}, {X1}
    s_mov_b32 m0, s{sT+13}''')
    for r,n in ((rWS,WSZ),(rX,2*MB),(rW1,512*2752),(rW2,1376*1024),(rOUT,2*MB)):
        a(f's_mov_b32 s{r+2}, {n}\ns_mov_b32 s{r+3}, 0x20000')
    if TS: a(f'v_mov_b32 v{vTS}, 0')
    a('s_waitcnt lgkmcnt(0)')
    ts(0)
    for r,p in ((rWS,sWS),(rX,sX),(rW1,sW1),(rW2,sW2),(rOUT,sOUT)): a(f's_mov_b64 {S(r,2)}, {S(p,2)}')
    a(f's_mov_b32 s{sHF}, s{sT+8}')
    l=a.label('nosm')
    vm.tags['fill0']=len(vm.ops)
    a(f's_cmp_lg_u32 s{sT+17}, 1\ns_cbranch_scc1 {l}')
    exec_set(0xff,0)
    a(f'buffer_store_dwordx4 {V(vW+28,4)}, v{vL16}, {S(rWS,4)}, s{sT+9} offen sc1')
    exec_all(); a(f'{l}:')
    l=a.label('noz')
    a(f'''s_cmp_lg_u32 s{sW}, 3
    s_cbranch_scc1 {l}
    s_cmp_ge_u32 s2, 16
    s_cbranch_scc1 {l}
    buffer_store_dwordx4 {V(vW+28,4)}, v{vL16}, {S(rWS,4)}, s{sT+16} offen sc1
    buffer_store_dwordx4 {V(vW+28,4)}, v{vL16}, {S(rWS,4)}, s{sT+16} offen offset:1024 sc1
    {l}:''')
    vm.tags['zero']=len(vm.ops)
    ST0=len(a.lines)
    vm.issue(f'buffer_load_dwordx4 v{vXD}, {S(rX,4)}, s{sT+10} offen lds')
    a('s_addk_i32 m0, 1024')
    vm.issue(f'buffer_load_dwordx4 v{vXD}, {S(rX,4)}, s{sT+11} offen lds','xs')
    vm.issue(f'buffer_load_dwordx4 {V(vXR,4)}, v{vXB}, {S(rX,4)}, s{sT+3} offen')
    vm.issue(f'buffer_load_dwordx4 {V(vXR+4,4)}, v{vXB}, {S(rX,4)}, s{sT+3} offen offset:16','xr')
    vm.issue(f'global_load_ushort v{vPar}, v{vT0+1}, {S(sLD,2)}')
    for k,p in enumerate((sLA,sAI,sCR,sCI)): vm.issue(f'global_load_ushort v{vPar+1+k}, v{vP}, {S(p,2)}','par')
    for cb in range(2): vm.issue(f'global_load_ushort v{vPar+6+cb}, v{vT0+2}, {S(sDS,2)} offset:{128*cb}','dsk')
    vm.issue(f'buffer_store_dwordx4 {V(vNEG,4)}, v{vL16}, {S(rWS,4)}, s{sX1F} offen sc1')
    vm.issue(f'buffer_store_dwordx4 {V(vNEG,4)}, v{vL16}, {S(rWS,4)}, s{sX1F} offen offset:1024 sc1','fill1')
    def malltouch():
        if opt['touch']==2:
            a(f's_mul_i32 s{sT+12}, s2, {43*128}')
            touch(rW1,f's{sT+12}',vJ0,43)(); touch(rW2,f's{sT+12}',vJ0,43)()
    def stouch(p):
        a.hold+=1
        a(f's_mul_i32 s98, s{sW}, 11\ns_min_u32 s98, s98, 32\ns_mul_i32 s99, s2, 43\ns_add_u32 s98, s98, s99\ns_lshl_b32 s98, s98, 7\nv_min_u32 v{vJ1}, 10, v{vLANE}\nv_lshlrev_b32 v{vJ1}, 7, v{vJ1}')
        vm.issue(f'buffer_load_dword v{vJ0}, v{vJ1}, {S(rW1 if p==sW1 else rW2,4)}, s98 offen'); a.hold-=1
    def st_at(n):
        if n: fills_at(n)
        if opt['touch']==3:
            if opt['st1']==n: stouch(sW1)
            if opt['st2']==n: stouch(sW2)
    if opt['tpos']==0: malltouch()
    st_at(0)
    ts(17)
    a(f'''s_mov_b32 s{sSPIN}, 0x40000
    s_lshr_b32 s{sOB}, s{sRB}, 3
    s_lshl_b32 s{sOB}, s{sOB}, 5
    s_and_b32 s{sT+2}, s{sRB}, 3
    s_lshl3_add_u32 s{sOB}, s{sT+2}, s{sOB}
    s_bfe_u32 s{sT+2}, s{sRB}, 0x10002
    s_add_u32 s{sOB}, s{sOB}, s{sT+2}
    s_lshl2_add_u32 s{sOB}, s{sKH}, s{sOB}
    s_mul_i32 s{sW1B}, s{sJ}, 344
    s_mul_i32 s{sT+2}, s{sW}, {8*2752 if opt['wide'] else 96}
    s_add_u32 s{sW1B}, s{sW1B}, s{sT+2}
    s_mul_i32 s{sW2B}, s{sW}, {344*1024}
    s_lshl_b32 s{sT+2}, s{sJ}, 7
    s_add_u32 s{sW2B}, s{sW2B}, s{sT+2}
    s_lshl4_add_u32 s{sA2S}, s{sOB}, s{sJ}
    s_lshl1_add_u32 s{sA2S}, s{sA2S}, s{sCH}
    s_lshl_b32 s{sA2S}, s{sA2S}, 9
    s_add_u32 s{sA2S}, s{sA2S}, {A2+A2S}
    s_lshl2_add_u32 s{sPS}, s{sRB}, s{sKH}
    s_lshl3_add_u32 s{sPS}, s{sPS}, s{sJ}
    s_lshl1_add_u32 s{sPS}, s{sPS}, s{sCH}
    s_lshl_b32 s{sPS}, s{sPS}, 7
    s_add_u32 s{sPS}, s{sPS}, {PS}
    s_lshl_b32 s{sXID}, s{sRB}, 10
    s_add_u32 s{sXID}, s{sXID}, {XID}
    v_mov_b32 v{vEPS}, {fhex(1e-5)}''')
    for k in range(4): a(f's_and_b32 s{T1[k]}, s{sRB}, {opt["rot"]}\ns_xor_b32 s{T1[k]}, s{T1[k]}, {k}\ns_mul_i32 s{T1[k]}, s{T1[k]}, {4*88064}\ns_add_u32 s{T1[k]}, s{T1[k]}, s{sW1B}')
    for sr,(b,st) in ((sR12,RG12),(sRX,RGX),(sR45,RG45)): a(f's_mul_i32 s{sr}, s{sW}, {st}\ns_add_u32 s{sr}, s{sr}, {b}')
    fills_at(0)
    t0=vW+24
    a(f'''v_lshrrev_b32 v{t0}, 2, v{vLANE}
    v_and_b32 v{t0+1}, 3, v{vLANE}
    v_lshlrev_b32 v{t0+1}, 3, v{t0+1}
    v_lshl_add_u32 v{vXT}, v{t0}, 6, v{t0+1}
    v_lshl_add_u32 v{vXT+2}, v{t0}, 7, v{t0+1}
    v_bfe_u32 v{t0}, v{vLANE}, 4, 1
    v_lshl_add_u32 v{vXT}, v{t0}, 5, v{vXT}
    v_add_u32 v{vXT}, {XT}, v{vXT}
    v_xor_b32 v{vXT+1}, 32, v{vXT}
    s_andn2_b32 s{sT+2}, 2, s{sW}
    v_bfe_u32 v{t0}, v{vLANE}, 3, 2
    v_xor_b32 v{t0}, s{sT+2}, v{t0}
    v_lshl_add_u32 v{vXT+2}, v{t0}, 5, v{vXT+2}
    v_xor_b32 v{vXT+3}, 32, v{vXT+2}''')
    w1_addr(vV1,t0); swz_addr(vV2,10,t0); gather_addr(0)
    vIX=vW+72
    vK=vW+89
    vTA,vA,vB,vC1,vC2,vC3,vE1,vE2,vXTR=[vK+k for k in range(9)]
    a(f'''v_and_b32 v{t0+6}, 127, v0
    v_lshlrev_b32 v{t0}, 4, v{t0+6}
    v_sub_u32 v{t0}, 2032, v{t0}
    v_cvt_f32_i32 v{t0+1}, v{t0}
    s_mul_i32 s{sT+16}, s{sCH}, {KTCH}
    s_add_u32 s{sT+16}, s{sT+16}, {KT}
    v_lshrrev_b32 v{t0+2}, 16, v{t0+1}
    v_subrev_u32 v{t0+2}, 0x4280, v{t0+2}
    v_min_i32 v{t0+3}, 127, v{t0}
    v_max_i32 v{t0+2}, v{t0+2}, v{t0+3}
    v_or_b32 v{t0+2}, 0x4b000000, v{t0+2}
    v_and_b32 v{t0+1}, 0x7f800000, v{t0+1}
    v_max_u32 v{t0+1}, 0x43000000, v{t0+1}
    v_sub_u32 v{t0+1}, 0x82800000, v{t0+1}
    s_sub_u32 s{sT+15}, s{sT+16}, 0x96000000''')
    for k in range(16):
        a(f'v_fmamk_f32 v{t0+3}, v{t0+1}, {fhex(15-k)}, v{t0+2}\nv_lshl_add_u32 v{vIX+k}, v{t0+3}, 1, s{sT+15}')
    a(f'''s_add_u32 s{sT+15}, s{sT+16}, 1400
    v_mov_b32 v{t0+4}, s{sT+15}
    v_subrev_u32 v{vIX+16}, 2, v{vIX+15}
    v_cmp_lt_u32 vcc, 256, v{t0}
    v_cndmask_b32 v{vIX+16}, v{vIX+16}, v{vIX+15}, vcc
    v_cmp_eq_u32 vcc, 0, v{t0}
    v_cndmask_b32 v{vIX+16}, v{vIX+16}, v{t0+4}, vcc
    v_mov_b32 v{t0+5}, 0''')
    lg.issue(f'ds_write_b32 v{t0+4}, v{t0+5}')
    a(f'''s_mul_i32 s{sT+15}, s{sCH}, {UCH}
    v_lshl_add_u32 v{t0+4}, v{t0+6}, 2, s{sT+15}''')
    lg.issue(f'ds_write_b32 v{t0+4}, v{t0+5} offset:{U}')
    a(f'''s_mul_i32 s{sT+15}, s{sCH}, {TCH}
    s_add_u32 s{sT+15}, s{sT+15}, {TAB}
    s_lshl_b32 s{sT+14}, s{sKH}, 8
    s_add_u32 s{sT+14}, s{sT+14}, s{sT+15}
    v_and_b32 v{t0}, 15, v{vLANE}
    v_mul_u32_u24 v{vA}, {TROW}, v{t0}
    v_and_b32 v{vB}, 48, v{vLANE}
    v_add3_u32 v{vA}, v{vA}, v{vB}, s{sT+15}
    s_mul_i32 s{sT+15}, s{sKH}, {16*TROW}
    s_add_u32 s{sT+15}, s{sT+15}, {21*TROW}
    v_add_u32 v{vB}, s{sT+15}, v{vA}
    s_lshl_b32 s{sT+15}, s{sKH}, 4
    v_add_u32 v{t0}, s{sT+15}, v{t0}
    v_lshrrev_b32 v{t0+1}, 4, v{vLANE}
    v_lshlrev_b32 v{vC1}, 4, v{t0}
    v_lshl_add_u32 v{vC1}, v{t0+1}, 3, v{vC1}
    v_lshlrev_b32 v{t0+3}, 3, v{t0}
    v_add_u32 v{t0+3}, 512, v{t0+3}
    v_cmp_eq_u32 vcc, 2, v{t0+1}
    v_cndmask_b32 v{vC1}, v{vC1}, v{t0+3}, vcc
    v_add_u32 v{vC2}, 4, v{vC1}
    v_lshlrev_b32 v{t0+3}, 2, v{t0}
    v_add_u32 v{t0+5}, 768, v{t0+3}
    v_add_u32 v{t0+3}, 896, v{t0+3}
    v_cmp_eq_u32 vcc, 3, v{t0+1}
    v_cndmask_b32 v{vC1}, v{vC1}, v{t0+5}, vcc
    v_cndmask_b32 v{vC2}, v{vC2}, v{t0+3}, vcc
    v_add_u32 v{vC1}, s{sT+16}, v{vC1}
    v_add_u32 v{vC2}, s{sT+16}, v{vC2}
    v_lshlrev_b32 v{vC3}, 1, v{t0}
    v_lshl_add_u32 v{vC3}, v{t0+1}, 8, v{vC3}
    v_add_u32 v{vC3}, s{sT+16}, v{vC3}
    s_mul_i32 s{sT+15}, s{sCH}, {KCH}
    v_lshl_add_u32 v{vE1}, v{t0+6}, 5, s{sT+15}
    v_and_b32 v{vE2}, 7, v{vLANE}
    s_mul_i32 s{sT+15}, s{sW}, {KCP}
    v_lshl_add_u32 v{vE2}, v{vE2}, 3, s{sT+15}
    v_bfe_u32 v{vXTR}, v{vLANE}, 2, 2
    v_lshlrev_b32 v{vXTR}, 8, v{vXTR}
    v_lshl_add_u32 v{vXTR}, v{t0+1}, 5, v{vXTR}
    v_and_b32 v{t0+1}, 3, v{vLANE}
    v_lshl_add_u32 v{vXTR}, v{t0+1}, 3, v{vXTR}
    v_add_u32 v{vXTR}, s{sT+13}, v{vXTR}
    v_mov_b32 v{t0+1}, 0x3f803f80
    v_and_b32 v{t0+4}, 1, v{vLANE}
    v_cmp_eq_u32 vcc, 1, v{t0+4}''')
    l=a.label('noa')
    a(f'''s_cmp_lg_u32 s{sW}, 3
    s_cbranch_scc1 {l}
    s_cmp_ge_u32 s2, 16
    s_cbranch_scc1 {l}
    v_mov_b32 v{vW+2}, 0
    v_mov_b32 v{vW+3}, 1
    s_waitcnt vmcnt({len(vm.ops)-vm.tags['zero']})''')
    exec_set(1,0)
    a(f'global_atomic_add v{vW+2}, v{vW+3}, {S(sDBG,2)} sc1')
    exec_all(); a(f'{l}:')
    ts(20)
    if opt['warm']: a('@WARM@')
    ts(18)
    vm.wait('xs'); ts(1)
    xt=vW+32
    for cb in range(2):
        for hh in range(2): lg.issue(f'ds_read_b64_tr_b16 {V(xt+4*cb+2*hh,2)}, v{vXTR} offset:{cb*128+hh*1024}','xt')
    vm.wait('xr')
    sS,sQ=t0+2,t0+3
    for k in range(8):
        a(f'v_dot2_f32_bf16 v{sS}, v{vXR+k}, v{t0+1}, '+('0' if k==0 else f'v{sS}'))
        a(f'v_dot2_f32_bf16 v{sQ}, v{vXR+k}, v{vXR+k}, '+('0' if k==0 else f'v{sQ}'))
    lg.wait('xt')
    xf=vW+40; rq=vW+56; uf=vXR
    ups=[]
    for k in range(8): ups+=[f'v_lshlrev_b32 v{xf+2*k}, 16, v{xt+k}', f'v_and_b32 v{xf+2*k+1}, 0xffff0000, v{xt+k}']
    a(ups.pop()); a(ups.pop()); a(ups.pop())
    for sh in (8,4,2,1):
        for r in (sS,sQ): a(f'v_add_f32_dpp v{r}, v{r}, v{r} row_ror:{sh} row_mask:0xf bank_mask:0xf')
        a(ups.pop())
    for r in (sS,sQ): a(f'v_add_f32_dpp v{r}, v{r}, v{r} row_bcast:15 row_mask:0xa bank_mask:0xf')
    ln_final(sS,sQ)
    a(f'v_cndmask_b32 v{sS}, v{sQ}, v{sS}, vcc')
    exec_set('0xc0000000','0xc0000000')
    lg.issue(f'ds_write_b32 v{vST}, v{sS} offset:{STAT}')
    exec_all()
    for u_ in ups: a(u_)
    a(f'v_mov_b32 v{t0+4}, {STAT}')
    vm.wait('dsk'); lg.drain(); barrier()
    for k in range(4): lg.issue(f'ds_read_b128 {V(rq+4*k,4)}, v{t0+4} offset:{16*k}')
    a(f'v_lshlrev_b32 v{vPar+6}, 16, v{vPar+6}\nv_lshlrev_b32 v{vPar+7}, 16, v{vPar+7}')
    lg.drain()
    st_at(1)
    def early_poll():
        l=a.label('nop'); a(f'''s_cmp_lg_u32 s{sW}, 3
        s_cbranch_scc1 {l}
        v_mov_b32 v{vW}, 0
        global_load_dword v{vW+1}, v{vW}, {S(sDBG,2)} sc1
        {l}:''')
    for cb in range(2):
        for k in range(4): a(f'v_pk_fma_f32 {V(uf+2*k,2)}, {V(xf+8*cb+2*k,2)}, {V(rq+2*k,2)}, {V(rq+8+2*k,2)}')
        for k in range(4): a(f'v_cvt_pk_bf16_f32 v{xt+k}, v{uf+2*k}, v{uf+2*k+1}')
        for k in range(4): a(f'v_min_u32 v{xt+k}, -2, v{xt+k}')
        vm.issue(f'buffer_store_dwordx4 {V(xt,4)}, v{vL16}, {S(rWS,4)}, s{sT+4} offen offset:{1024*cb} sc1')
        for k in range(4): a(f'v_pk_fma_f32 {V(uf+2*k,2)}, {V(uf+2*k,2)}, {V(vPar+6,2)}, {V(xf+8*cb+2*k,2)} op_sel:[0,{cb},0] op_sel_hi:[1,{cb},1]')
        for k in range(4): a(f'v_cvt_pk_bf16_f32 v{xt+4+k}, v{uf+2*k}, v{uf+2*k+1}')
        for k in range(4): a(f'v_min_u32 v{xt+4+k}, -2, v{xt+4+k}')
        if cb==1: early_poll()
        vm.issue(f'buffer_store_dwordx4 {V(xt+4,4)}, v{vL16}, {S(rWS,4)}, s{sT+5} offen offset:{1024*cb} sc1','pub')
    if opt['tpos']==1: malltouch()
    st_at(2)
    if opt['htouch']==1: htouch()
    ts(2)
    dt,la,ai,cr,ci=[vPar+k for k in range(5)]
    vPO=vW; vPV=vW+1
    def arrive():
        vm.wait('pub'); barrier(); ts(19)
        w3poll(vPV,f'global_load_dword v{vPV}, v{vPO}, {S(sDBG,2)} sc1',16,None,arrive_b(vPO,vPV))
    items=issue_items(R1,'r1',vV1,vV2)
    a.sprinkle(items,opt['spr1'] if not opt['nor1'] else 10000)
    for k in range(5): a(f'v_lshlrev_b32 v{vPar+k}, 16, v{vPar+k}')
    a(f'''v_mul_f32 v{dt}, {fhex(LOG2E)}, v{dt}
    v_mul_f32 v{la}, {fhex(LOG2E)}, v{la}
    v_exp_f32 v{dt}, v{dt}
    v_exp_f32 v{la}, v{la}''')
    rbf(dt); rbf(la)
    E=vW+16
    e1,e8,e256,c2=E,E+2,E+4,E+6
    a(f'''v_mul_f32 v{la}, v{la}, v{dt}
    v_mul_f32 v{ai}, v{ai}, v{dt}
    v_mul_f32 v{cr}, v{cr}, v{dt}
    v_mul_f32 v{ci}, v{ci}, v{dt}
    v_mul_f32 v{la}, {fhex(-LOG2E)}, v{la}
    v_mul_f32 v{ai}, 0.15915494, v{ai}
    v_add_f32 v{c2}, v{cr}, v{cr}
    v_mul_f32 v{c2+1}, -2.0, v{ci}''')
    tm=E+8
    for k,(d,p) in enumerate(((e1,1.0),(e8,8.0),(e256,256.0))):
        a(f'v_mul_f32 v{tm+2*k}, {fhex(p)}, v{la}\nv_mul_f32 v{tm+2*k+1}, {fhex(p)}, v{ai}')
    for k in range(3): a(f'v_exp_f32 v{tm+2*k}, v{tm+2*k}\nv_fract_f32 v{tm+2*k+1}, v{tm+2*k+1}')
    for k,d in enumerate((e1,e8,e256)): a(f'v_cos_f32 v{d}, v{tm+2*k+1}\nv_sin_f32 v{d+1}, v{tm+2*k+1}')
    for k,d in enumerate((e1,e8,e256)): a(f'v_pk_mul_f32 {V(d,2)}, {V(d,2)}, {V(tm+2*k,2)} op_sel_hi:[1,0]'+(' neg_hi:[1,0]' if d==e8 else ''))
    pk=[vPar+1,vPar+2,vPar+3,vPar+4]; pi=[0]; seen=[-1]
    def tw(p,row):
        if seen[0]!=len(vm.ops): a(f's_mov_b32 m0, s{sT+14}\ns_nop 0'); seen[0]=len(vm.ops)
        lg.issue(f'ds_write_addtid_b32 v{p} offset:{row*TROW}')
    def put(row,r):
        p=pk[pi[0]%4]; pi[0]+=1
        a(f'v_cvt_pk_bf16_f32 v{p}, v{r}, v{r+1}')
        tw(p,row)
    e2,e3,e4,e5,e6,e7=[E+8+2*k for k in range(6)]
    e16,e32,b1,b2,b3=[E+20+2*k for k in range(5)]
    e512,e768,e1024,ta,tb,tc,td=[E+30+2*k for k in range(7)]
    a(f'v_mov_b32 v{pk[3]}, 0x3f80'); tw(pk[3],0)
    cmuls([(e2,e1,e1),(e16,e8,e8),(b1,c2,e8),(e512,e256,e256)])
    put(1,e1); put(8,e256); put(21,c2)
    cmuls([(e3,e2,e1),(e4,e2,e2),(e32,e16,e16),(b2,c2,e16),(b3,b1,e16),(e768,e512,e256),(e1024,e512,e512),(ta,e256,e2)])
    put(2,e2); put(22,b1); put(12,e512); put(9,ta)
    cmuls([(e5,e4,e1),(e6,e4,e2),(e7,e4,e3),(ta,e256,e4),(tb,e512,e4),(tc,e768,e4),(td,e1024,e256)])
    put(3,e3); put(4,e4); put(23,b2); put(24,b3); put(14,e768); put(16,e1024)
    put(10,ta); put(13,tb); put(15,tc); put(17,td)
    cmuls([(ta,e256,e6),(tb,e1024,e512),(tc,e1024,e768),(td,e1024,e1024)])
    put(5,e5); put(6,e6); put(7,e7)
    put(11,ta); put(18,tb); put(19,tc); put(20,td)
    a.hold+=1; arrive()
    if opt['tpos']==2: malltouch()
    st_at(3)
    a.hold=0
    if opt['nor1']==2: a.every=opt['spr1']
    cur=[c2,b1,b2,b3]; alt=[e2,e3,e4,e5]
    for m in range(1,8):
        cmuls([(alt[k],cur[k],e32) for k in range(4)])
        cur,alt=alt,cur
        for k in range(4): put(21+4*m+k,cur[k])
    ts(3); a.flush()
    pld=f'buffer_load_dword v{vPV}, v{vPO}, {S(rWS,4)}, s{sT+2} offen sc1'
    def pb():
        l=a.label('pb'); a(f's_cmp_lg_u32 s{sW}, 3\ns_cbranch_scc1 {l}\ns_and_b32 s{sT+2}, s2, 15\ns_lshl_b32 s{sT+2}, s{sT+2}, 11\ns_add_u32 s{sT+2}, s{sT+2}, {CB}\nv_and_b32 v{vPO}, 15, v{vLANE}\nv_lshlrev_b32 v{vPO}, 7, v{vPO}\n{pld}\n{l}:')
    def gath():
        for hf in range(2): gather_u(hf,lambda s: vm.issue(s,'gu'))
        a(f'v_and_b32 v{vPO}, 7, v{vLANE}\nv_lshlrev_b32 v{vPO}, 7, v{vPO}')
        vm.issue(f'buffer_load_dword v{vPV}, v{vPO}, {S(rWS,4)}, s{sXID} offen sc1','xid')
    EP=opt['ep']
    lg.drain(); barrier()
    st_at(5)
    if EP==1: pb()
    acc=E
    mfs=[]
    for ks in range(8):
        for t in range(2):
            mfs.append((lambda r,ks=ks,t=t: f'{MF} {V(acc+4*t,4)}, {V(r[("A",t,ks)],4)}, {V(r[("B",0,ks)],4)}, '+('0' if ks==0 else V(acc+4*t,4)), [('A',t,ks),('B',0,ks)]))
    def ld(u,r):
        k,t,ks=u
        return [f'ds_read_b128 {V(r,4)}, v{vA if k=="A" else vB} offset:{ks*64+(t*16*TROW if k=="A" else 0)}']
    pipeline(mfs,ld,lg,[E+8+4*k for k in range(12)],16,pre=12)
    c1=consume_items(R1,'r1',vW+2)
    for k in range(17): c1.pop(0)[1]()
    for k in range(4): a(f'v_cvt_pk_bf16_f32 v{acc+2*k}, v{acc+2*k}, v{acc+2*k+1}')
    lg.issue(f'ds_write_b32 v{vC1}, v{acc}')
    lg.issue(f'ds_write_b32 v{vC2}, v{acc+2}')
    exec_set(-1,0)
    lg.issue(f'ds_write_b16 v{vC3}, v{acc+4} offset:1024')
    exec_set(0xffff,0)
    lg.issue(f'ds_write_b16_d16_hi v{vC3}, v{acc+4} offset:1088')
    lg.issue(f'ds_write_b16 v{vC3}, v{acc+6} offset:1152')
    lg.issue(f'ds_write_b16_d16_hi v{vC3}, v{acc+6} offset:1216','kt')
    exec_all()
    for k in range(14): c1.pop(0)[1]()
    if EP==1: w3poll(vPV,pld,16,'W')
    lg.wait('kt'); barrier()
    if EP==1: gath()
    if EP==2: pb()
    g=E; o=E+20
    for k in range(17): lg.issue(f'ds_read_u16 v{g+k}, v{vIX+k}',('g',k))
    for k,f in c1: f()
    a(f'v_mov_b64 {V(o+16,2)}, 0')
    lg.wait(('c','r1')); ts(21)
    if EP!=2: a.sprinkle(issue_items(R2,'r2',vV1,vV2,True),opt['spr2'])
    for k in range(16): a(f'v_lshl_or_b32 v{o+(k>>1)+8*(k&1)}, v{g+k+1}, 16, v{g+k}')
    for cpy in range(2):
        for h in range(2): lg.issue(f'ds_write_b128 v{vE1}, {V(o+8*cpy+4*h,4)} offset:{KC+cpy*KCP+16*h}')
    lg.issue(f'ds_write_b64 v{vE2}, {V(o+16,2)} offset:{KC+4096}')
    if EP==2: w3poll(vPV,pld,16,'W'); lg.drain(); barrier(); gath(); a.sprinkle(issue_items(R2,'r2',vV1,vV2,True),opt['spr2'])
    st_at(4); ts(4)
    def phase_in():
        a.flush()
        if EP==0: poll_b(vPO,vPV,16)
        if EP!=2: lg.drain(); barrier()
        if EP==0: gath()
        ts(5)
    return vPV,phase_in

vXC=GB-9; vUC=GB-10; vMX=GB-11
def xdma(x,iss,v):
    if x%4==0 or (opt['mix'] and LAY[0]==0 and x>7): a(f's_add_u32 m0, s{xL}, {(x&12)*4096}')
    a(f's_add_u32 s{sT+4}, s{xG1 if x&4 else xG}, {(x&3)*64512+(x>>3)*2048}')
    iss(f'buffer_load_dwordx4 v{v}, {S(rWS,4)}, s{sT+4} offen offset:{1024*(x&3)} sc1 lds')
XCH=[(0,opt['c0']),(opt['c0'],8),(8,12),(12,16)]
def xissue(x,v): return lambda: xdma(x,lambda s: vm.issue(s,('x',[c for c in range(4) if XCH[c][0]<=x<XCH[c][1]][0])),v)
def scal():
    a(f'''s_lshr_b32 s{sT+6}, s{sCP}, 5
    s_lshl_b32 s{sT+6}, s{sT+6}, 10
    s_bfe_u32 s{sT+7}, s{sCP}, 0x40001
    s_and_b32 s{hW}, s{sT+7}, 1
    s_mul_i32 s{sT+7}, s{sT+7}, {44*8192}
    s_add_u32 s{sT+7}, s{sT+7}, s{sT+6}
    s_and_b32 s{hO}, s{sJ}, 1
    s_lshl2_add_u32 s{hS}, s{hO}, s{sW}
    s_lshl_b32 s{hS}, s{hS}, 13
    s_add_u32 s{hS}, s{hS}, s{sT+7}
    s_cmp_eq_u32 s{sW}, 2
    s_cselect_b32 s{sT+8}, 2, s{hO}
    s_cselect_b32 s{hO}, s{hO}, s{sW}
    s_xor_b32 s{hW}, s{hW}, s{hO}
    s_lshl1_add_u32 s{hO}, s{sT+8}, s{hO}
    s_add_u32 s{hO}, s{hO}, 32
    s_lshl_b32 s{hO}, s{hO}, 13
    s_add_u32 s{hO}, s{hO}, s{sT+7}
    s_lshl2_add_u32 s{sT+7}, s{sRB}, s{sW}
    s_lshl_b32 s{gF}, s{sT+7}, 5
    s_add_u32 s{gF}, s{gF}, {HF}
    s_and_b32 s{sT+7}, s{sT+7}, 15
    s_mul_i32 s{sT+7}, s{sT+7}, {44*8192}
    s_add_u32 s{sT+7}, s{sT+7}, s{sT+6}
    s_add_u32 s{gO}, s{sT+7}, {32*8192}
    s_lshl_b32 s{sT+8}, s{sKH}, 16
    s_add_u32 s{gH+1}, s{sT+7}, s{sT+8}
    s_xor_b32 s{sT+8}, s{sT+8}, 0x10000
    s_add_u32 s{gH}, s{sT+7}, s{sT+8}
    s_mul_i32 s{gB}, s{sW}, 12288
    s_add_u32 s{gB}, s{gB}, {RED}
    s_lshl_b32 s{xG}, s{sW}, 12
    s_add_u32 s{xL}, s{xG}, {XT}
    s_and_b32 s{sW1B}, s{sRB}, {opt['rot']}
    s_lshl_b32 s{sW1B}, s{sW1B}, 13
    s_xor_b32 s{xG}, s{xG}, s{sW1B}
    s_add_u32 s{xG}, s{xG}, s{sRB}
    s_lshl_b32 s{xG}, s{xG}, 6
    s_add_u32 s{xG}, s{xG}, {X1}
    s_lshl1_add_u32 s{gX}, s{sJ}, s{sCH}
    s_lshl_b32 s{gU}, s{sOB}, 7
    s_add_u32 s{gU}, s{gU}, s{gX}
    s_lshl_b32 s{gU}, s{gU}, 6
    s_lshl_b32 s{gX}, s{gX}, 11
    s_xor_b32 s{gX}, s{gX}, s{sW1B}
    s_andn2_b32 s{gP}, s{sPS}, 0x7ff''')
    for k,x in enumerate((3,1,2)): a(f's_xor_b32 s{sT+8}, s{sW}, {x}\ns_mul_i32 s{sT+8}, s{sT+8}, 12288\ns_add_u32 s{gI+k}, s{sT+8}, {RED+2048*k}')
    for k in range(4): a(f's_and_b32 s{sT+8}, s{sRB}, {opt["rot2"]}\ns_xor_b32 s{sT+8}, s{sT+8}, {k}\ns_mul_i32 s{T2[k]}, s{sT+8}, {96*1024}\ns_lshr_b32 s{sT+8}, s{sT+8}, 1\ns_mul_i32 s{sT+8}, s{sT+8}, {20*1024}\ns_sub_u32 s{T2[k]}, s{T2[k]}, s{sT+8}\ns_add_u32 s{T2[k]}, s{T2[k]}, s{sW2B}')
    for k,r in enumerate(MK): a(f's_mov_b32 s{r}, {0x22222222<<k}\ns_mov_b32 s{r+1}, {0x22222222<<k}')
def retry(issue,regs,mx,lds=None,red=None):
    lr=a.label('re'); lb=a.label('bk')
    def c():
        a(f'{lr}:\ns_sub_u32 s{sSPIN}, s{sSPIN}, 1\ns_cbranch_scc1 L_bail'); a(f's_mov_b32 s{sD1}, m0\ns_mov_b32 s{sD1+1}, s{sT+4}'); issue(); a(f's_waitcnt vmcnt(0)\ns_mov_b32 m0, s{sD1}\ns_mov_b32 s{sT+4}, s{sD1+1}')
        if lds: lds(); a('s_waitcnt lgkmcnt(0)')
        a(red) if red else maxchain(mx,regs)
        a(f'v_cmp_eq_u32 vcc, -1, v{mx}\ns_cbranch_vccnz {lr}\ns_branch {lb}')
    lay=LAY[0]
    def c2(): o=LAY[0]; LAY[0]=lay; c(); LAY[0]=o
    cold.append(c2)
    return lambda: a(f'v_cmp_eq_u32 vcc, -1, v{mx}\ns_cbranch_vccnz {lr}\n{lb}:')
def conv(lay,vXID,phase_in):
    acc=vW; vKA=vW+32; vUB=vW+36; vEX=vW+37; vXS=vW+38; vBR=vW+39; F=vW+40
    t=F+44
    a(f'''v_and_b32 v{t}, 15, v{vLANE}
    v_lshrrev_b32 v{t+1}, 4, v{vLANE}
    v_and_b32 v{t+2}, 1, v{vLANE}
    v_xor_b32 v{t+2}, 1, v{t+2}
    v_mul_u32_u24 v{t+3}, {KCP-2}, v{t+2}
    v_lshl_add_u32 v{t+4}, v{t+1}, 3, v{t}
    v_lshlrev_b32 v{t+4}, 1, v{t+4}
    v_sub_u32 v{t+3}, v{t+3}, v{t+4}
    s_mul_i32 s{sT+3}, s{sCH}, {KCH}
    s_lshl_b32 s{sT+4}, s{sKH}, 8
    s_sub_u32 s{sT+3}, s{sT+3}, s{sT+4}
    s_add_u32 s{sT+3}, s{sT+3}, {KC+4110-192-512}
    v_add_u32 v{vKA}, s{sT+3}, v{t+3}''')
    for m in range(1,4): a(f'v_subrev_u32 v{vKA+m}, {1024*m}, v{vKA}')
    a(f'''v_lshlrev_b32 v{vUB}, 5, v{t}
    v_lshlrev_b32 v{t+3}, 4, v{t+1}
    v_sub_u32 v{vUB}, v{vUB}, v{t+3}
    s_mul_i32 s{sT+3}, s{sCH}, {UCH}
    s_sub_u32 s{sT+3}, s{sT+3}, s{sT+4}
    s_add_u32 s{sT+3}, s{sT+3}, {U+528-192}
    v_add_u32 v{vUB}, s{sT+3}, v{vUB}
    s_lshl_b32 s{sT+3}, s{sCH}, 13
    s_add_u32 s{sT+3}, s{sT+3}, {EXCH}
    v_lshl_add_u32 v{vEX}, v{vLANE}, 4, s{sT+3}
    v_and_b32 v{t+2}, 1, v{t+1}
    v_mul_u32_u24 v{t+2}, 3, v{t+2}
    v_xor_b32 v{t+2}, s{sKH}, v{t+2}
    v_lshlrev_b32 v{t+2}, 9, v{t+2}
    v_lshrrev_b32 v{t+3}, 1, v{t+1}
    v_mul_u32_u24 v{t+4}, 3, v{t+3}
    v_xor_b32 v{t+4}, s{sKH}, v{t+4}
    v_lshlrev_b32 v{t+4}, 5, v{t+4}
    v_and_or_b32 v{t+4}, v{t+1}, 1, v{t+4}
    v_lshl_add_u32 v{t+2}, v{t+3}, 8, v{t+2}
    v_lshl_add_u32 v{vXS}, v{t}, 4, v{t+2}
    v_lshl_add_u32 v{vGB}, v{t}, 1, v{t+4}
    v_lshlrev_b32 v{vGB}, 14, v{vGB}
    v_lshl_add_u32 v{vUC}, v{vLANE}, 4, s{sT+19}
    v_lshlrev_b32 v{t+1}, 1, v{t+1}
    v_xor_b32 v{t+1}, v{t+1}, v{vLANE}
    v_and_b32 v{t+1}, 3, v{t+1}
    v_lshrrev_b32 v{vXC}, 2, v{vLANE}
    v_lshlrev_b32 v{vXC}, 12, v{vXC}
    v_lshl_add_u32 v{vXC}, v{t+1}, 4, v{vXC}
    s_add_u32 s{sT+18}, s{sT+20}, 8192
    s_lshl_b32 s{sT+5}, s{sCP}, 1
    s_add_u32 s{sT+5}, s{sT+5}, s{sCH}
    s_lshl_b32 s{sT+5}, s{sT+5}, 12
    s_add_u32 s{sT+5}, s{sT+5}, {X1}''')
    ID=GB-8
    def ident():
        a(f'''s_movk_i32 s{sT+17}, 0x3f80
        v_lshrrev_b32 v{t+4}, 4, v{vLANE}
        v_and_b32 v{t+5}, 15, v{vLANE}
        v_lshlrev_b32 v{t+4}, 3, v{t+4}
        v_sub_u32 v{t+5}, v{t+5}, v{t+4}
        v_and_b32 v{t+6}, 1, v{vLANE}
        v_lshlrev_b32 v{t+6}, 4, v{t+6}
        v_lshlrev_b32 v{t+6}, v{t+6}, s{sT+17}
        v_ashrrev_i32 v{t+7}, 1, v{t+5}''')
        for k in range(8): a(f'v_cmp_eq_u32 s[{sT+6+2*(k&3)}:{sT+7+2*(k&3)}], {k if k<4 else k-12}, v{t+7}'+(''.join(f'\nv_cndmask_b32 v{ID+k-3+e}, 0, v{t+6}, s[{sT+6+2*e}:{sT+7+2*e}]' for e in range(4)) if k&3==3 else ''))
    def ld(u,r):
        k,s,x=u[:3]
        if k=='B': return [f'ds_read_b128 {V(r,4)}, v{vUB} offset:{192-64*s+512*x}']
        o=(192-64*s+512*(1-(x&1)))//4
        return [f'ds_read2_b32 {V(r,2)}, v{vKA+(x>>1)} offset0:{o} offset1:{o+1}', f'ds_read2_b32 {V(r+2,2)}, v{vKA+(x>>1)} offset0:{o+2} offset1:{o+3}']
    def mx4(r): return FV(0,f'v_max3_u32 v{vMX}, v{r}, v{r+1}, v{r+2}\nv_max_u32 v{vMX}, v{vMX}, v{r+3}')
    def uchk(hf,r):
        rd=lambda iss: iss(f'ds_read_b128 {V(r,4)}, v{vUC} offset:{2048*hf}')
        return [('s',lambda: vm.wait(('gu',hf))),('M',lambda: rd(lambda s: lg.issue(s,'ck')))]+[('s',lambda: None)]*5+[('s',lambda: lg.wait('ck'))]+mx4(r)+[('v',retry(lambda: gather_u(hf,a),range(r,r+4),vMX,lambda: rd(a)))]
    def bchk(hf): g=GB+4*hf; return [('s',lambda: vm.wait(('gb',hf)))]+mx4(g)+[('v',retry(lambda: gather_b(hf,a),range(g,g+4),vMX))]
    ident()
    if lay==0: scal()
    have={('A',s_,q,0):F+16*s_+4*q for s_ in range(3) for q in range(4) if 4*s_+q<11}
    if lay==1 and opt['hv']:
        rs=[84,88,92,96,100,112,116,120,60,64,68]; have=dict(zip(have,rs))
        for u,r in have.items():
            if r>83:
                for x in ld(u,r): lg.issue(x)
    phase_in()
    if lay==0:
        for n in range(2): gather_b(n,lambda s: vm.issue(s,('gb',n)))
        if opt['htouch']==6: htouch()
        if not opt['r2s']: consume(R2,'r2',t+4)
    for u,r in have.items():
        if not(lay==1 and opt['hv'] and r>83):
            for x in ld(u,r): lg.issue(x)
    if lay==1:
        for x in chain(0,uchk(0,t)): x[2]()
    else:
        vm.wait('xid')
        a(f'''v_cmp_ne_u32 vcc, s{sXCC}, v{vXID}
        s_nop 1
        s_cmp_eq_u64 vcc, 0
        s_cselect_b32 s{sLOC}, {0 if opt['forceglobal'] else 1}, 0
        s_xor_b32 s{xG1}, s{xG}, {MB}''')
    ts(6)
    KEEP=[(0,3,4,7),(1,2,5,6)]
    lg.drain(); barrier(); ts(7)
    l1=a.label('tkh1'); l2=a.label('tkhj')
    a(f's_cmp_lg_u32 s{sKH}, 0\ns_cbranch_scc1 {l1}')
    sv=save()
    for kh in range(2):
        restore(sv)
        keep=KEEP[kh]; send=KEEP[1-kh]
        allp=[(q,b) for q in range(8) for b in range(8-q)]
        up=list(range(8)); dn=up[::-1]
        PE=[p for p in allp if sum(p)<4]; PM=[p for p in allp if sum(p)>3 and p[1]<4]; PL=[p for p in allp if p[1]>3]
        def ph(P,s_,ep,qs,fin=0):
            t_=[(s_,q,b,ep) for q,b in sorted(P,key=lambda p:(qs.index(p[0]),p[1]))]
            return [x for x in t_ if x[1]+x[2] in send]+[x for x in t_ if x[1]+x[2] in keep] if fin else t_
        seq=sum([ph(PE,s_,0,dn,s_==3) for s_ in range(4)],[])
        if lay==0: seq+=ph(PM+PL,3,0,[3,2,1,0,4,5,6,7])+ph(PM+PL,2,1,dn)+ph(PM+PL,1,1,dn)
        elif opt['nm']==3: seq+=ph(PM,3,0,up)+ph(PM,2,1,dn)+ph(PM,1,1,dn)+ph(PL,1,1,dn)+ph(PL,2,2,dn)+ph(PL,3,2,dn)
        else: seq+=ph(PM,3,0,up)+ph(PM,2,1,dn)+ph(PL,2,1,dn)+ph(PL,3,2,dn)+ph(PM+PL,1,1,dn)
        seq+=ph(PM+PL,0,1,dn,1)
        seen=set(); mfs=[]; gates={}
        for s_,q,b,ep in seq:
            G=q+b; us=[('A',s_,q,ep),('B',s_,b,ep)]; c=V(acc+4*G,4)
            if G not in seen: seen.add(G); c='0'
            if lay==1 and b>3: gates[us[1]]='ul'
            mfs.append((lambda r,us=us,G=G,c=c: f'{MF} {V(acc+4*G,4)}, {V(r[us[0]],4)}, {V(r[us[1]],4)}, {c}',us))
        bm=lambda n: (lambda r: f'{MF} {V(acc+4*keep[n],4)}, {V(ID+4*(n&1),4)}, {V(GB+4*(n>>1),4)}, {V(acc+4*keep[n],4)}',[])
        mfs=mfs[:40]+[bm(0),bm(1)]+mfs[40:]+[bm(2),bm(3)]
        ns=148-2-13
        def xch(p,i):
            o=[(i+2+2*(n&1),'M',lambda n=n: lg.issue(f'ds_write_b128 v{vEX}, {V(acc+4*send[n],4)} offset:{kh*4096+n*1024}','xw')) for n in (2*p,2*p+1)]
            o.append((i+7,'s',lambda: (lg.wait('xw'),barrier())[0]))
            return o+[(i+7,'M',lambda n=n: lg.issue(f'ds_read_b128 {V(acc+4*send[n],4)}, v{vEX} offset:{(1-kh)*4096+n*1024}',('ex',n))) for n in (2*p,2*p+1)]
        def outp(p):
            d=acc+4*send[2*p]; o=[('s',lambda: lg.wait(('ex',2*p+1)))]; tx=''
            for e in range(2):
                g=acc+4*keep[2*p+e]; r=acc+4*send[2*p+e]
                tx+=''.join(f'v_add_f32 v{r+k}, v{r+k}, v{g+k}\n' for k in range(4)) if p==0 else ''.join(f'v_pk_add_f32 {V(r+k,2)}, {V(r+k,2)}, {V(g+k,2)}\n' for k in (0,2))
                tx+=f'v_cvt_pk_bf16_f32 v{d+2*e}, v{r}, v{r+1}\nv_cvt_pk_bf16_f32 v{d+2*e+1}, v{r+2}, v{r+3}\n'
            tx+=f'v_permlane16_swap_b32 v{d}, v{d+2}\nv_permlane16_swap_b32 v{d+1}, v{d+3}\n'+(f'v_or_b32 v{d}, 1, v{d}' if lay else f'v_and_b32 v{d}, -2, v{d}')
            return o+FV(0,tx)+[('m',lambda: vm.issue(f'buffer_store_dwordx4 {V(d,4)}, v{vXS}, {S(rWS,4)}, s{sT+5} offen offset:{2048*p} sc1','x1st'))]
        ch=[xch(0,35),chain(48,outp(0),0.4,opt['xo']),xch(1,ns),chain(opt['xe' if lay else 'xe0'],[('M',xissue(x,vXC)) for x in range(8)],opt['xesp'])]
        if lay==0:
            ch.append([(36,'s',lambda: vm.wait(('gb',0)),39),(47,'s',lambda: vm.wait(('gb',1)))])
            ch.append(chain(opt['cv0'],[('M',f) for f in issue_items(R3,'r3',vV1,vV2,True)],opt['cvsp']))
            if opt['r2s']:
                assert opt['cv0']>43
                ch.append(chain(opt['r2s'],[('M' if k=='m' else k,f) for k,f in consume_items(R2,'r2',vNEG)],(36-opt['r2s'])/56,37))
            if opt['f0'] and opt['nf']<5: ch.append(chain(1,fill_addr(),1)+chain(opt['f0'],fill_st()[opt['nf']:],opt['fsp']))
            if opt['w2t']:
                def w2t(k): a(f's_and_b32 s{sT+6}, s{sCP}, 31\ns_lshl2_add_u32 s{sT+6}, s{sT+6}, s{sW}\ns_mul_i32 s{sT+6}, s{sT+6}, {86*128}\ns_addk_i32 s{sT+6}, {k*43*128}'); vm.issue(f'buffer_load_dword v{vJ0}, v{vTCH}, {S(rW2,4)}, s{sT+6} offen')
                ch.append(chain(opt['w2t'],FV(0,f'v_min_u32 v{vTCH}, 42, v{vLANE}\nv_lshlrev_b32 v{vTCH}, 7, v{vTCH}')+[('M',lambda: w2t(0))]+[('s',lambda: None)]*opt['w2s']+[('M',lambda: w2t(1))],1))
        else:
            ul=opt['ul']
            ch.append([(ul,'M',lambda: gather_u(1,lambda s: vm.issue(s,('gu',1)))),(opt['bl'],'M',lambda: gather_b(1,lambda s: vm.issue(s,('gb',1))))])
            ch.append(chain(26,bchk(0),1,39)+chain(opt['xe']-8,bchk(1),1,144))
            ch.append(chain(ul+opt['ulw'],uchk(1,GB)+[('s',lambda: (barrier(),'ul')[1])],1))
        late={acc+4*k:64 for k in range(4)}
        pipeline(mfs,ld,lg,[F+4*k for k in range(16)]+list(late),opt['cv_ahead'],fill=merge(*ch),gates=gates,pre=4,late=late,have=have,mark='cv')
        for x in chain(0,outp(1)): x[2]()
        if kh==0: a(f's_branch {l2}\n{l1}:')
    a(f'{l2}:'); lg.reset(); ts(8)

def loc_store(text):
    if LAY[0]==0 and not opt['htouch']: vm.issue(text+' sc1'); return
    lq=a.label('hs'); le=a.label('he')
    a(f's_cmp_eq_u32 s{sLOC}, 0\ns_cbranch_scc1 {lq}'); vm.issue(text); a(f'{le}:')
    cold.append(lambda: a(f'{lq}:\n{text} sc1\ns_branch {le}'))

vL=143; TV=vW+84
def hload(u,rg):
    if u[0]=='o':
        return [f's_add_u32 s{sT+14}, s{gO}, {u[1]*49152+(2*(u[2]-8)+e)*8192}\nbuffer_load_dwordx4 {V(rg+4*e,4)}, v{vL}, {S(rWS,4)}, s{sT+14} offen sc1' for e in range(2)]
    r,ks=u
    return [f's_add_u32 s{sT+14}, s{TH[r&1][ks>>1]}, {(r>>1)*131072+(ks&1)*8192}\nbuffer_load_dwordx4 {V(rg,4)}, v{vL}, {S(rWS,4)}, s{sT+14} offen sc1']
def hflag(val,r):
    def f():
        exec_set(1,0); loc_store(f'buffer_store_dword v{r}, v{vL}, {S(rWS,4)}, s{sHF} offen'); exec_all()
    return FV(0,f'v_mov_b32 v{r}, {val}')+[('s',lambda: vm.wait('hst')),('m',f)]
def hpoll(val,r,gap,name):
    pl=f'buffer_load_dword v{r+1}, v{r}, {S(rWS,4)}, s{gF} offen sc1'
    lr=a.label('hr'); lb=a.label('hb'); tst=f'v_cmp_gt_u32 vcc, {val}, v{r+1}\ns_cbranch_vccnz {lr}'
    cold.append(lambda: a(f'{lr}:\ns_sub_u32 s{sSPIN}, s{sSPIN}, 1\ns_cbranch_scc1 L_bail\n{pl}\ns_waitcnt vmcnt(0)\n{tst}\ns_branch {lb}'))
    return FV(0,f'v_and_b32 v{r}, 7, v{vLANE}\nv_lshlrev_b32 v{r}, 2, v{r}')+[('m',lambda: vm.issue(pl,'hp'))]+[('s',lambda: None)]*gap+[('s',lambda: vm.wait('hp')),('v',lambda: (a(f'{tst}\n{lb}:'),name)[1])]
def g1(lay):
    acc=vW; F=vW+48; vXD=vW+80; vCK=vW+81; mx=vW+82; vM=vW+83; tv=TV; m=vW+116; vW2=vW+122
    a(f'''v_mov_b32 v{vXD}, v{vXC}
    v_lshlrev_b32 v{vL}, 4, v{vLANE}
    v_add_u32 v{vCK}, s{xL}, v{vL}
    v_lshlrev_b32 v{vM}, 2, v{vLANE}
    v_and_b32 v{vM}, 60, v{vM}
    v_add_u32 v{vM}, {STAT}, v{vM}''')
    def chk_items(c):
        x0,x1=XCH[c]; n=x1-x0
        rd=lambda k,iss: iss(f'ds_read2st64_b32 {V(tv+2*k,2)}, v{vCK} offset0:{x0*16+8*k} offset1:{x0*16+8*k+4}')
        if lay: red=f'v_and_b32 v{tv}, v{tv}, v{tv+1}\nv_bitop3_b32 v{mx}, v{tv}, v{tv+2}, v{tv+3} bitop3:0x7f\nv_or_b32 v{mx}, -2, v{mx}'
        else: red=f'v_or3_b32 v{tv}, v{tv}, v{tv+1}, -2\nv_or3_b32 v{mx}, v{tv}, v{tv+2}, v{tv+3}'
        tst=retry(lambda: [xdma(x,a,vXD) for x in range(x0,x1)],None,mx,lambda: [rd(k,a) for k in range(2)],red)
        it=[('s',lambda: vm.wait(('x',c)))]+[('m',lambda k=k: rd(k,lambda s: lg.issue(s,'ck'))) for k in range(2)]+[('s',lambda: None)]*9+[('s',lambda: lg.wait('ck'))]+FV(0,red)
        return it+[('v',lambda: (tst(),barrier(),f'c{c}')[2])]
    if lay==0:
        a(f'v_mov_b32 v{vW2}, v{vV2}')
        ng=tv+24; ad=tv+28
        late=FV(0,a2_vaddr(ad,ad+1)+f'\nv_bfe_u32 v{ad+1}, v{vLANE}, 3, 1\nv_and_b32 v{ad+2}, 0x70, v{vL}\nv_lshl_add_u32 v{ad+1}, v{ad+1}, 12, v{ad+2}\n'+'\n'.join(f'v_mov_b32 v{ng+k}, -1' for k in range(4)))
        st=lambda v,sb,off: (a(f's_add_u32 s{sT+8}, s{sb}, {off}'),vm.issue(f'buffer_store_dwordx4 {V(ng,4)}, v{v}, {S(rWS,4)}, s{sT+8} offen sc1'))
        for k in range(4): late.append(('m',lambda k=k: st(ad,sA2S,8192*(k&1)+MB*(k&2))))
        for p in range(2): late.append(('m',lambda p=p: st(vL,sX1F,2*MB+1024*p)))
        late.append(('m',lambda: (exec_set(0xffff,0),st(ad+1,sPS,0),exec_all())))
        if opt['f0']: late=late[4:7]
        for k in range(4): a(f'v_mov_b32 v{vW+k}, 0x3b003b00')
        cs=[(lambda r,ks=ks,t=t: f'{MF} {V(vCS+4*t,4)}, {W1R(t,ks)}, {V(vW,4)}, '+('0' if ks==0 else V(vCS+4*t,4)),[]) for ks in range(16) for t in range(3)]
        r4=issue_items(R4,'r4',0,vW2,not opt['mix'])
        fl=chain(1,consume_items(R3,'r3',m)+late[:opt['g1f']]+[('s',lambda: lg.wait(('c','r3')))],0,36)
        fl+=chain(36,FS(0,f's_andn2_b32 s{sRX}, 0x4000, s{gX}\ns_add_u32 s{sRX}, s{sRX}, s{xL}')+[('m',f) for f in r4[:opt['xpre']]]+late[opt['g1f']:])
        for k in range(4): fl+=FS(36,f's_and_b32 s{sT+3}, s{sRB}, {opt["rot2"]}\ns_xor_b32 s{sT+3}, s{sT+3}, {k}\ns_lshl_b32 s{sT+3}, s{sT+3}, 14\ns_add_u32 s{TH[0][k]}, s{gH}, s{sT+3}\ns_add_u32 s{TH[1][k]}, s{gH+1}, s{sT+3}')
        pipeline(cs,None,lg,[],0,fill=[(x[0],'v')+x[2:] for x in fl],pre=0)
    ts(9)
    for x in chain(0,chk_items(0)): x[2]()
    ts(10)
    assert opt['xpre']%4==0 and (opt['mix'] or opt['r4a']+(16-opt['xpre'])*opt['g1sp']<=opt['xl0']) and opt['xl0']+8*opt['xlsp']<=opt['r5a'] and opt['cv0']+20*opt['cvsp']<=opt['xe0']
    def ld(u,r):
        ks,lt=u
        return [f'ds_read_b64_tr_b16 {V(r+2*hh,2)}, v{vXT+(lt&1)} offset:{(lt>>1)*32768+ks*2048+hh*1024}' for hh in range(2)]
    l3=a.label('g1w3'); lj=a.label('g1j')
    a(f's_cmp_eq_u32 s{sW}, 3\ns_cbranch_scc1 {l3}')
    sv=save()
    for var in range(2):
        restore(sv)
        def mk(ks,lt,t):
            def f(r):
                x=V(r[(ks,lt)],4); A=x if (var==1 and t==2) else W1R(t,ks); d=V(acc+16*t+4*lt,4)
                return f'{MF} {d}, {A}, {x}, '+('0' if ks==0 else d)
            return (f,[(ks,lt)])
        mfs=[mk(ks,lt,t) for hf in range(2) for ks in range(16) for lt in (2*hf,2*hf+1) for t in range(3) if not(var==1 and t==2 and hf==1 and ks>=10)]
        if var==1: mfs+=[mk(ks,lt,2) for ks in range(10,16) for lt in (2,3)]
        gates={(2*(x&7)+e,2*(x>>3)+l):f'c{c}' for c in range(1,4) for x in range(*XCH[c]) for e in range(2) for l in range(2)}
        def means(hf,i):
            def pubS():
                exec_set(0,'0xffff0000')
                for lt in (2*hf,2*hf+1): lg.issue(f'ds_write_b32 v{vM}, v{acc+16+4*lt} offset:{64*lt}','sw')
                for k in range(4): a(f'v_mov_b64 {V(acc+16+8*hf+2*k,2)}, 0')
                if lay==0 and hf==0:
                    for k in range(2): a(f'v_mov_b64 {V(vCS+4+2*k,2)}, 0')
                exec_all()
            o=[(i,'m',pubS),(i+3,'s',lambda: (lg.wait('sw'),barrier())[0])] if var else [(i+3,'s',barrier)]
            return o+[(i+3,'m',lambda: lg.issue(f'ds_read2_b32 {V(m,2)}, v{vM} offset0:{32*hf} offset1:{32*hf+16}','m'))]
        def epi(hf):
            o=[('s',lambda: lg.wait('m'))]
            def cvt(tt,lt,p):
                r=acc+16*tt+4*lt; c=vCS+4*tt
                if hf: tx=''.join(f'v_pk_fma_f32 {V(r+h,2)}, {V(m,2)}, {V(c+h,2)}, {V(r+h,2)} op_sel:[{lt&1},0,0] op_sel_hi:[{lt&1},1,1] neg_lo:[1,0,0] neg_hi:[1,0,0]\n' for h in (0,2))
                else: tx=''.join(f'v_fma_f32 v{r+h}, -v{m+(lt&1)}, v{c+h}, v{r+h}\n' for h in range(4))
                tx+=''.join(f'v_cvt_pk_bf16_f32 v{p+h}, v{r+2*h}, v{r+2*h+1}\n' for h in range(2))+''.join(f'v_pk_max_i16 v{p+h}, v{p+h}, 0\n' for h in range(2))
                o.extend(FV(0,tx))
            def store(p,sb,off):
                def f(): a(f's_add_u32 s{sT+8}, s{sb}, {off}'); loc_store(f'buffer_store_dwordx4 {V(p,4)}, v{vL}, {S(rWS,4)}, s{sT+8} offen'); vm.tags['hst']=len(vm.ops)
                o.append(('m',f))
            for lt in (2*hf,2*hf+1):
                p=acc+4*lt; cvt(0,lt,p); cvt(1,lt,p+2); store(p,hS,lt*65536)
            q=acc+32+8*hf
            if var==0:
                cvt(2,2*hf,q); cvt(2,2*hf+1,q+2); l=a.label('nosw')
                o.append(('v',lambda: a(f's_cmp_eq_u32 s{hW}, 0\ns_cbranch_scc1 {l}\nv_swap_b32 v{q}, v{q+2}\nv_swap_b32 v{q+1}, v{q+3}\n{l}:')))
                store(q,hO,hf*49152)
            else:
                o.extend(FV(0,''.join(f'v_cndmask_b32 v{q+e}, v{q+e}, v{q+e+1+k}, {S(MK[k],2)}\n' for k in range(3) for e in (0,4))))
                def pubQ():
                    exec_set('0x00f0000f','0xf0000f00')
                    for e in range(2): lg.issue(f'ds_write_b32 v{vM}, v{q+4*e} offset:{256+128*hf+64*e}')
                    exec_all()
                o.append(('m',pubQ))
            return o
        pl=[('m',lambda ks=ks: vm.issue(hload((0,ks),tv+4*ks)[0],('f',(0,ks)))) for ks in range(8)]
        he=opt['he']; hp=opt['hp']; hf=opt['hf']
        ch=[chain(opt['ch1'],chk_items(1),0.7), chain(opt['xl0'],[('m',xissue(x,vXD)) for x in range(8,16)],opt['xlsp']),
            chain(opt['xl1'],chk_items(2),0.7), chain(opt['xl2'],chk_items(3),0.7,hf-1),
            means(0,he), chain(he+9,epi(0),0.4,hf-8), chain(hf,hflag(2*lay+1,mx),1), chain(hp,hpoll(2*lay+1,vCK,opt['hlw'],None),1),
            chain(hp+opt['hlw']+6,pl[:opt['npl']],3), means(1,181)]
        if lay==0:
            ch.append([(1,'m',lambda: vm.issue(f'buffer_load_dword v{ad}, v{ad+1}, {S(rWS,4)}, s{sPS} offen sc1'))])
            ch.append(chain(opt['r4a'],[('m',f) for f in r4[opt['xpre']:]],opt['g1sp']))
            ch.append(chain(opt['r4c'],[('M' if k=='m' else k,f) for k,f in consume_items(R4,'r4',m+1)]+[('s',lambda: lg.wait(('c','r4')))],1,opt['r5a']-1))
            ch.append(chain(opt['r5a'],[('m',f) for f in issue_items(R5[:4],'r5',0,vW2,True)],opt['r5sp'])+chain(max(he+4,opt['r5a']+16*opt['r5sp']),[('m',f) for f in issue_items(R5[4:],'r5',0,vW2,True)],opt['r5sp']))
        xs={acc+16*t+4*l:hf-7 for t in range(3) for l in range(2)} if var else {}
        pipeline(mfs,ld,lg,[F+4*k for k in range(8)]+list(xs),opt['g1_ahead'],fill=[(x[0],'M' if x[1]=='m' else x[1])+x[2:] for x in merge(*ch)],gates=gates,pre=6,late=xs,mark='g1')
        ts(11)
        e1=epi(1); rest=pl[opt['npl']:]
        for n,x in enumerate(rest[::-1]): e1.insert(25-n*(24//len(rest)),x)
        for x in chain(0,e1): x[2]()
        if var==0: a(f's_branch {lj}\n{l3}:')
        elif lay==0: a(arrive_b(mx,vCK))
    a(f'{lj}:'); ts(12)

def g2(layer,fast=0):
    acc=vW; vR=vW+32; vA=vW+33; vB=vW+34; vPS=vW+35; WA=vW+36; OD=vW+40; vO=140; vPL=141; tmp=142; DV=vXT+2
    SET=[(84,92,100,136),(OD,OD+8,OD+16,OD+20)]
    mfs=[]; fixed={}
    M=lambda t,tag=None: ('m',lambda: lg.issue(t,tag))
    W=lambda tag: ('s',lambda: lg.wait(tag))
    BAR=lambda tag: ('s',lambda: (lg.wait(tag),barrier())[0])
    NOP=lambda n: [('s',lambda: None)]*n
    seen=set(); pos={}; end={}
    for pr in range(2):
        n=opt['dfl' if pr else 'dfe']; A4=range(4)
        order=[(0,k,A4) for k in range(10)]+[(1,8,A4),(0,10,A4),(1,9,A4),(1,0,A4),(1,10,A4)]+[(1,k,A4) for k in range(1,8-n)]+[(1,k,d) for d in ((0,1),(2,3)) for k in range(8-n,8)]
        for e,ks,dts in order:
            r=2*pr+e; pos.setdefault((r,ks),len(mfs))
            if ks<8: u=(r,ks); off=0
            else: u=('o',pr,ks); off=2 if e==0 else 0
            for dt in dts:
                def f(rg,r=r,ks=ks,dt=dt,u=u,off=off,z=r not in seen):
                    h=V(rg[u]+off,4); w=W2R(ks,dt); d=V(acc+16*(r&1)+4*dt,4)
                    A,B=(h,w) if layer==0 else (w,h)
                    if layer==0 and r==0 and ks>=6: lg.wait(('c5',ks))
                    return f'{MF} {d}, {A}, {B}, '+('0' if z else d)
                mfs.append((f,[u])); end[(r,dt>>1)]=len(mfs)
            seen.add(r)
    for pr in range(2):
        for ks in (8,9,10): fixed[('o',pr,ks)]=(OD+8*(ks-8), 0 if pr==0 else pos[(1,ks)]+4)
    ch=[]
    for pr in range(2):
        for ks in (8,9,10):
            o=(216 if fast and pr else OD)+8*(ks-8); ch.append(FV(pos[(2*pr,ks)]+4,f'v_mov_b32 v{o+2}, v{o+6}\nv_mov_b32 v{o+3}, v{o+7}',pos[(2*pr+1,ks)]-1))
    def put(pr,k): return FV(0,f'v_add_u32 v{vR}, s{gI+k}, v{vL}')+[M(f'ds_write_b128 v{vR}, {V(acc+8*k+4*d,4)} offset:{6144*pr+1024*d}','pw') for d in range(2)]
    def get(pr,k,r): return [M(f'ds_read_b128 {V(r+4*d,4)}, v{tmp} offset:{6144*pr+2048*k+1024*d}',('g',k)) for d in range(2)]
    def add(d,x,pk=0): return FV(0,''.join(f'v_pk_add_f32 {V(d+k,2)}, {V(d+k,2)}, {V(x+k,2)}\n' for k in range(0,8,2)) if pk else ''.join(f'v_add_f32 v{d+k}, v{d+k}, v{x+k}\n' for k in range(8)))
    if layer==0:
        t=f'''v_and_b32 v{vA}, 15, v{vLANE}
        v_lshlrev_b32 v{vO}, 1, v{vA}
        s_and_b32 s{sT+4}, s{gU}, 0x3c0
        v_add_u32 v{vO}, s{sT+4}, v{vO}
        v_bfe_u32 v{vB}, v{vLANE}, 2, 1
        v_xor_b32 v{vB}, s{sKH}, v{vB}
        v_lshlrev_b32 v{vB}, 5, v{vB}
        v_lshl_add_u32 v{vA}, v{vA}, 6, v{vB}
        v_lshrrev_b32 v{vB}, 4, v{vLANE}
        v_lshl_add_u32 v{vA}, v{vB}, 3, v{vA}
        v_lshlrev_b32 v{vB}, 4, v{vB}
        s_add_u32 s{sT+4}, s{gX}, {XT}
        v_add_u32 v{vA}, s{sT+4}, v{vA}
        v_and_b32 v{vPL}, 7, v{vLANE}
        v_lshlrev_b32 v{vPL}, 7, v{vPL}
        v_lshrrev_b32 v{vPS}, 3, v{vLANE}
        v_lshl_add_u32 v{vPL}, v{vPS}, 4, v{vPL}
        v_lshrrev_b32 v{vPS}, 2, v{vLANE}
        v_lshlrev_b32 v{vPS}, 3, v{vPS}'''
    else:
        t=f'''s_lshl_b32 s{sT+4}, s{sKH}, 5
        v_xor_b32 v{vA}, s{sT+4}, v{vXT}
        v_add_u32 v{vA}, s{gX}, v{vA}
        v_bfe_u32 v{vO}, v{vLANE}, 3, 1
        v_lshlrev_b32 v{vO}, 14, v{vO}
        v_and_b32 v{vB}, 7, v{vLANE}
        v_lshl_add_u32 v{vO}, v{vB}, 10, v{vO}
        v_bfe_u32 v{vB}, v{vLANE}, 4, 1
        v_lshl_add_u32 v{vO}, v{vB}, 5, v{vO}
        v_lshrrev_b32 v{vB}, 5, v{vLANE}
        v_lshl_add_u32 v{vO}, v{vB}, 4, v{vO}
        v_and_b32 v{vB}, 15, v{vLANE}
        v_lshlrev_b32 v{vB}, 2, v{vB}'''
    t+=f'\nv_lshl_add_u32 v{vB}, s{sKH}, 6, v{vB}\nv_add_u32 v{tmp}, s{gB}, v{vL}'
    nr=4 if layer==0 else 1; rw='b128' if layer==0 else 'b32'; tr="_tr_b16" if layer else ""
    def resid(hf):
        XF=SET[hf][1]
        o=[M(f'ds_read_b64{tr} {V(XF+4*d+2,2)}, v{vA} offset:{32768*hf+1024*d}','xr') for d in range(2)]+NOP(8)+[W('xr')]
        for x_ in (XF,XF+4): o+=FV(0,f'v_lshlrev_b32 v{x_}, 16, v{x_+2}\nv_and_b32 v{x_+1}, 0xffff0000, v{x_+2}\nv_lshlrev_b32 v{x_+2}, 16, v{x_+3}\nv_and_b32 v{x_+3}, 0xffff0000, v{x_+3}')
        return o
    def prep(hf):
        RS=(SET[0][2],WA)[hf]; Y=SET[0][3]
        o=[M(f'ds_read_{rw} {V(Y,nr)}, v{vB} offset:{STAT+128*hf}'),M(f'ds_read_{rw} {V(RS,nr)}, v{vB} offset:{STAT+256+128*hf}','st')]
        o+=NOP(8)+[W('st')]
        for f in (lambda i: f'v_mul_f32 v{Y+i}, {fhex(1/512)}, v{Y+i}\nv_fmamk_f32 v{RS+i}, v{RS+i}, {fhex(1/512)}, v{vEPS}', lambda i: f'v_fma_f32 v{RS+i}, -v{Y+i}, v{Y+i}, v{RS+i}',
                  lambda i: f'v_max_f32 v{RS+i}, v{RS+i}, v{vEPS}', lambda i: f'v_rsq_f32 v{RS+i}, v{RS+i}'):
            for i in range(nr): o+=FV(0,f(i))
        return o
    def out(src,d,srd,sb,off,sc,tag=None):
        tx=''.join(f'v_cvt_pk_bf16_f32 v{d+k}, v{src[2*k]}, v{src[2*k+1]}\n' for k in range(4))
        if layer==0: tx+=''.join(f'v_min_u32 v{d+k}, -2, v{d+k}\n' for k in range(4))
        tx+=f'v_permlane16_swap_b32 v{d}, v{d+2}\nv_permlane16_swap_b32 v{d+1}, v{d+3}'
        return FV(0,tx)+[('m',lambda: vm.issue(f's_add_u32 s{sT+4}, s{sb}, {off}\nbuffer_store_dwordx4 {V(d,4)}, v{vO}, {S(srd,4)}, s{sT+4} offen{sc}',tag))]
    D=lambda d,s,c,bm: f'v_add_f32_dpp v{d}, v{s}, v{s} {c} row_mask:0xf bank_mask:{bm}\n'
    def val(hf):
        P,x,RS,Y=SET[hf]; RS=(RS,WA)[hf]
        o=FV(0,''.join(f'v_fmac_f32 v{x+k}, v{P+k}, v{RS+(k&3)*(nr>1)}\n' for k in range(8)))
        if layer==1: return o+out(range(x,x+8),P,rOUT,gU,hf*MB,['',' sc1',' nt',' sc0 sc1'][opt['osc']])
        s_=P; q_=P+4; w=RS
        tx=''.join(f'v_add_f32 v{s_+i}, v{x+i}, v{x+4+i}\nv_mul_f32 v{q_+i}, v{x+i}, v{x+i}\n' for i in range(4))+''.join(f'v_fmac_f32 v{q_+i}, v{x+4+i}, v{x+4+i}\n' for i in range(4))
        tx+=''.join(D(r+i,r+i,'row_ror:8','0x3') for r in (s_,q_) for i in range(2))+''.join(D(r+i,r+i+2,'row_ror:8','0xc') for r in (s_,q_) for i in range(2))
        tx+=''.join(D(w+k,r,'row_half_mirror','0x5') for k,r in enumerate((s_,q_)))+''.join(D(w+k,r+1,'row_half_mirror','0xa') for k,r in enumerate((s_,q_)))
        tx+=''.join(D(w+k,w+k,c,'0xf') for c in ('quad_perm:[2,3,0,1]','quad_perm:[1,0,3,2]') for k in range(2))+''.join(f'v_min_u32 v{w+k}, -2, v{w+k}\n' for k in range(2))
        def st():
            a(f's_add_u32 s{sT+4}, s{sPS}, {4096*hf}'); exec_set('0x11111111','0x11111111')
            loc_store(f'buffer_store_dwordx2 {V(w,2)}, v{vPS}, {S(rWS,4)}, s{sT+4} offen'); exec_all(); vm.tags['pst']=len(vm.ops)
        return o+FV(0,tx)+[('m',st)]
    def psld(hf,iss,e): iss(f's_add_u32 s{sT+4}, s{gP}, {4096*hf}\nbuffer_load_dwordx4 {V(SET[hf][0]+4*e,4)}, v{vPL}, {S(rWS,4)}, s{sT+4} offen offset:{1024*e} sc1')
    def psget(hf): return [('m',lambda e=e: psld(hf,lambda s: vm.issue(s,'ps'),e)) for e in range(2)]
    def fin(hf):
        y,x,rr,Y=SET[hf]; qq=y+4
        tst=retry(lambda: [psld(hf,a,e) for e in range(2)],range(y,y+8),Y)
        o=[('s',lambda: vm.wait('ps'))]+FV(0,f'v_max3_u32 v{Y}, v{y}, v{y+1}, v{y+2}\nv_max3_u32 v{Y+1}, v{y+3}, v{y+4}, v{y+5}\nv_max3_u32 v{Y}, v{Y}, v{y+6}, v{y+7}\nv_max_u32 v{Y}, v{Y}, v{Y+1}')+[('v',tst)]
        tx=''.join(f'v_add_f32 v{y+k}, v{y+k}, v{y+4+k}\n' for k in range(4))
        tx+=''.join(D(y+k,y+k,c,'0xf') for c in ('quad_perm:[1,0,3,2]','quad_perm:[2,3,0,1]','row_half_mirror') for k in range(4))
        for f in (lambda e: f'v_mul_f32 v{y+2*e}, {fhex(-1/512)}, v{y+2*e}\nv_fmamk_f32 v{y+2*e+1}, v{y+2*e+1}, {fhex(1/512)}, v{vEPS}', lambda e: f'v_fma_f32 v{y+2*e+1}, -v{y+2*e}, v{y+2*e}, v{y+2*e+1}',
                  lambda e: f'v_max_f32 v{y+2*e+1}, v{y+2*e+1}, v{vEPS}', lambda e: f'v_rsq_f32 v{rr+e}, v{y+2*e+1}', lambda e: f'v_mul_f32 v{qq+e}, v{y+2*e}, v{rr+e}',
                  lambda e: f'v_mov_b32 v{rr+2+e}, v{rr+e}\nv_mov_b32 v{qq+2+e}, v{qq+e}'):
            tx+=f(0)+'\n'+f(1)+'\n'
        tx+=''.join(f'v_mov_b32_dpp v{r+e}, v{r+2+e} row_ror:8 row_mask:0xf bank_mask:0xc\n' for r in (rr,qq) for e in range(2))
        tx+=''.join(f'v_mov_b32_dpp v{r+2+e}, v{r+2+e} row_ror:8 row_mask:0xf bank_mask:0x3\n' for r in (rr,qq) for e in range(2))
        u=[y,y+1,y+2,y+3,Y,Y+1,Y+2,Y+3]
        tx+=''.join(f'v_fma_f32 v{u[k]}, v{x+k}, v{rr+(k&3)}, v{qq+(k&3)}\n' for k in range(8))
        o+=FV(0,tx)+out(u,qq,rWS,sA2S,2*MB*hf,' sc1','ust')
        return o+FV(0,''.join(f'v_fmac_f32 v{x+k}, v{u[k]}, v{DV+(k>>2)}\n' for k in range(8)))+out(range(x,x+8),x,rWS,sA2S,2*MB*hf+8192,' sc1')
    hl=opt['hl']; P0=SET[0][0]; P1=SET[1][0]
    ch.append(chain(1,FX(0,t),1.5,45))
    ch.append(chain(opt['hf2'],hflag(2*layer+2,vR),1)); ch.append(chain(hl,hpoll(2*layer+2,SET[0][3],opt['hlw'],'hl'),1,64))
    lim={84+4*k:60 for k in range(5)}; late={}
    if layer==0:
        c5=[('M' if k=='m' else k,f) for k,f in consume_items(R5,'r5',WA-1)]; k=0
        for ks in range(6,11):
            n=9+(4 if ks in (6,10) else 0); ch.append(chain(int(k*.7),c5[k:k+n]+[('s',lambda ks=ks: lg.tags.__setitem__(('c5',ks),lg.tags[('c','r5')]))],.65,pos[(0,ks)]-2)); k+=n
        k=pos[(0,10)]
        dv=[('m',lambda d=d: vm.issue(f'global_load_ushort v{DV+d}, v{vO}, {S(sDS,2)} offset:{32*d}','dv')) for d in range(2)]
        ch.append(chain(k+2,[('s',barrier)]+dv+FV(0,a2_vaddr(vO,WA)),0.5,end[(0,1)]+2))
    e0=end[(0,1)]+3; e1=end[(1,0)]+2; e2=end[(2,1)]+2; e3=end[(3,0)]+2
    ch.append(chain(e0,put(0,0)+put(0,1)+NOP(3)+[BAR('pw')]+NOP(max(0,52-e0))+get(0,0,P0)+get(0,1,acc)+NOP(5)+[W(('g',1))]+add(P0,acc),1,87))
    ch.append(chain(e0+14,prep(0)+resid(0),0.4)); ch.append(chain(opt['pr1'],prep(1),0.5,opt['psl']+opt['psw']-1))
    ch.append(chain(e1,put(0,2)+NOP(3)+[BAR('pw')]+get(0,2,acc+16)+NOP(max(0,end[(1,1)]-e1-7)),1)+chain(max(e1+9,end[(1,1)]+2),add(P0,acc+24)+[W(('g',2))]+add(P0,acc+16),0.5,pos[(3,8)]-1))
    ch.append(chain(max(e1+9,end[(1,1)]+2)+9,val(0),0.4))
    ch.append(chain(e2,put(1,0)+put(1,1)+NOP(3)+[BAR('pw')]+get(1,0,P1)+get(1,1,acc)+NOP(5)+[W(('g',1))]+add(P1,acc),1))
    ch.append(chain(pos[(3,9)]+5,resid(1),0.5))
    ch.append(chain(e3,put(1,2)+NOP(3)+[BAR('pw')]+get(1,2,acc+8),1,175))
    if layer==0:
        def pb():
            l=a.label('pb'); a(f'''s_cmp_lg_u32 s{sW}, 3
            s_cbranch_scc1 {l}
            s_and_b32 s{sT+2}, s2, 15
            s_lshl_b32 s{sT+2}, s{sT+2}, 11
            s_add_u32 s{sT+2}, s{sT+2}, {CB}
            v_and_b32 v{vA}, 15, v{vLANE}
            v_lshlrev_b32 v{vA}, 7, v{vA}
            buffer_load_dword v{vW+1}, v{vA}, {S(rWS,4)}, s{sT+2} offen sc1
            {l}:''')
        ch.append(chain(opt['psl'],[('s',lambda: vm.wait('pst'))][:opt.get('psd',1)]+psget(0)+FV(0,''.join(f'v_lshlrev_b32 v{DV+d}, 16, v{DV+d}\n' for d in range(2))),1))
        ch.append(chain(opt['psl']+opt['psw'],fin(0),0.3))
    gates={u:'hl' for f,us in mfs for u in us if (u[1] if u[0]=='o' else u[0]>>1)}
    slots=[TV+4*k for k in range(8)]+list(lim)+([144+4*k for k in range(8+10*fast)] if layer else [])
    lastu=[u for f,us in mfs for u in us][-1]
    def hl2(u,r):
        L=hload(u,r)
        if fast and u==lastu:
            l=a.label('wb'); e=a.label('we')
            L.append(f's_and_b32 s{sT+4}, s{sCP}, 31\ns_cbranch_scc1 {l}\nbuffer_wbl2 sc1\ns_branch {e}\n{l}:\nbuffer_load_dword v255, v{vL}, {S(rWS,4)}, s{gF} offen\n{e}:')
        return L
    if fast:
        for ks in (8,9,10): fixed[('o',1,ks)]=(216+8*(ks-8),0)
    pipeline(mfs,hl2,vm,slots,200,fill=[(x[0],'M' if x[1]=='m' else x[1])+x[2:] for x in merge(*ch)],fixed=fixed,limited=lim,late=late,gates=gates,pre=opt['g2pre'],pace=opt['fp'] if fast else opt['g2pace'],have={(0,k):TV+4*k for k in range(8)},mark='g2',age=opt['age2'])
    ts(14)
    if layer==0: pb()
    for x in chain(0,add(P1,acc+24,1)+[W(('g',2))]+add(P1,acc+8,1)+val(1)): x[2]()
    ts(15)
    if layer==1: return
    a(f'v_mov_b32 v{vW}, v{vA}'); gather_addr(1)
    def pin1():
        vm.drain(); w3poll(vW+1,f'buffer_load_dword v{vW+1}, v{vW}, {S(rWS,4)}, s{sT+2} offen sc1',32,None)
        for x in psget(1): x[1]()
        barrier(); ts(22)
        f1=chain(0,fin(1)); n=6*opt['gaf']
        for x in f1[:n]: x[2]()
        gather_u(0,lambda s: vm.issue(s,('gu',0))); gather_b(0,lambda s: vm.issue(s,('gb',0)))
        for x in f1[n:]: x[2]()
        ts(5)
    return pin1

vx,pin=p0()
conv(0,vx,pin); stop('conv')
g1(0); stop('g1')
pin1=g2(0); stop('g2')
ts_park(); LAY[0]=1
conv(1,None,pin1); g1(1)
if opt['wb']:
    a(f's_cmp_eq_u32 s{sW}, 0\ns_cbranch_scc1 L_fast'); sv=save(); g2(1); a('s_branch L_fj\nL_fast:'); restore(sv); g2(1,1); a('L_fj:')
else: g2(1)
ts_dump(256); ts_dump(0)
if opt['probe']>=0:
    if opt['only']>=0: a(f's_cmp_lg_u32 s2, {opt["only"]}\ns_cbranch_scc1 L_end')
    a('''s_add_u32 s101, s101, 10000
    L_probe:
    s_memrealtime s[96:97]
    s_waitcnt lgkmcnt(0)
    s_sub_u32 s96, s96, s101
    s_cmp_lt_i32 s96, 0
    s_cbranch_scc1 L_probe''')
a('L_end:\ns_endpgm\nL_cold:')
for c in cold: c()
a(f'''L_bail:
s_mov_b64 exec, -1
v_mov_b32 v{vW}, 32
v_mov_b32 v{vW+1}, 1
global_atomic_add v{vW}, v{vW+1}, {S(sDBG,2)} sc1
s_endpgm''')
lines=fix_hazards([l.replace('@CODEMAX@','L_cold-L_pc') for l in a.lines])
n=NAME+'_kernel'
def wrap(lines):
    hdr=open('cdna_kernels/'+NAME+'.s.ref').read().split('; Override')[0]
    return hdr+f'; @launch grid=(256,1,1) block=(256,1,1) lds={LDS_END}\n.amdgcn_target "amdgcn-amd-amdhsa--gfx950"\n.text\n'+khead(n)+'\n'.join(lines)+'\n.section .rodata,"a"\n'+kdesc(n,512,102,256)
lines=add_warm(lines,wrap,sW) if opt['warm'] else [l for l in lines if '@WARM@' not in l]
sys.stdout.write(wrap(lines))
```
